```python
import torch

def _softmax(x, axis=-1):
    return torch.softmax(x, dim=axis)
def _gelu(x):
    return torch.nn.functional.gelu(x, approximate="tanh")
def _silu(x):
    return torch.nn.functional.silu(x)
def _sigmoid(x):
    return torch.sigmoid(x)
def _layernorm(x, axis=-1, eps=1e-5):
    m = x.mean(dim=axis, keepdim=True)
    v = x.var(dim=axis, keepdim=True, unbiased=False)
    return (x - m) / torch.sqrt(v + eps)
def _scatter_add(tgt, idx, src, axis=0):
    return tgt.clone().index_add_(axis, idx, src)
def _segment_sum(src, seg, n):
    out = torch.zeros((n,) + src.shape[1:], dtype=src.dtype)
    return out.index_add_(0, seg, src)
def _pad(x, pw):
    flat = tuple(v for pair in reversed(pw) for v in pair)
    return torch.nn.functional.pad(x, flat)

kernel_name = 'interleave_layers__sliding_block_cached__dense_activation_mish__decode'

def setup_inputs():

    _w = (lambda a: (lambda t: t.to(torch.bfloat16) if t.is_floating_point() else t)(torch.as_tensor(a)))
    def _A_setup():
        B, Sq, D = 1, 1, 640
        Hq, Hkv, Sk, Dh = 32, 32, 8192, 192
        assert Hq % Hkv == 0, (Hq, Hkv)
        return {
            "x": _w((lambda *s: torch.randn(*s, dtype=torch.bfloat16) * 0.1)(B, Sq, D)),
            "k_cache": _w((lambda *s: torch.randn(*s, dtype=torch.bfloat16) * 0.8)(B, Hkv, Sk, Dh)),
            "v_cache": _w((lambda *s: torch.randn(*s, dtype=torch.bfloat16) * 3.2)(B, Hkv, Sk, Dh)),
            "wq": _w((lambda *s: torch.randn(*s, dtype=torch.bfloat16) * 0.8)(D, Hq * Dh) * (D ** -0.5)),
            "wo": _w((lambda *s: torch.randn(*s, dtype=torch.bfloat16) * 3.2)(Hq * Dh, D) * ((Hq * Dh) ** -0.5)),
        }
    _A_in = _A_setup()

    def _B_setup():
        B, S, D, F = 1, 1, 640, 1536
        return {
            "x": _w((lambda *s: torch.randn(*s, dtype=torch.bfloat16) * 0.1)(B, S, D)),
            "w1": _w((lambda *s: torch.randn(*s, dtype=torch.bfloat16) * 1.6)(D, F) * (D ** -0.5)),
            "b1": _w((lambda *s: torch.randn(*s, dtype=torch.bfloat16) * 0.4)(F)),
            "w2": _w((lambda *s: torch.randn(*s, dtype=torch.bfloat16) * 0.4)(F, D) * (F ** -0.5)),
        }
    _B_in = _B_setup()

    return {
        "A_x": _A_in["x"],
        "A_k_cache": _A_in["k_cache"],
        "A_v_cache": _A_in["v_cache"],
        "A_wq": _A_in["wq"],
        "A_wo": _A_in["wo"],
        "B_x": _B_in["x"],
        "B_w1": _B_in["w1"],
        "B_b1": _B_in["b1"],
        "B_w2": _B_in["w2"],
    }

def reference(A_x, A_k_cache, A_v_cache, A_wq, A_wo, B_x, B_w1, B_b1, B_w2):
    def _A_ref(x, k_cache, v_cache, wq, wo):
        B, Sq, D = x.shape
        Hq, Dh = 32, 192
        Hkv, Sk = k_cache.shape[1], k_cache.shape[2]
        W = min(4096, max(256, Sk // 4))
        rep = Hq // Hkv
        q = (lambda x, *d: x.permute(*d))((x @ wq).reshape(B, Sq, Hq, Dh), 0, 2, 1, 3)
        k = (lambda x, n, axis: torch.repeat_interleave(x, n, dim=axis))(k_cache[:, :, Sk - W:, :], rep, axis=1)
        v = (lambda x, n, axis: torch.repeat_interleave(x, n, dim=axis))(v_cache[:, :, Sk - W:, :], rep, axis=1)
        scores = torch.einsum("bhqd,bhkd->bhqk", q, k) * (Dh ** -0.5)
        p = _softmax(scores, axis=-1)
        o = torch.einsum("bhqk,bhkd->bhqd", p, v)
        return (lambda x, *d: x.permute(*d))(o, 0, 2, 1, 3).reshape(B, Sq, Hq * Dh) @ wo

    def _B_ref(x, w1, b1, w2):
        h = torch.einsum("bsd,df->bsf", x, w1) + b1
        sp = torch.log1p(torch.exp(-torch.abs(h))) + torch.where(h > 0, h, torch.zeros_like(h))
        act = h * torch.tanh(sp)
        return torch.einsum("bsf,fd->bsd", act, w2)

    x = A_x
    x = x + _A_ref(_layernorm(x, axis=-1), A_k_cache, A_v_cache, A_wq, A_wo)
    x = x + _B_ref(_layernorm(x, axis=-1), B_w1, B_b1, B_w2)
    x = x + _A_ref(_layernorm(x, axis=-1), A_k_cache, A_v_cache, A_wq, A_wo)
    x = x + _B_ref(_layernorm(x, axis=-1), B_w1, B_b1, B_w2)
    return x
```

```python
import re

_REG = re.compile(r'\b([vsa])(?:(\d+)|\[(\d+):(\d+)\])')

TRANS = ('v_exp_f32', 'v_log_f32', 'v_rcp_f32', 'v_rsq_f32', 'v_sqrt_f32', 'v_sin_f32', 'v_cos_f32')


def regs_of(tok):
    out = set()
    for m in _REG.finditer(tok):
        k = m.group(1)
        if m.group(2) is not None:
            out.add((k, int(m.group(2))))
        else:
            for i in range(int(m.group(3)), int(m.group(4)) + 1):
                out.add((k, i))
    if re.search(r'\bvcc\b', tok):
        out.add(('s', 'vcc'))
    return out


class Ins:
    __slots__ = ('op', 'cls', 'dst', 'src', 'srcc', 'dpp', 'text', 'wide_store', 'sdst')


def parse(text):
    t = text.split(';')[0].strip()
    parts = t.split(None, 1)
    op = parts[0]
    rest = parts[1] if len(parts) > 1 else ''
    ops = [o.strip() for o in rest.split(',')] if rest else []
    ins = Ins()
    ins.op = op
    ins.text = text
    ins.dst = set()
    ins.src = set()
    ins.srcc = set()
    ins.sdst = set()
    ins.dpp = ('_dpp' in op) or ('quad_perm' in rest) or ('row_' in rest)
    ins.wide_store = False
    base = op.replace('_dpp', '').replace('_e32', '').replace('_e64', '')
    if op.startswith('v_mfma'):
        ins.cls = 'MFMA'
        ins.dst = regs_of(ops[0])
        ins.src = regs_of(ops[1]) | regs_of(ops[2])
        ins.srcc = regs_of(ops[3])
    elif op.startswith('v_dot2'):
        ins.cls = 'DOT'
        ins.dst = regs_of(ops[0])
        ins.src = regs_of(ops[1]) | regs_of(ops[2])
        ins.srcc = regs_of(ops[0]) if 'dot2c' in op else regs_of(ops[3])
    elif op.startswith('v_permlane'):
        ins.cls = 'PERM'
        ins.dst = regs_of(ops[0]) | regs_of(ops[1])
        ins.src = set(ins.dst)
    elif op.startswith('v_readfirstlane') or op.startswith('v_readlane'):
        ins.cls = 'RDLANE'
        ins.sdst = regs_of(ops[0])
        ins.src = set().union(*[regs_of(o) for o in ops[1:]])
    elif op.startswith('v_cmp'):
        ins.cls = 'VALU'
        ins.sdst = regs_of(ops[0])
        ins.src = set().union(*[regs_of(o) for o in ops[1:]])
    elif op.startswith('v_'):
        ins.cls = 'TRANS' if base in TRANS else 'VALU'
        ins.dst = regs_of(ops[0])
        ins.src = set().union(*[regs_of(o) for o in ops[1:]]) if len(ops) > 1 else set()
        if base in ('v_fmac_f32', 'v_pk_fmac_f16') or ins.dpp:
            ins.src |= ins.dst
        if base in ('v_cndmask_b32',) and len(ops) == 3:
            ins.src.add(('s', 'vcc'))
    elif op.startswith('global_load') or op.startswith('buffer_load'):
        ins.cls = 'VMEM'
        ins.dst = regs_of(ops[0])
        ins.src = set().union(*[regs_of(o) for o in ops[1:]])
    elif op.startswith('global_store') or op.startswith('buffer_store') or op.startswith('global_atomic'):
        ins.cls = 'VMEM'
        ins.src = set().union(*[regs_of(o) for o in ops])
        ins.wide_store = ('x4' in op or 'x3' in op)
        if ins.wide_store:
            ins.srcc = regs_of(ops[1]) if op.startswith('global') else regs_of(ops[0])
    elif op.startswith('ds_read') or op.startswith('ds_bpermute') or op.startswith('ds_swizzle'):
        ins.cls = 'DS'
        ins.dst = regs_of(ops[0])
        ins.src = set().union(*[regs_of(o) for o in ops[1:]])
    elif op.startswith('ds_'):
        ins.cls = 'DS'
        ins.src = set().union(*[regs_of(o) for o in ops])
    else:
        ins.cls = 'SALU'
        ins.src = set().union(*[regs_of(o) for o in ops]) if ops else set()
    return ins


VALUISH = ('VALU', 'TRANS', 'DOT', 'PERM', 'RDLANE')


def need(p, c):
    n = 0
    creads = c.src | c.srcc
    pv = p.dst
    if p.cls in VALUISH and pv:
        if c.dpp and (pv & creads):
            n = max(n, 2)
        if c.cls == 'PERM' and (pv & creads):
            n = max(n, 2)
        if c.cls == 'MFMA' and (pv & creads):
            n = max(n, 2)
        if c.cls == 'RDLANE' and (pv & creads):
            n = max(n, 1)
        if p.cls == 'TRANS' and (pv & creads):
            n = max(n, 1)
    if p.cls == 'DOT':
        if c.cls == 'DOT' and c.op == p.op:
            if pv & c.src:
                n = max(n, 3)
        elif pv & (creads | c.dst):
            n = max(n, 3)
    if p.cls == 'MFMA':
        if c.cls == 'MFMA':
            if pv & c.src:
                n = max(n, 8)
            if pv & c.srcc:
                n = max(n, 0 if pv == c.srcc else 6)
            elif pv & c.dst:
                n = max(n, 6)
        elif pv & (creads | c.dst):
            n = max(n, 8)
        if c.cls in VALUISH and (p.srcc & c.dst):
            n = max(n, 3)
    if p.cls in VALUISH and p.sdst:
        if c.cls in VALUISH + ('MFMA',) and (p.sdst & creads):
            n = max(n, 4 if c.cls == 'RDLANE' else 2)
        if c.cls == 'VMEM' and (p.sdst & creads):
            n = max(n, 5)
        if c.cls == 'SALU' and (p.sdst & creads):
            n = max(n, 1)
    if p.wide_store and (p.srcc & c.dst):
        n = max(n, 2)
    return n


class Asm:
    def __init__(self):
        self.out = []
        self.hist = []
        self.nlabel = 0

    def raw(self, text):
        self.out.append(text)

    def comment(self, text):
        self.out.append('    ; ' + text)

    def _advance(self, k):
        self.hist = [(i, s + k) for (i, s) in self.hist if s + k < 12]

    def __call__(self, text):
        for line in text.strip().split('\n'):
            line = line.strip()
            if not line:
                continue
            self._emit(line)

    def _emit(self, line):
        ins = parse(line)
        if ins.op == 's_nop':
            self.out.append('    ' + line)
            self._advance(int(line.split()[1]) + 1)
            return
        pad = 0
        for (p, s) in self.hist:
            pad = max(pad, need(p, ins) - s)
        if pad > 0:
            self.out.append('    s_nop %d' % (pad - 1))
            self._advance(pad)
        self.out.append('    ' + line)
        self._advance(1)
        self.hist.append((ins, 0))

    def fence(self):
        pad = 0
        for (p, s) in self.hist:
            w = 0
            if p.cls == 'MFMA':
                w = 8
            elif p.cls == 'DOT':
                w = 3
            elif p.cls in VALUISH:
                w = 5 if (p.sdst - {('s', 'vcc')}) else 2
            elif p.wide_store:
                w = 2
            pad = max(pad, w - s)
        if pad > 0:
            self.out.append('    s_nop %d' % (pad - 1))
        self.hist = []

    def label(self, name):
        self.fence()
        self.out.append(name + ':')

    def newlabel(self, stem):
        self.nlabel += 1
        return 'L_%s_%d' % (stem, self.nlabel)

    def branch(self, op, target):
        self._advance(1)
        self.fence()
        self.out.append('    %s %s' % (op, target))

    def text(self):
        return '\n'.join(self.out) + '\n'
```

```python
import sys, math, struct
from asmlib import Asm

NAME = 'interleave_layers__sliding_block_cached__dense_activation_mish__decode'
DEBUG = '--debug' in sys.argv
OUT = [a for a in sys.argv[1:] if not a.startswith('--')]
OUT = OUT[0] if OUT else 'cdna_kernels/%s.s' % NAME


def f2u(x):
    return struct.unpack('<I', struct.pack('<f', x))[0]


LB = 0xC0000
SOFF = 0x200000
QP, AT, ML, YY, HP, HS, ZZ = 0x0, 0x40000, 0x80000, 0x84000, 0x90000, 0x9C000, 0xA0000
CS, CS1, X2, EPOCH = SOFF + 0x180000, SOFF + 0x1C0000, SOFF + 0x1D0000, SOFF + 0x1E0000
STAMPS = 0x800000
RS, HSZ = 400, 3200
IMGQ, IMGR = 0, 6400
QV = 12800
MW = 13312
RED = 13824
RED2 = RED + 16 * 768
LDS_BYTES = RED2 + 8 * 256
sX, sK, sV, sWQ, sWO, sW1, sB1, sW2, sOUT, sWS = 4, 6, 8, 10, 12, 16, 18, 20, 22, 26
sG, sR_, sH, sJ, sWV, sTAG, sEP, sROLE, sRA, sRB, sCNT, sLAY = 28, 29, 30, 31, 32, 33, 34, 35, 36, 37, 38, 39
sF, sS, sRD = 40, 42, 44
sT0, sT1, sT2, sT3 = 46, 47, 48, 49
sMASK = 50
sEXA, sEXB = 52, 54
sU = 56
sHI = 57
NFAST = 96
LIMIT = 1 << 21


def sp(n):
    return 's[%d:%d]' % (n, n + 1)


def vr(n, k=1):
    return 'v%d' % n if k == 1 else 'v[%d:%d]' % (n, n + k - 1)


a = Asm()
nstamp = [0]


def stamp(i):
    if DEBUG:
        a('s_memrealtime s[%d:%d]' % (64 + 2 * i, 65 + 2 * i))
        a('s_waitcnt lgkmcnt(0)')


vLANE, vMK = 0, 1


def lane_fields(l8=None, lg=None):
    if l8 is not None:
        a('v_and_b32 v%d, 7, v%d' % (l8, vLANE))
    if lg is not None:
        a('v_lshrrev_b32 v%d, 3, v%d' % (lg, vLANE))


def sub_field(dst, tmp):
    a('v_lshrrev_b32 v%d, 4, v%d' % (dst, vLANE))


def tagcheck(words, vT, d, d2):
    words = list(words)
    if len(words) % 2:
        words.append(words[-1])
    first = True
    pend = []
    for i in range(0, len(words), 2):
        dst = d if first else d2 + (len(pend) % 2)
        a('v_bitop3_b32 v%d, v%d, v%d, v%d bitop3:0x7e' % (dst, words[i], words[i + 1], vT))
        if not first:
            pend.append(dst)
            if len(pend) == 2:
                a('v_or3_b32 v%d, v%d, v%d, v%d' % (d, d, pend[0], pend[1]))
                pend = []
        first = False
    if pend:
        a('v_or_b32 v%d, v%d, v%d' % (d, d, pend[0]))
    a('v_and_b32 v%d, 0xff, v%d' % (d, d))
    a('v_cmp_ne_u32 vcc, 0, v%d' % d)


def poll(loads, words, vT, d, d2, fast, pre_issued=False):
    L = a.newlabel('poll')
    W = a.newlabel('pollw')
    D = a.newlabel('polld')
    a('s_mov_b32 s%d, 0' % sCNT)
    if pre_issued:
        a.branch('s_branch', W)
    a.label(L)
    loads(sRD if fast else sS)
    if pre_issued:
        a.label(W)
    a('s_waitcnt vmcnt(0)')
    tagcheck(words, vT, d, d2)
    a.branch('s_cbranch_vccz', D)
    a('s_add_u32 s%d, s%d, 1' % (sCNT, sCNT))
    if fast:
        a('s_cmp_ge_u32 s%d, %d' % (sCNT, NFAST))
        a('s_cselect_b64 %s, %s, %s' % (sp(sRD), sp(sS), sp(sRD)))
    a('s_cmp_lt_u32 s%d, %d' % (sCNT, LIMIT))
    a.branch('s_cbranch_scc1', L)
    a.branch('s_branch', 'L_end')
    a.label(D)


def rscatter4(r, extra_ror4=False):
    a('v_permlane32_swap_b32 v%d, v%d' % (r, r + 2))
    a('v_permlane32_swap_b32 v%d, v%d' % (r + 1, r + 3))
    a('v_add_f32 v%d, v%d, v%d' % (r, r, r + 2))
    a('v_add_f32 v%d, v%d, v%d' % (r + 1, r + 1, r + 3))
    a('v_permlane16_swap_b32 v%d, v%d' % (r, r + 1))
    a('v_add_f32 v%d, v%d, v%d' % (r, r, r + 1))
    a('v_add_f32_dpp v%d, v%d, v%d row_ror:8 row_mask:0xf bank_mask:0xf' % (r, r, r))
    if extra_ror4:
        a('v_add_f32_dpp v%d, v%d, v%d row_ror:4 row_mask:0xf bank_mask:0xf' % (r, r, r))


def allred8(op, regs):
    for ctl in ('quad_perm:[1,0,3,2]', 'quad_perm:[2,3,0,1]', 'row_half_mirror'):
        for r in regs:
            a('%s_dpp v%d, v%d, v%d %s row_mask:0xf bank_mask:0xf' % (op, r, r, r, ctl))


def img_masks(vMA, tmp):
    a('v_and_b32 v%d, 8, v%d' % (tmp, vLANE))
    a('v_cmp_eq_u32 vcc, 0, v%d' % tmp)
    a('v_mov_b32 v%d, 0xffff' % tmp)
    a('v_cndmask_b32 v%d, 0, v%d, vcc' % (vMA, tmp))
    a('v_mov_b32 v%d, 0xffff0000' % tmp)
    a('v_cndmask_b32 v%d, v%d, 0, vcc' % (vMA + 1, tmp))


def img_addr(dst, rr, tmp, base):
    a('v_and_b32 v%d, 7, v%d' % (tmp, rr))
    a('v_mul_u32_u24 v%d, %d, v%d' % (dst, RS, tmp))
    a('v_and_b32 v%d, 0xfffffff8, v%d' % (tmp, rr))
    a('v_add_u32 v%d, v%d, v%d' % (dst, dst, tmp))
    a('v_and_b32 v%d, 8, v%d' % (tmp, vLANE))
    a('v_mul_u32_u24 v%d, %d, v%d' % (tmp, HSZ // 8, tmp))
    a('v_add_u32 v%d, v%d, v%d' % (dst, dst, tmp))
    if base:
        a('v_add_u32 v%d, %d, v%d' % (dst, base, dst))


def img_write(pk, vMA, pair, addr):
    a('v_and_b32 v%d, v%d, v%d' % (pair, pk, vMA))
    a('v_and_b32 v%d, v%d, v%d' % (pair + 1, pk, vMA + 1))
    a('ds_write_b64 v%d, %s' % (addr, vr(pair, 2)))


def addtag(regs, vT):
    for r in regs:
        a('v_and_or_b32 v%d, v%d, s%d, v%d' % (r, r, sMASK, vT))


vS1, vS2, vIRD, vCS, vCS1, vB1, vPUB = 120, 121, 122, 123, 124, 125, 126
WROLE, WWQ = 32, 80


def gemv(nU, wbase, imgoff, tmp, acc, rdaddr, ones=None):
    n2 = nU // 2
    for i in range(n2):
        a('ds_read_b128 %s, v%d offset:%d' % (vr(tmp + 4 * i, 4), rdaddr, imgoff + 16 * i))
    A = tmp + 4 * n2

    def build(u):
        if u % 2 == 0:
            a('s_waitcnt lgkmcnt(%d)' % min(15, n2 - 1 - u // 2))
        src = tmp + 2 * u
        d = A + 4 * (u % 2)
        a('v_lshlrev_b64 %s, v%d, %s' % (vr(d, 2), vS1, vr(src, 2)))
        a('v_lshrrev_b64 %s, v%d, %s' % (vr(d + 2, 2), vS2, vr(src, 2)))
    build(0)
    for u in range(nU):
        if u + 1 < nU:
            build(u + 1)
        a('v_mfma_f32_16x16x32_bf16 %s, %s, %s, %s' % (vr(acc, 4), vr(A + 4 * (u % 2), 4), vr(wbase + 4 * u, 4),
                                                      '0' if u == 0 else vr(acc, 4)))


def colsum(nU, wbase, A, acc):
    for k in range(4):
        a('v_and_b32 v%d, 0x3f803f80, v%d' % (A + k, vMK + k))
    for u in range(nU):
        a('v_mfma_f32_16x16x32_bf16 %s, %s, %s, %s' % (vr(acc, 4), vr(A, 4), vr(wbase + 4 * u, 4),
                                                      '0' if u == 0 else vr(acc, 4)))


def classadd(acc, out):
    a('v_permlane32_swap_b32 v%d, v%d' % (acc, acc + 2))
    a('v_permlane32_swap_b32 v%d, v%d' % (acc + 1, acc + 3))
    a('v_add_f32_dpp v%d, v%d, v%d row_ror:8 row_mask:0xf bank_mask:0xf' % (out, acc + 2, acc))
    a('v_add_f32_dpp v%d, v%d, v%d row_ror:8 row_mask:0xf bank_mask:0xf' % (out + 1, acc + 3, acc + 1))


def pub2(addr, data, fast, vT):
    addtag([data, data + 1], vT)
    a('s_mov_b64 exec, %s' % sp(sEXB))
    if fast:
        a('global_store_dwordx2 v%d, %s, %s' % (addr, vr(data, 2), sp(sF)))
    a('global_store_dwordx2 v%d, %s, %s sc1' % (addr, vr(data, 2), sp(sS)))
    a('s_mov_b64 exec, -1')


def stats_wave(imgbase, nrd, addr_fn, fast):
    ad, s1, s2, t, vT = 5, 6, 7, 8, 9
    x = 10
    a('v_and_b32 v%d, 7, v%d' % (t, vLANE))
    a('v_lshrrev_b32 v%d, 3, v%d' % (ad, vLANE))
    a('v_mul_u32_u24 v%d, %d, v%d' % (ad, RS, ad))
    a('v_lshl_add_u32 v%d, v%d, 3, v%d' % (ad, t, ad))
    for i in range(nrd):
        a('ds_read_b32 v%d, v%d offset:%d' % (x + i, ad, imgbase + 64 * i))
    addr_fn(ad, t)
    a('v_mov_b32 v%d, s%d' % (vT, sTAG))
    a('s_waitcnt lgkmcnt(0)')
    for i in range(nrd):
        a('v_lshlrev_b32 v%d, 16, v%d' % (x + i, x + i))
    a('v_mov_b32 v%d, v%d' % (s1, x))
    a('v_mul_f32 v%d, v%d, v%d' % (s2, x, x))
    for i in range(1, nrd):
        a('v_add_f32 v%d, v%d, v%d' % (s1, s1, x + i))
        a('v_fmac_f32 v%d, v%d, v%d' % (s2, x + i, x + i))
    a('v_permlane32_swap_b32 v%d, v%d' % (s1, s2))
    a('v_add_f32 v%d, v%d, v%d' % (s1, s1, s2))
    allred8('v_add_f32', [s1])
    a('v_add_f32_dpp v%d, v%d, v%d row_ror:8 row_mask:0xf bank_mask:0xf' % (s1, s1, s1))
    a('v_mov_b32 v%d, v%d' % (t, s1))
    a('v_permlane16_swap_b32 v%d, v%d' % (s1, t))
    a('v_add_f32 v%d, v%d, v%d' % (s1, s1, t))
    addtag([s1], vT)
    a('s_mov_b32 exec_lo, 1')
    a('s_mov_b32 exec_hi, 1')
    if fast:
        a('global_store_dword v%d, v%d, %s' % (ad, s1, sp(sF)))
    a('global_store_dword v%d, v%d, %s sc1' % (ad, s1, sp(sS)))
    a('s_mov_b64 exec, -1')


def ln_from_stats(s1, s2, t):
    a('v_mul_f32 v%d, 0x%08x, v%d' % (s1, f2u(1.0 / 640), s1))
    a('v_mul_f32 v%d, 0x%08x, v%d' % (s2, f2u(1.0 / 640), s2))
    a('v_fma_f32 v%d, -v%d, v%d, v%d' % (s2, s1, s1, s2))
    a('v_max_f32 v%d, 0, v%d' % (s2, s2))
    a('v_add_f32 v%d, 0x%08x, v%d' % (s2, f2u(1e-5), s2))
    a('v_rsq_f32 v%d, v%d' % (s2, s2))


def resid_round(y, xprev, pk):
    a('v_cvt_pk_bf16_f32 v%d, v%d, v%d' % (y, y, y))
    a('v_and_b32 v%d, s%d, v%d' % (y, sHI, y))
    a('v_add_f32 v%d, v%d, v%d' % (y, y, xprev))
    a('v_cvt_pk_bf16_f32 v%d, v%d, v%d' % (pk, y, y))


hdr = open('cdna_kernels/%s.s.ref' % NAME).read().split('; Override launch')[0]
a.raw(hdr.rstrip('\n'))
a.raw('; @launch grid=(256,1,1) block=(1024,1,1) lds=%d' % LDS_BYTES)
a.raw('.amdgcn_target "amdgcn-amd-amdhsa--gfx950"')
a.raw('.text')
a.raw('.globl %s_kernel' % NAME)
a.raw('.p2align 8')
a.raw('.type %s_kernel,@function' % NAME)
a.raw('%s_kernel:' % NAME)

a('s_cmp_ge_u32 s2, 256')
a.branch('s_cbranch_scc1', 'L_exit')
a('s_load_dwordx16 s[4:19], s[0:1], 0')
a('s_load_dwordx8 s[20:27], s[0:1], 64')
if DEBUG:
    a('s_memrealtime s[96:97]')
a('v_lshrrev_b32 v5, 6, v0')
a('v_and_b32 v0, 63, v0')
a('v_readfirstlane_b32 s%d, v5' % sWV)
a('s_and_b32 s%d, s2, 7' % sG)
a('s_lshr_b32 s%d, s2, 3' % sR_)
a('s_lshr_b32 s%d, s%d, 3' % (sT0, sR_))
a('s_lshl_b32 s%d, s%d, 2' % (sH, sG))
a('s_add_u32 s%d, s%d, s%d' % (sH, sH, sT0))
a('s_and_b32 s%d, s%d, 7' % (sJ, sR_))
a('s_mov_b32 s%d, 0xffffff00' % sMASK)
a('s_mov_b32 s%d, 0xffff0000' % sHI)
a('s_mov_b32 s%d, 0x00ff00ff' % sEXA)
a('s_mov_b32 s%d, 0xff00ff00' % (sEXA + 1))
a('s_mov_b32 s%d, 0x00ff00ff' % sEXB)
a('s_mov_b32 s%d, 0x00ff00ff' % (sEXB + 1))
a('s_mov_b32 s%d, 0' % sLAY)
a('s_cmp_ge_u32 s%d, 10' % sR_)
a('s_cselect_b32 s%d, 1, 0' % sRA)
a('s_mul_i32 s%d, s%d, 10' % (sT0, sRA))
a('s_sub_u32 s%d, s%d, s%d' % (sRB, sR_, sT0))
a('s_mov_b32 s%d, 0' % sROLE)
a('s_cmp_lt_u32 s%d, 20' % sR_)
a.branch('s_cbranch_scc1', 'L_roledone')
a('s_cmp_ge_u32 s%d, 26' % sR_)
a('s_cselect_b32 s%d, 2, 1' % sROLE)
a('s_cselect_b32 s%d, 26, 20' % sT0)
a('s_sub_u32 s%d, s%d, s%d' % (sT0, sR_, sT0))
a('s_and_b32 s%d, s%d, 1' % (sRB, sT0))
a('s_lshr_b32 s%d, s%d, 1' % (sT0, sT0))
a('s_mul_i32 s%d, s%d, 3' % (sRA, sG))
a('s_add_u32 s%d, s%d, s%d' % (sRA, sRA, sT0))
a.label('L_roledone')
a('v_and_b32 v5, 1, v0')
a('v_cmp_eq_u32 vcc, 0, v5')
a('v_mov_b32 v6, 0xffff')
a('v_mov_b32 v7, 0xffff0000')
a('v_cndmask_b32 v6, v7, v6, vcc')
a('v_bfe_u32 v5, v0, 1, 2')
for k in range(4):
    a('v_cmp_eq_u32 vcc, %d, v5' % k)
    a('v_cndmask_b32 v%d, 0, v6, vcc' % (vMK + k))
a('s_waitcnt lgkmcnt(0)')
a('s_add_u32 s%d, s%d, 0x%x' % (sT0, sWS, EPOCH))
a('s_addc_u32 s%d, s%d, 0' % (sT1, sWS + 1))
a('s_load_dword s%d, %s, 0' % (sEP, sp(sT0)))
a('s_mov_b64 %s, %s' % (sp(sF), sp(sWS)))
a('s_mov_b64 %s, %s' % (sp(sRD), sp(sWS)))
a('s_add_u32 s%d, s%d, 0x%x' % (sS, sWS, SOFF))
a('s_addc_u32 s%d, s%d, 0' % (sS + 1, sWS + 1))
a('s_cmp_ge_u32 s%d, 8' % sWV)
a.branch('s_cbranch_scc1', 'L_kv')


def h1_gather():
    vT, vMA, aD, aA, aC, aI = 5, 6, 8, 9, 10, 11
    D, A_, C_, d, d2, t = 12, 16, 20, 24, 25, 27
    a('s_cmp_ge_u32 s%d, 6' % sU)
    a('s_cselect_b32 s%d, 1, 0' % sT0)
    a('s_mul_i32 s%d, s%d, 6' % (sT1, sT0))
    a('s_sub_u32 s%d, s%d, s%d' % (sT1, sU, sT1))
    a('s_lshl_b32 s%d, s%d, 2' % (sT2, sG))
    a('s_lshl_b32 s%d, s%d, 1' % (sT3, sRA))
    a('s_add_u32 s%d, s%d, s%d' % (sT2, sT2, sT3))
    a('s_add_u32 s%d, s%d, s%d' % (sT2, sT2, sT0))
    a('v_mov_b32 v%d, s%d' % (vT, sTAG))
    img_masks(vMA, t)
    lane_fields(l8=d, lg=d2)
    a('s_lshl_b32 s%d, s%d, 13' % (sT3, sT2))
    a('s_lshl_b32 s%d, s%d, 7' % (sCNT, sT1))
    a('s_add_u32 s%d, s%d, s%d' % (sT3, sT3, sCNT))
    a('s_add_u32 s%d, s%d, 0x%x' % (sT3, sT3, AT))
    a('v_lshlrev_b32 v%d, 10, v%d' % (aD, d2))
    a('v_lshl_add_u32 v%d, v%d, 4, v%d' % (aD, d, aD))
    a('v_add_u32 v%d, s%d, v%d' % (aD, sT3, aD))
    a('s_lshl_b32 s%d, s%d, 7' % (sT3, sT2))
    a('s_add_u32 s%d, s%d, 0x%x' % (sT3, sT3, ML))
    a('v_lshlrev_b32 v%d, 4, v%d' % (aA, d))
    a('v_add_u32 v%d, s%d, v%d' % (aA, sT3, aA))
    a('v_lshlrev_b32 v%d, 4, v%d' % (aC, d2))
    a('v_add_u32 v%d, s%d, v%d' % (aC, sT3, aC))
    a('s_mul_i32 s%d, s%d, 192' % (sT3, sT0))
    a('s_lshl_b32 s%d, s%d, 5' % (sCNT, sT1))
    a('s_add_u32 s%d, s%d, s%d' % (sT3, sT3, sCNT))
    a('v_lshrrev_b32 v%d, 4, v%d' % (d2, vLANE))
    a('v_lshl_add_u32 v%d, v%d, 2, v%d' % (d2, d, d2))
    a('v_add_u32 v%d, s%d, v%d' % (d2, sT3, d2))
    img_addr(aI, d2, t, IMGR)

    def loads(b):
        a('global_load_dwordx4 %s, v%d, %s sc1' % (vr(A_, 4), aA, sp(b)))
        a('global_load_dwordx4 %s, v%d, %s sc1' % (vr(C_, 4), aC, sp(b)))
        a('global_load_dwordx4 %s, v%d, %s sc1' % (vr(D, 4), aD, sp(b)))
    poll(loads, [A_, A_ + 1, A_ + 2, C_, C_ + 2, D, D + 1, D + 2, D + 3], vT, d, d2, True)
    stamp(4)
    for X in (A_, C_):
        a('v_bfe_u32 v%d, v%d, 8, 8' % (X + 2, X + 2))
        a('v_and_or_b32 v%d, v%d, s%d, v%d' % (X, X, sMASK, X + 2))
    a('v_mov_b32 v%d, v%d' % (t, A_))
    allred8('v_max_f32', [t])
    a('v_sub_f32 v%d, v%d, v%d' % (A_, A_, t))
    a('v_sub_f32 v%d, v%d, v%d' % (C_, C_, t))
    a('v_exp_f32 v%d, v%d' % (A_, A_))
    a('v_exp_f32 v%d, v%d' % (C_, C_))
    a('v_mul_f32 v%d, v%d, v%d' % (A_, A_, A_ + 1))
    for k in range(4):
        a('v_mul_f32 v%d, v%d, v%d' % (D + k, D + k, C_))
    allred8('v_add_f32', [A_])
    a('v_rcp_f32 v%d, v%d' % (A_, A_))
    rscatter4(D)
    a('v_mul_f32 v%d, v%d, v%d' % (D, D, A_))
    a('v_cvt_pk_bf16_f32 v%d, v%d, v%d' % (D, D, D))
    img_write(D, vMA, C_, aI)
    a('s_waitcnt lgkmcnt(0)')


def h2_gather():
    vT, vMA, aD, aD2, aI, aX, xp = 5, 6, 8, 9, 10, 11, 22
    D, E, d, d2, t = 12, 16, 24, 25, 27
    a('v_mov_b32 v%d, s%d' % (vT, sTAG))
    img_masks(vMA, t)
    lane_fields(l8=d, lg=d2)
    a('s_mul_i32 s%d, s%d, 1280' % (sT0, sRB))
    a('s_lshl_b32 s%d, s%d, 7' % (sT1, sU))
    a('s_add_u32 s%d, s%d, s%d' % (sT0, sT0, sT1))
    a('s_add_u32 s%d, s%d, 0x%x' % (sT2, sT0, YY))
    a('v_mul_u32_u24 v%d, 2560, v%d' % (aD, d2))
    a('v_lshl_add_u32 v%d, v%d, 4, v%d' % (aD, d, aD))
    a('v_add_u32 v%d, s%d, v%d' % (aD, sT2, aD))
    a('v_add_u32 v%d, %d, v%d' % (aD2, 8 * 2560, aD))
    a('v_lshrrev_b32 v%d, 4, v%d' % (d2, vLANE))
    a('v_lshl_add_u32 v%d, v%d, 2, v%d' % (d2, d, d2))
    a('s_lshl_b32 s%d, s%d, 5' % (sT1, sU))
    a('v_add_u32 v%d, s%d, v%d' % (d2, sT1, d2))
    img_addr(aI, d2, t, IMGR)
    a('s_mul_i32 s%d, s%d, 320' % (sT1, sRB))
    a('v_add_u32 v%d, s%d, v%d' % (d2, sT1, d2))
    Lk1 = a.newlabel('h2k1')
    Lj = a.newlabel('h2j')
    a('s_cmp_lg_u32 s%d, 0' % sLAY)
    a.branch('s_cbranch_scc1', Lk1)
    a('v_lshlrev_b32 v%d, 1, v%d' % (aX, d2))
    a('global_load_ushort v%d, v%d, %s' % (xp, aX, sp(sX)))
    a('s_waitcnt vmcnt(0)')
    a('v_lshlrev_b32 v%d, 16, v%d' % (xp, xp))
    a.branch('s_branch', Lj)
    a.label(Lk1)
    a('v_lshlrev_b32 v%d, 2, v%d' % (aX, d2))
    a('v_add_u32 v%d, 0x%x, v%d' % (aX, X2, aX))
    poll(lambda b: a('global_load_dword v%d, v%d, %s sc1' % (xp, aX, sp(sWS))), [xp], vT, d, t, False)
    a('v_and_b32 v%d, s%d, v%d' % (xp, sHI, xp))
    a.label(Lj)
    a('v_lshlrev_b32 v%d, 2, v%d' % (aX, d2))
    a('v_add_u32 v%d, 0x%x, v%d' % (aX, ZZ + 24 * 2560, aX))

    def loads(b):
        a('global_load_dwordx4 %s, v%d, %s sc1' % (vr(D, 4), aD, sp(b)))
        a('global_load_dwordx4 %s, v%d, %s sc1' % (vr(E, 4), aD2, sp(b)))
    poll(loads, list(range(D, D + 8)), vT, d, d2, False)
    stamp(4)
    for k in range(4):
        a('v_add_f32 v%d, v%d, v%d' % (D + k, D + k, E + k))
    rscatter4(D)
    resid_round(D, xp, D)
    img_write(D, vMA, E, aI)
    Ls = a.newlabel('h2s')
    a('s_cmp_lg_u32 s%d, 0' % sRA)
    a.branch('s_cbranch_scc1', Ls)
    a('v_and_or_b32 v%d, v%d, s%d, v%d' % (D, D, sHI, vT))
    a('s_mov_b64 exec, %s' % sp(sEXB))
    a('global_store_dword v%d, v%d, %s sc1' % (aX, D, sp(sS)))
    a('s_mov_b64 exec, -1')
    a.label(Ls)
    a('s_waitcnt lgkmcnt(0)')


def dump_stamps():
    if not DEBUG:
        return
    a('s_memrealtime s[98:99]')
    a('s_lshl_b32 s%d, s2, 4' % sT0)
    a('s_add_u32 s%d, s%d, s%d' % (sT0, sT0, sWV))
    a('s_lshl_b32 s%d, s%d, 8' % (sT0, sT0))
    a('s_add_u32 s%d, s%d, 0x%x' % (sT0, sT0, STAMPS))
    a('v_mov_b32 v5, s%d' % sT0)
    a('s_waitcnt lgkmcnt(0)')
    a('s_mov_b64 exec, 1')
    for i in range(18):
        a('v_mov_b32 v6, s%d' % (64 + 2 * i))
        a('v_mov_b32 v7, s%d' % (65 + 2 * i))
        a('global_store_dwordx2 v5, v[6:7], %s offset:%d' % (sp(sWS), 8 * i))
    a('s_mov_b64 exec, -1')


def next_layer():
    if DEBUG:
        for i in range(8):
            a('s_mov_b64 s[%d:%d], s[%d:%d]' % (80 + 2 * i, 81 + 2 * i, 64 + 2 * i, 65 + 2 * i))
    for b in (sF, sS, sRD):
        a('s_add_u32 s%d, s%d, 0x%x' % (b, b, LB))
        a('s_addc_u32 s%d, s%d, 0' % (b + 1, b + 1))
    a('s_mov_b32 s%d, 1' % sLAY)


def tag_ready():
    a('s_waitcnt lgkmcnt(0)')
    a('s_add_u32 s%d, s%d, 1' % (sEP, sEP))
    a('s_and_b32 s%d, s%d, 0xff' % (sTAG, sEP))


if DEBUG:
    pass
if DEBUG:
    for i in range(16):
        a('s_mov_b64 s[%d:%d], 0' % (64 + 2 * i, 65 + 2 * i))
lane_fields(l8=5, lg=6)
a('s_cmp_lt_u32 s%d, 5' % sWV)
a.branch('s_cbranch_scc1', 'L_w_nowq')
a('s_mul_i32 s%d, s%d, %d' % (sT0, sJ, 80 * 12288))
a('s_mul_i32 s%d, s%d, 384' % (sT1, sH))
a('s_add_u32 s%d, s%d, s%d' % (sT0, sT0, sT1))
a('s_sub_u32 s%d, s%d, 5' % (sT1, sWV))
a('s_lshl_b32 s%d, s%d, 7' % (sT1, sT1))
a('s_add_u32 s%d, s%d, s%d' % (sT0, sT0, sT1))
a('v_mul_u32_u24 v7, 12288, v6')
a('v_lshl_add_u32 v7, v5, 4, v7')
a('v_add_u32 v7, s%d, v7' % sT0)
for u in range(10):
    a('global_load_dwordx4 %s, v7, %s nt' % (vr(WWQ + 4 * u, 4), sp(sWQ)))
    if u < 9:
        a('v_add_u32 v7, %d, v7' % 98304)
a.label('L_w_nowq')
a('v_and_b32 v7, 3, v0')
a('v_lshlrev_b32 v7, 4, v7')
a('v_cmp_gt_u32 vcc, 4, v5')
a('v_sub_u32 v8, 48, v7')
a('v_cndmask_b32 v%d, 32, v7, vcc' % vS1)
a('v_mov_b32 v9, 32')
a('v_cndmask_b32 v%d, v8, v9, vcc' % vS2)
a('v_lshrrev_b32 v7, 2, v5')
a('v_mul_u32_u24 v7, %d, v7' % HSZ)
a('v_mul_u32_u24 v8, %d, v6' % RS)
a('v_add_u32 v%d, v7, v8' % vIRD)
a('v_bfe_u32 v7, v0, 4, 1')
a('v_lshlrev_b32 v7, 4, v7')
a('v_lshl_add_u32 v7, v5, 5, v7')
a('v_lshrrev_b32 v8, 5, v0')
a('v_lshl_add_u32 v%d, v8, 3, v7' % vPUB)
a('v_mov_b32 v%d, 0' % vCS)
a('v_mov_b32 v%d, 0' % vCS1)
a('v_mov_b32 v%d, 0' % vB1)
a('s_cmp_lg_u32 s%d, 7' % sWV)
a.branch('s_cbranch_scc1', 'L_w_noz')
a('v_mul_u32_u24 v8, %d, v6' % RS)
a('v_lshl_add_u32 v8, v5, 3, v8')
a('v_mov_b32 v9, 0')
a('ds_write_b32 v8, v9 offset:%d' % (IMGQ + 80))
a.label('L_w_noz')

XvT, XvMA, XaD, XaD2, XaI, XaX, Xxp = 5, 6, 8, 9, 10, 11, 22
XD, XE, Xd, Xd2, Xt, Xcol = 12, 16, 24, 25, 27, 23


def x_stage_setup():
    img_masks(XvMA, Xt)
    a('v_and_b32 v%d, 3, v%d' % (Xd, vLANE))
    a('v_lshrrev_b32 v%d, 4, v%d' % (Xd2, vLANE))
    a('v_lshl_add_u32 v%d, v%d, 2, v%d' % (Xd2, Xd, Xd2))
    a('s_lshl_b32 s%d, s%d, 4' % (sT0, sWV))
    a('v_add_u32 v%d, s%d, v%d' % (Xd2, sT0, Xd2))
    img_addr(XaI, Xd2, Xt, IMGQ)
    a('s_mul_i32 s%d, s%d, 80' % (sT1, sJ))
    a('v_add_u32 v%d, s%d, v%d' % (Xcol, sT1, Xd2))


a('s_cmp_ge_u32 s%d, 5' % sWV)
a.branch('s_cbranch_scc1', 'L_w_x0done')
x_stage_setup()
a('v_lshlrev_b32 v%d, 1, v%d' % (XaX, Xcol))
a('global_load_ushort v%d, v%d, %s' % (XD, XaX, sp(sX)))
a('s_waitcnt vmcnt(0)')
a('v_lshl_or_b32 v%d, v%d, 16, v%d' % (XD, XD, XD))
img_write(XD, XvMA, XE, XaI)
a.label('L_w_x0done')
tag_ready()

a.label('L_w_loop')
a('s_waitcnt lgkmcnt(0)')
a('s_barrier')
stamp(0)
a('s_cmp_lt_u32 s%d, 5' % sWV)
a.branch('s_cbranch_scc1', 'L_w_noq')
a('v_mov_b32 v5, s%d' % sTAG)
a('s_lshl_b32 s%d, s%d, 3' % (sT0, sH))
a('s_add_u32 s%d, s%d, s%d' % (sT0, sT0, sJ))
a('s_lshl_b32 s%d, s%d, 10' % (sT0, sT0))
a('s_sub_u32 s%d, s%d, 5' % (sT1, sWV))
a('s_lshl_b32 s%d, s%d, 8' % (sT1, sT1))
a('s_add_u32 s%d, s%d, s%d' % (sT0, sT0, sT1))
a('v_add_u32 v6, s%d, v%d' % (sT0, vPUB))
a('s_waitcnt vmcnt(0)')
gemv(10, WWQ, IMGQ, 32, 8, vIRD)
classadd(8, 12)
pub2(6, 12, True, 5)
a('s_cmp_lg_u32 s%d, 0' % sLAY)
a.branch('s_cbranch_scc1', 'L_w_qdone')
colsum(10, WWQ, 16, 8)
classadd(8, 12)
addtag([12, 13], 5)
a('v_add_u32 v6, 0x%x, v6' % CS)
a('s_mov_b64 exec, %s' % sp(sEXB))
a('global_store_dwordx2 v6, v[12:13], %s sc1' % sp(sWS))
a('s_mov_b64 exec, -1')
a.branch('s_branch', 'L_w_qdone')
a.label('L_w_noq')
a('s_cmp_lg_u32 s%d, 3' % sWV)
a.branch('s_cbranch_scc1', 'L_w_qdone')


def q_stats_addr(ad, t):
    a('s_lshl_b32 s%d, s%d, 3' % (sT0, sH))
    a('s_add_u32 s%d, s%d, s%d' % (sT0, sT0, sJ))
    a('s_lshl_b32 s%d, s%d, 10' % (sT0, sT0))
    a('s_add_u32 s%d, s%d, %d' % (sT0, sT0, QP + 768))
    a('v_lshrrev_b32 v%d, 5, v%d' % (t, vLANE))
    a('v_lshlrev_b32 v%d, 2, v%d' % (t, t))
    a('v_add_u32 v%d, s%d, v%d' % (ad, sT0, t))


stats_wave(IMGQ, 2, q_stats_addr, True)
a.label('L_w_qdone')
stamp(1)
HvT, HaD, HaS, HaC, HaQ = 5, 6, 7, 8, 9
HD, HSt, HC, Hd, Hd2, Ht = 12, 16, 20, 24, 25, 27
a('v_mov_b32 v%d, s%d' % (HvT, sTAG))
lane_fields(l8=Hd, lg=Hd2)
a('s_lshl_b32 s%d, s%d, 13' % (sT0, sH))
a('s_lshl_b32 s%d, s%d, 7' % (sT1, sWV))
a('s_add_u32 s%d, s%d, s%d' % (sT1, sT1, sT0))
a('v_lshlrev_b32 v%d, 10, v%d' % (HaD, Hd2))
a('v_lshl_add_u32 v%d, v%d, 4, v%d' % (HaD, Hd, HaD))
a('v_add_u32 v%d, s%d, v%d' % (HaD, sT1, HaD))
a('v_add_u32 v%d, 0x%x, v%d' % (HaC, CS, HaD))
a('v_lshlrev_b32 v%d, 10, v%d' % (HaS, Hd))
a('s_add_u32 s%d, s%d, %d' % (sT0, sT0, QP + 768))
a('v_add_u32 v%d, s%d, v%d' % (HaS, sT0, HaS))
a('v_lshrrev_b32 v%d, 4, v%d' % (Hd2, vLANE))
a('v_lshl_add_u32 v%d, v%d, 2, v%d' % (Hd2, Hd, Hd2))
a('s_lshl_b32 s%d, s%d, 6' % (sT0, sWV))
a('s_add_u32 s%d, s%d, %d' % (sT0, sT0, QV))
a('v_lshl_add_u32 v%d, v%d, 1, s%d' % (HaQ, Hd2, sT0))


def h5_loads(b):
    a('global_load_dwordx2 %s, v%d, %s sc1' % (vr(HSt, 2), HaS, sp(b)))
    a('global_load_dwordx4 %s, v%d, %s sc1' % (vr(HD, 4), HaD, sp(b)))


def h5_loads0(b):
    h5_loads(b)
    a('global_load_dwordx4 %s, v%d, %s sc1' % (vr(HC, 4), HaC, sp(sWS)))


a('s_cmp_lg_u32 s%d, 0' % sLAY)
a.branch('s_cbranch_scc1', 'L_w_h5k1')
a('s_barrier')
a('s_barrier')
a('s_cmp_ge_u32 s%d, 6' % sWV)
a.branch('s_cbranch_scc1', 'L_w_h5skipA')
h5_loads0(sRD)
a('s_barrier')
poll(h5_loads0, [HSt, HSt + 1] + list(range(HD, HD + 4)) + list(range(HC, HC + 4)), HvT, Hd, Hd2, True, pre_issued=True)
rscatter4(HC)
a('v_mov_b32 v%d, v%d' % (vCS, HC))
a.branch('s_branch', 'L_w_h5c')
a.label('L_w_h5skipA')
a('s_barrier')
a.branch('s_branch', 'L_w_h5done')
a.label('L_w_h5k1')
a('s_cmp_ge_u32 s%d, 6' % sWV)
a.branch('s_cbranch_scc1', 'L_w_h5done')
poll(h5_loads, [HSt, HSt + 1] + list(range(HD, HD + 4)), HvT, Hd, Hd2, True)
a.label('L_w_h5c')
stamp(2)
allred8('v_add_f32', [HSt, HSt + 1])
rscatter4(HD)
ln_from_stats(HSt, HSt + 1, Ht)
a('v_fma_f32 v%d, -v%d, v%d, v%d' % (HD, HSt, vCS, HD))
a('v_mul_f32 v%d, v%d, v%d' % (HD, HD, HSt + 1))
a('v_cvt_pk_bf16_f32 v%d, v%d, v%d' % (HD, HD, HD))
a('ds_write_b16 v%d, v%d' % (HaQ, HD))
a('s_waitcnt lgkmcnt(0)')
a.label('L_w_h5done')
a('s_barrier')
a('s_cmp_lg_u32 s%d, 0' % sLAY)
a.branch('s_cbranch_scc1', 'L_w_roleld_done')
lane_fields(l8=5, lg=6)
a('s_cmp_eq_u32 s%d, 1' % sROLE)
a.branch('s_cbranch_scc1', 'L_w_ld1')
a('s_cmp_eq_u32 s%d, 2' % sROLE)
a.branch('s_cbranch_scc1', 'L_w_ld2')
a('s_cmp_ge_u32 s%d, 4' % sWV)
a.branch('s_cbranch_scc1', 'L_w_roleld_done')
a('s_mul_i32 s%d, s%d, 768' % (sT0, sG))
a('s_mul_i32 s%d, s%d, 384' % (sT1, sRA))
a('s_add_u32 s%d, s%d, s%d' % (sT0, sT0, sT1))
a('s_mul_i32 s%d, s%d, 96' % (sT1, sWV))
a('s_add_u32 s%d, s%d, s%d' % (sT0, sT0, sT1))
a('s_mul_i32 s%d, s%d, 1280' % (sT0, sT0))
a('s_lshl_b32 s%d, s%d, 7' % (sT1, sRB))
a('s_add_u32 s%d, s%d, s%d' % (sT0, sT0, sT1))
a('v_mul_u32_u24 v7, 1280, v6')
a('v_lshl_add_u32 v7, v5, 4, v7')
a('v_add_u32 v7, s%d, v7' % sT0)
for u in range(12):
    a('global_load_dwordx4 %s, v7, %s nt' % (vr(WROLE + 4 * u, 4), sp(sWO)))
    if u < 11:
        a('v_add_u32 v7, %d, v7' % (8 * 1280))
a.branch('s_branch', 'L_w_roleld_done')
a.label('L_w_ld1')
a('s_cmp_ge_u32 s%d, 4' % sWV)
a.branch('s_cbranch_scc1', 'L_w_roleld_done')
a('s_mul_i32 s%d, s%d, 320' % (sT0, sRB))
a('s_mul_i32 s%d, s%d, 80' % (sT1, sWV))
a('s_add_u32 s%d, s%d, s%d' % (sT0, sT0, sT1))
a('s_mul_i32 s%d, s%d, 3072' % (sT0, sT0))
a('s_lshl_b32 s%d, s%d, 7' % (sT1, sRA))
a('s_add_u32 s%d, s%d, s%d' % (sT0, sT0, sT1))
a('v_mul_u32_u24 v7, 3072, v6')
a('v_lshl_add_u32 v7, v5, 4, v7')
a('v_add_u32 v7, s%d, v7' % sT0)
for u in range(10):
    a('global_load_dwordx4 %s, v7, %s nt' % (vr(WROLE + 4 * u, 4), sp(sW1)))
    if u < 9:
        a('v_add_u32 v7, %d, v7' % (8 * 3072))
a.branch('s_branch', 'L_w_roleld_done')
a.label('L_w_ld2')
a('s_cmp_ge_u32 s%d, 5' % sWV)
a.branch('s_cbranch_scc1', 'L_w_roleld_done')
a('s_mul_i32 s%d, s%d, %d' % (sT0, sRA, 64 * 1280))
a('s_mul_i32 s%d, s%d, 640' % (sT1, sRB))
a('s_add_u32 s%d, s%d, s%d' % (sT0, sT0, sT1))
a('s_lshl_b32 s%d, s%d, 7' % (sT1, sWV))
a('s_add_u32 s%d, s%d, s%d' % (sT0, sT0, sT1))
a('v_mul_u32_u24 v7, 1280, v6')
a('v_lshl_add_u32 v7, v5, 4, v7')
a('v_add_u32 v7, s%d, v7' % sT0)
for u in range(8):
    a('global_load_dwordx4 %s, v7, %s nt' % (vr(WROLE + 4 * u, 4), sp(sW2)))
    if u < 7:
        a('v_add_u32 v7, %d, v7' % (8 * 1280))
a.label('L_w_roleld_done')
CvT, CaR, CaP, CM = 5, 6, 7, 80
CP = 96
a('v_mov_b32 v%d, s%d' % (CvT, sTAG))
a('s_lshl_b32 s%d, s%d, 8' % (sT0, sWV))
a('s_add_u32 s%d, s%d, %d' % (sT1, sT0, RED))
a('v_lshl_add_u32 v%d, v%d, 2, s%d' % (CaR, vLANE, sT1))
a('s_lshl_b32 s%d, s%d, 3' % (sT1, sH))
a('s_add_u32 s%d, s%d, s%d' % (sT1, sT1, sJ))
a('s_lshl_b32 s%d, s%d, 10' % (sT2, sT1))
a('s_add_u32 s%d, s%d, s%d' % (sT2, sT2, sT0))
a('s_add_u32 s%d, s%d, 0x%x' % (sT2, sT2, AT))
a('v_lshl_add_u32 v%d, v%d, 2, s%d' % (CaP, vLANE, sT2))
a('s_lshl_b32 s%d, s%d, 4' % (sT1, sT1))
a('s_add_u32 s%d, s%d, 0x%x' % (sT1, sT1, ML))
a('v_mov_b32 v8, s%d' % sT1)
a('v_mov_b32 v9, %d' % MW)
a('s_barrier')
stamp(3)
a('s_cmp_ge_u32 s%d, 4' % sWV)
a.branch('s_cbranch_scc1', 'L_w_combdone')
for i in range(4):
    a('ds_read_b128 %s, v9 offset:%d' % (vr(CM + 4 * i, 4), 16 * i))
for i in range(8):
    a('ds_read2st64_b32 %s, v%d offset0:%d offset1:%d' % (vr(CP + 2 * i, 2), CaR, 6 * i, 6 * i + 3))
a('s_waitcnt lgkmcnt(8)')
a('v_max3_f32 v10, v%d, v%d, v%d' % (CM, CM + 2, CM + 4))
a('v_max3_f32 v11, v%d, v%d, v%d' % (CM + 6, CM + 8, CM + 10))
a('v_max3_f32 v10, v10, v%d, v%d' % (CM + 12, CM + 14))
a('v_max_f32 v10, v10, v11')
for i in range(8):
    a('v_sub_f32 v%d, v%d, v10' % (CM + 2 * i, CM + 2 * i))
for i in range(8):
    a('v_exp_f32 v%d, v%d' % (CM + 2 * i, CM + 2 * i))
a('s_cmp_eq_u32 s%d, 3' % sWV)
a.branch('s_cbranch_scc1', 'L_w_ml')
a('s_waitcnt lgkmcnt(0)')
for i in range(8):
    a('v_add_f32 v%d, v%d, v%d' % (CP + 2 * i, CP + 2 * i, CP + 2 * i + 1))
a('v_mul_f32 v11, v%d, v%d' % (CP, CM))
a('v_mul_f32 v12, v%d, v%d' % (CP + 2, CM + 2))
for i in range(2, 8):
    a('v_fmac_f32 v%d, v%d, v%d' % (11 + i % 2, CP + 2 * i, CM + 2 * i))
a('v_add_f32 v11, v11, v12')
addtag([11], CvT)
a('global_store_dword v%d, v11, %s' % (CaP, sp(sF)))
a('global_store_dword v%d, v11, %s sc1' % (CaP, sp(sS)))
a.branch('s_branch', 'L_w_combdone')
a.label('L_w_ml')
a('v_mul_f32 v13, v%d, v%d' % (CM, CM + 1))
for i in range(1, 8):
    a('v_fmac_f32 v13, v%d, v%d' % (CM + 2 * i, CM + 2 * i + 1))
a('v_mov_b32 v12, v10')
a('v_lshlrev_b32 v14, 8, v10')
a('v_mov_b32 v15, 0')
addtag([12, 13, 14, 15], CvT)
a('s_mov_b64 exec, 1')
a('global_store_dwordx4 v8, v[12:15], %s' % sp(sF))
a('global_store_dwordx4 v8, v[12:15], %s sc1' % sp(sS))
a('s_mov_b64 exec, -1')
a('s_waitcnt lgkmcnt(0)')
a.label('L_w_combdone')
a('s_cmp_eq_u32 s%d, 1' % sROLE)
a.branch('s_cbranch_scc1', 'L_w_r1')
a('s_cmp_eq_u32 s%d, 2' % sROLE)
a.branch('s_cbranch_scc1', 'L_w_r2')
a('s_cmp_lt_u32 s%d, 4' % sWV)
a.branch('s_cbranch_scc1', 'L_w_o_g')
a('s_add_u32 s%d, s%d, 4' % (sU, sWV))
h1_gather()
a('s_barrier')
a('s_barrier')
a.branch('s_branch', 'L_w_roledone')
a.label('L_w_o_g')
a('s_mul_i32 s%d, s%d, 96' % (sT0, sWV))
a('v_add_u32 v6, s%d, v%d' % (sT0, vIRD))
a('v_and_b32 v7, 7, v0')
a('v_lshlrev_b32 v7, 5, v7')
a('v_bfe_u32 v8, v0, 4, 1')
a('v_lshl_add_u32 v7, v8, 4, v7')
a('v_lshrrev_b32 v8, 5, v0')
a('v_lshl_add_u32 v7, v8, 8, v7')
a('s_lshl_b32 s%d, s%d, 9' % (sT0, sWV))
a('s_add_u32 s%d, s%d, %d' % (sT0, sT0, RED2))
a('v_add_u32 v7, s%d, v7' % sT0)
a('v_mov_b32 v5, s%d' % sTAG)
a('v_lshlrev_b32 v12, 2, v0')
a('s_lshl_b32 s%d, s%d, 1' % (sT0, sG))
a('s_add_u32 s%d, s%d, s%d' % (sT0, sT0, sRA))
a('s_mul_i32 s%d, s%d, 2560' % (sT0, sT0))
a('s_lshl_b32 s%d, s%d, 8' % (sT1, sRB))
a('s_add_u32 s%d, s%d, s%d' % (sT0, sT0, sT1))
a('s_add_u32 s%d, s%d, 0x%x' % (sT0, sT0, YY))
a('v_add_u32 v13, s%d, v12' % sT0)
a('v_add_u32 v12, %d, v12' % RED2)
a('s_waitcnt vmcnt(0)')
stamp(4)
a('s_barrier')
stamp(5)
gemv(12, WROLE, IMGR, 80, 8, 6)
a('s_mov_b64 exec, %s' % sp(sEXA))
a('ds_write_b128 v7, v[8:11]')
a('s_mov_b64 exec, -1')
a('s_waitcnt lgkmcnt(0)')
a('s_barrier')
a('s_cmp_lg_u32 s%d, 0' % sWV)
a.branch('s_cbranch_scc1', 'L_w_roledone')
for i in range(4):
    a('ds_read2st64_b32 %s, v12 offset0:%d offset1:%d' % (vr(16 + 2 * i, 2), 2 * i, 2 * i + 1))
a('s_waitcnt lgkmcnt(0)')
a('v_add_f32 v16, v16, v17')
a('v_add_f32 v18, v18, v19')
a('v_add_f32 v20, v20, v21')
a('v_add_f32 v22, v22, v23')
a('v_add_f32 v16, v16, v18')
a('v_add_f32 v20, v20, v22')
a('v_add_f32 v16, v16, v20')
addtag([16], 5)
a('global_store_dword v13, v16, %s sc1' % sp(sS))
stamp(6)
a.branch('s_branch', 'L_w_roledone')
a.label('L_w_r1')
a('s_cmp_lt_u32 s%d, 4' % sWV)
a.branch('s_cbranch_scc1', 'L_w_1_g')
a('s_cmp_eq_u32 s%d, 4' % sWV)
a.branch('s_cbranch_scc1', 'L_w_1_idle')
a('s_cmp_eq_u32 s%d, 7' % sWV)
a.branch('s_cbranch_scc1', 'L_w_1_st')
a('s_add_u32 s%d, s%d, 3' % (sU, sWV))
h2_gather()
a.label('L_w_1_idle')
a('s_barrier')
a.branch('s_branch', 'L_w_roledone')
a.label('L_w_1_st')
a('s_barrier')


def w1_stats_addr(ad, t):
    a('s_lshl_b32 s%d, s%d, 7' % (sT0, sRA))
    a('s_lshl_b32 s%d, s%d, 4' % (sT1, sRB))
    a('s_add_u32 s%d, s%d, s%d' % (sT0, sT0, sT1))
    a('s_add_u32 s%d, s%d, 0x%x' % (sT0, sT0, HS))
    a('v_lshrrev_b32 v%d, 5, v%d' % (t, vLANE))
    a('v_lshlrev_b32 v%d, 2, v%d' % (t, t))
    a('v_add_u32 v%d, s%d, v%d' % (ad, sT0, t))


stats_wave(IMGR, 5, w1_stats_addr, True)
a.branch('s_branch', 'L_w_roledone')
a.label('L_w_1_g')
a('s_mul_i32 s%d, s%d, 80' % (sT0, sWV))
a('v_add_u32 v6, s%d, v%d' % (sT0, vIRD))
a('v_mov_b32 v5, s%d' % sTAG)
a('s_lshl_b32 s%d, s%d, 1' % (sT0, sRA))
a('s_add_u32 s%d, s%d, s%d' % (sT0, sT0, sRB))
a('s_lshl_b32 s%d, s%d, 2' % (sT0, sT0))
a('s_add_u32 s%d, s%d, s%d' % (sT0, sT0, sWV))
a('s_lshl_b32 s%d, s%d, 8' % (sT0, sT0))
a('v_add_u32 v7, s%d, v%d' % (sT0, vPUB))
a('s_waitcnt vmcnt(0)')
a('s_cmp_lg_u32 s%d, 0' % sLAY)
a.branch('s_cbranch_scc1', 'L_w_1_nocs')
colsum(10, WROLE, 16, 8)
classadd(8, 12)
addtag([12, 13], 5)
a('v_add_u32 v14, 0x%x, v7' % CS1)
a('s_mov_b64 exec, %s' % sp(sEXB))
a('global_store_dwordx2 v14, v[12:13], %s sc1' % sp(sWS))
a('s_mov_b64 exec, -1')
a.label('L_w_1_nocs')
a('v_add_u32 v7, 0x%x, v7' % HP)
stamp(4)
a('s_barrier')
stamp(5)
gemv(10, WROLE, IMGR, 80, 8, 6)
classadd(8, 12)
pub2(7, 12, True, 5)
stamp(6)
a.branch('s_branch', 'L_w_roledone')
a.label('L_w_r2')
a('s_cmp_lt_u32 s%d, 5' % sWV)
a.branch('s_cbranch_scc1', 'L_w_2_g')
a('s_cmp_lg_u32 s%d, 5' % sWV)
a.branch('s_cbranch_scc1', 'L_w_2_idle')
GvT, GaD, GaS, GaI, GaI2 = 5, 6, 7, 8, 9
GD, GE, GSt, Gd, Gd2, Gt = 12, 16, 20, 24, 25, 27
a('v_mov_b32 v%d, s%d' % (GvT, sTAG))
lane_fields(l8=Gd, lg=Gd2)
a('s_lshl_b32 s%d, s%d, 11' % (sT0, sRA))
a('v_lshlrev_b32 v%d, 8, v%d' % (GaD, Gd2))
a('v_lshl_add_u32 v%d, v%d, 4, v%d' % (GaD, Gd, GaD))
a('v_add_u32 v%d, s%d, v%d' % (GaD, sT0, GaD))
a('s_lshl_b32 s%d, s%d, 7' % (sT0, sRA))
a('s_add_u32 s%d, s%d, 0x%x' % (sT0, sT0, HS))
a('v_mov_b32 v%d, s%d' % (GaS, sT0))
a('v_lshrrev_b32 v%d, 4, v%d' % (Gd2, vLANE))
a('v_lshl_add_u32 v%d, v%d, 2, v%d' % (Gd2, Gd, Gd2))
a('v_and_b32 v%d, 8, v%d' % (Gt, vLANE))
a('v_lshl_add_u32 v%d, v%d, 2, v%d' % (Gd2, Gt, Gd2))
a('v_and_b32 v%d, 7, v%d' % (Gt, Gd2))
a('v_mul_u32_u24 v%d, %d, v%d' % (GaI, RS, Gt))
a('v_and_b32 v%d, 0xfffffff8, v%d' % (Gt, Gd2))
a('v_add_u32 v%d, v%d, v%d' % (GaI, GaI, Gt))
a('v_and_b32 v%d, 8, v%d' % (Gt, vLANE))
a('v_cmp_eq_u32 s[58:59], 0, v%d' % Gt)


def rs8():
    for b in (GD, GE):
        a('v_permlane32_swap_b32 v%d, v%d' % (b, b + 2))
        a('v_permlane32_swap_b32 v%d, v%d' % (b + 1, b + 3))
    for b in (GD, GE):
        a('v_add_f32 v%d, v%d, v%d' % (b, b, b + 2))
        a('v_add_f32 v%d, v%d, v%d' % (b + 1, b + 1, b + 3))
    for b in (GD, GE):
        a('v_permlane16_swap_b32 v%d, v%d' % (b, b + 1))
    for b in (GD, GE):
        a('v_add_f32 v%d, v%d, v%d' % (b, b, b + 1))
    a('v_cndmask_b32 v%d, v%d, v%d, s[58:59]' % (GD + 1, GE, GD))
    a('v_cndmask_b32 v%d, v%d, v%d, s[58:59]' % (GD + 2, GD, GE))
    a('v_add_f32_dpp v%d, v%d, v%d row_ror:8 row_mask:0xf bank_mask:0xf' % (GD + 1, GD + 2, GD + 1))
    a('v_mov_b32 v%d, v%d' % (GD, GD + 1))


a('s_cmp_lg_u32 s%d, 0' % sLAY)
a.branch('s_cbranch_scc1', 'L_w_2_nocs')
a('s_lshl_b32 s%d, s%d, 7' % (sT0, sRA))
a('v_lshl_add_u32 v%d, v%d, 1, s%d' % (GaI2, Gd2, sT0))
a('global_load_ushort v%d, v%d, %s' % (vB1, GaI2, sp(sB1)))
a('v_add_u32 v%d, 0x%x, v%d' % (GaI2, CS1, GaD))


def cs1_loads(b):
    a('global_load_dwordx4 %s, v%d, %s sc1' % (vr(GD, 4), GaI2, sp(sWS)))
    a('global_load_dwordx4 %s, v%d, %s offset:128 sc1' % (vr(GE, 4), GaI2, sp(sWS)))


poll(cs1_loads, list(range(GD, GD + 8)), GvT, Gd, Gd2, False)
rs8()
a('v_mov_b32 v%d, v%d' % (vCS1, GD))
a('v_lshlrev_b32 v%d, 16, v%d' % (vB1, vB1))
a.label('L_w_2_nocs')
a('v_add_u32 v%d, 0x%x, v%d' % (GaD, HP, GaD))


def h3_loads(b):
    a('global_load_dwordx2 %s, v%d, %s sc1' % (vr(GSt, 2), GaS, sp(b)))
    a('global_load_dwordx2 %s, v%d, %s offset:16 sc1' % (vr(GSt + 2, 2), GaS, sp(b)))
    a('global_load_dwordx4 %s, v%d, %s sc1' % (vr(GD, 4), GaD, sp(b)))
    a('global_load_dwordx4 %s, v%d, %s offset:128 sc1' % (vr(GE, 4), GaD, sp(b)))


poll(h3_loads, list(range(GD, GD + 12)), GvT, Gd, Gd2, True)
stamp(4)
a('v_add_f32 v%d, v%d, v%d' % (GSt, GSt, GSt + 2))
a('v_add_f32 v%d, v%d, v%d' % (GSt + 1, GSt + 1, GSt + 3))
ln_from_stats(GSt, GSt + 1, Gt)
rs8()
a('v_fma_f32 v%d, -v%d, v%d, v%d' % (GD, GSt, vCS1, GD))
a('v_fma_f32 v%d, v%d, v%d, v%d' % (GD, GD, GSt + 1, vB1))
e, n1, d1, n2, d2_ = GE, GE + 1, GE + 2, GE + 3, GSt
a('v_mul_f32 v%d, 0x%08x, v%d' % (e, f2u(math.log2(math.e)), GD))
a('v_exp_f32 v%d, -abs(v%d)' % (e, e))
a('v_cmp_le_f32 vcc, 0, v%d' % GD)
a('v_fma_f32 v%d, v%d, 2.0, 1.0' % (n1, e))
a('v_add_f32 v%d, 2.0, v%d' % (n2, e))
a('v_mul_f32 v%d, v%d, v%d' % (d1, e, e))
a('v_mul_f32 v%d, v%d, v%d' % (n2, n2, e))
a('v_cndmask_b32 v%d, 1.0, v%d, vcc' % (d1, d1))
a('v_cndmask_b32 v%d, v%d, v%d, vcc' % (n1, n2, n1))
a('v_fma_f32 v%d, v%d, 2.0, v%d' % (d1, d1, n1))
a('v_rcp_f32 v%d, v%d' % (d1, d1))
a('v_mul_f32 v%d, v%d, v%d' % (n1, n1, GD))
a('v_mul_f32 v%d, v%d, v%d' % (n1, n1, d1))
a('v_cvt_pk_bf16_f32 v%d, v%d, v%d' % (n1, n1, n1))
a('v_and_b32 v%d, 0xffff, v%d' % (GD, n1))
a('v_mov_b32 v%d, 0' % (GD + 1))
a('v_mov_b32 v%d, 0' % (GD + 2))
a('v_and_b32 v%d, s%d, v%d' % (GD + 3, sHI, n1))
a('ds_write_b64 v%d, %s offset:%d' % (GaI, vr(GD, 2), IMGR))
a('ds_write_b64 v%d, %s offset:%d' % (GaI, vr(GD + 2, 2), IMGR + HSZ))
a('s_waitcnt lgkmcnt(0)')
a.label('L_w_2_idle')
a('s_barrier')
a.branch('s_branch', 'L_w_roledone')
a.label('L_w_2_g')
a('v_mov_b32 v5, s%d' % sTAG)
a('s_mul_i32 s%d, s%d, 2560' % (sT0, sRA))
a('s_mul_i32 s%d, s%d, 1280' % (sT1, sRB))
a('s_add_u32 s%d, s%d, s%d' % (sT0, sT0, sT1))
a('s_lshl_b32 s%d, s%d, 8' % (sT1, sWV))
a('s_add_u32 s%d, s%d, s%d' % (sT0, sT0, sT1))
a('s_add_u32 s%d, s%d, 0x%x' % (sT0, sT0, ZZ))
a('v_add_u32 v7, s%d, v%d' % (sT0, vPUB))
a('s_waitcnt vmcnt(0)')
a('s_barrier')
stamp(5)
gemv(8, WROLE, IMGR, 80, 8, vIRD)
classadd(8, 12)
pub2(7, 12, False, 5)
stamp(6)
a.label('L_w_roledone')
a('s_cmp_eq_u32 s%d, 0' % sLAY)
a.branch('s_cbranch_scc1', 'L_w_h4')
a('s_cmp_lg_u32 s%d, 0' % sH)
a.branch('s_cbranch_scc1', 'L_end')
a('s_cmp_ge_u32 s%d, 5' % sWV)
a.branch('s_cbranch_scc1', 'L_end')
a.label('L_w_h4')
a('s_cmp_ge_u32 s%d, 5' % sWV)
a.branch('s_cbranch_scc1', 'L_w_next')
a('v_mov_b32 v%d, s%d' % (XvT, sTAG))
x_stage_setup()
a('v_lshrrev_b32 v%d, 2, v%d' % (Xt, vLANE))
a('v_mul_u32_u24 v%d, 2560, v%d' % (XaD, Xt))
a('v_lshl_add_u32 v%d, v%d, 4, v%d' % (XaD, Xd, XaD))
a('s_mul_i32 s%d, s%d, 320' % (sT0, sJ))
a('s_lshl_b32 s%d, s%d, 6' % (sT1, sWV))
a('s_add_u32 s%d, s%d, s%d' % (sT0, sT0, sT1))
a('s_add_u32 s%d, s%d, 0x%x' % (sT0, sT0, ZZ))
a('v_add_u32 v%d, s%d, v%d' % (XaD, sT0, XaD))
a('v_add_u32 v%d, %d, v%d' % (XaD2, 16 * 2560, XaD))
a('v_lshlrev_b32 v%d, 2, v%d' % (XaX, Xcol))
a('v_add_u32 v%d, 0x%x, v%d' % (XaX, ZZ + 24 * 2560, XaX))
for k in range(4):
    a('v_mov_b32 v%d, v%d' % (XE + k, XvT))


def h4_loads(b):
    a('global_load_dword v%d, v%d, %s sc1' % (Xxp, XaX, sp(b)))
    a('global_load_dwordx4 %s, v%d, %s sc1' % (vr(XD, 4), XaD, sp(b)))
    a('s_mov_b32 exec_hi, 0')
    a('global_load_dwordx4 %s, v%d, %s sc1' % (vr(XE, 4), XaD2, sp(b)))
    a('s_mov_b32 exec_hi, -1')


poll(h4_loads, list(range(XD, XD + 8)) + [Xxp], XvT, Xd, Xd2, False)
stamp(7)
for k in range(4):
    a('v_add_f32 v%d, v%d, v%d' % (XD + k, XD + k, XE + k))
a('v_and_b32 v%d, s%d, v%d' % (Xxp, sHI, Xxp))
rscatter4(XD, extra_ror4=True)
resid_round(XD, Xxp, XD)
a('s_cmp_lg_u32 s%d, 0' % sLAY)
a.branch('s_cbranch_scc1', 'L_w_final')
img_write(XD, XvMA, XE, XaI)
a('s_cmp_lg_u32 s%d, 0' % sH)
a.branch('s_cbranch_scc1', 'L_w_next')
a('v_and_or_b32 v%d, v%d, s%d, v%d' % (XD, XD, sHI, XvT))
a('v_lshlrev_b32 v%d, 2, v%d' % (XaX, Xcol))
a('v_add_u32 v%d, 0x%x, v%d' % (XaX, X2, XaX))
a('s_mov_b32 exec_lo, 0x000f000f')
a('s_mov_b32 exec_hi, 0x000f000f')
a('global_store_dword v%d, v%d, %s sc1' % (XaX, XD, sp(sWS)))
a('s_mov_b64 exec, -1')
a.label('L_w_next')
next_layer()
a.branch('s_branch', 'L_w_loop')
a.label('L_w_final')
a('v_lshlrev_b32 v%d, 1, v%d' % (XaX, Xcol))
a('s_mov_b32 exec_lo, 0x000f000f')
a('s_mov_b32 exec_hi, 0x000f000f')
a('global_store_short v%d, v%d, %s' % (XaX, XD, sp(sOUT)))
a('s_mov_b64 exec, -1')
a('s_or_b32 s%d, s%d, s%d' % (sT0, sJ, sWV))
a('s_cmp_lg_u32 s%d, 0' % sT0)
a.branch('s_cbranch_scc1', 'L_end')
a('v_mov_b32 v5, 0x%x' % EPOCH)
a('v_mov_b32 v6, s%d' % sEP)
a('s_mov_b64 exec, 1')
a('global_store_dword v5, v6, %s sc1' % sp(sWS))
a('s_mov_b64 exec, -1')
a.branch('s_branch', 'L_end')

a.label('L_kv')
if DEBUG:
    for i in range(16):
        a('s_mov_b64 s[%d:%d], 0' % (64 + 2 * i, 65 + 2 * i))
KB, VB = 32, 80
lane_fields(l8=5, lg=6)
a('s_sub_u32 s%d, s%d, 8' % (sU, sWV))
a('s_mul_i32 s%d, s%d, 3145728' % (sT0, sH))
a('s_lshl_b32 s%d, s%d, 8' % (sT1, sJ))
a('s_lshl_b32 s%d, s%d, 5' % (sT2, sU))
a('s_add_u32 s%d, s%d, s%d' % (sT1, sT1, sT2))
a('s_add_u32 s%d, s%d, 6144' % (sT1, sT1))
a('s_mul_i32 s%d, s%d, 384' % (sT1, sT1))
a('s_add_u32 s%d, s%d, s%d' % (sT0, sT0, sT1))
a('v_mul_u32_u24 v30, 384, v6')
a('v_lshl_add_u32 v30, v5, 4, v30')
a('v_add_u32 v30, s%d, v30' % sT0)
a('v_add_u32 v31, 6144, v30')


def kvload(base, sp_, u, t):
    a('global_load_dwordx4 %s, v%d, %s offset:%d nt' % (vr(base + 12 * u + 4 * t, 4), 30 + u // 2, sp(sp_), (u % 2) * 3072 + 128 * t))


for u in range(4):
    for t in range(3):
        kvload(KB, sK, u, t)
tag_ready()
a('s_barrier')
a('s_barrier')
for u in range(2):
    for t in range(3):
        kvload(VB, sV, u, t)
a('s_barrier')
a('s_barrier')
for u in range(2, 4):
    for t in range(3):
        kvload(VB, sV, u, t)
a.label('L_kv_loop')
Q, S, A0, mm, ll, tt = 8, 20, 24, 5, 6, 7
a('v_and_b32 v%d, 7, v0' % tt)
a('v_lshlrev_b32 v%d, 4, v%d' % (tt, tt))
for u in range(4):
    a('v_mov_b32 v%d, 0' % (S + u))
a('s_barrier')
stamp(0)
for t in range(3):
    a('ds_read_b128 %s, v%d offset:%d' % (vr(Q + 4 * t, 4), tt, QV + 128 * t))
a('s_waitcnt vmcnt(12)')
stamp(1)
for t in range(3):
    a('s_waitcnt lgkmcnt(%d)' % (2 - t))
    for k in range(4):
        for u in range(4):
            a('v_dot2c_f32_bf16 v%d, v%d, v%d' % (S + u, KB + 12 * u + 4 * t + k, Q + 4 * t + k))
allred8('v_add_f32', [S, S + 1, S + 2, S + 3])
cscale = math.log2(math.e) / math.sqrt(192.0)
for u in range(4):
    a('v_mul_f32 v%d, 0x%08x, v%d' % (S + u, f2u(cscale), S + u))
a('v_max3_f32 v%d, v%d, v%d, v%d' % (mm, S, S + 1, S + 2))
a('v_max_f32 v%d, v%d, v%d' % (mm, mm, S + 3))
a('v_max_f32_dpp v%d, v%d, v%d row_ror:8 row_mask:0xf bank_mask:0xf' % (mm, mm, mm))
a('v_mov_b32 v%d, v%d' % (tt, mm))
a('v_permlane16_swap_b32 v%d, v%d' % (mm, tt))
a('v_max_f32 v%d, v%d, v%d' % (mm, mm, tt))
a('v_mov_b32 v%d, v%d' % (tt, mm))
a('v_permlane32_swap_b32 v%d, v%d' % (mm, tt))
a('v_max_f32 v%d, v%d, v%d' % (mm, mm, tt))
for u in range(4):
    a('v_sub_f32 v%d, v%d, v%d' % (S + u, S + u, mm))
for u in range(4):
    a('v_exp_f32 v%d, v%d' % (S + u, S + u))
a('v_add_f32 v%d, v%d, v%d' % (ll, S, S + 1))
a('v_add_f32 v%d, v%d, v%d' % (tt, S + 2, S + 3))
a('v_add_f32 v%d, v%d, v%d' % (ll, ll, tt))
for u in range(4):
    a('v_cvt_pk_bf16_f32 v%d, v%d, v%d' % (S + u, S + u, S + u))
stamp(2)


def buildA(u):
    for k in range(4):
        a('v_and_b32 v%d, v%d, v%d' % (A0 + 4 * (u % 2) + k, S + u, vMK + k))


lred = [
    'v_add_f32_dpp v%d, v%d, v%d row_ror:8 row_mask:0xf bank_mask:0xf' % (ll, ll, ll),
    'v_mov_b32 v%d, v%d' % (tt, ll),
    'v_permlane16_swap_b32 v%d, v%d' % (ll, tt),
    'v_add_f32 v%d, v%d, v%d' % (ll, ll, tt),
    'v_mov_b32 v%d, v%d' % (tt, ll),
    'v_permlane32_swap_b32 v%d, v%d' % (ll, tt),
    'v_add_f32 v%d, v%d, v%d' % (ll, ll, tt),
]
buildA(0)
for u in range(4):
    if u < 3:
        buildA(u + 1)
    a('s_waitcnt vmcnt(%d)' % (9 - 3 * u))
    for t in range(3):
        a('v_mfma_f32_16x16x32_bf16 %s, %s, %s, %s' % (vr(Q + 4 * t, 4), vr(A0 + 4 * (u % 2), 4), vr(VB + 12 * u + 4 * t, 4),
                                                      '0' if u == 0 else vr(Q + 4 * t, 4)))
        if lred:
            a(lred.pop(0))
a('v_and_b32 v%d, 7, v0' % S)
a('v_lshlrev_b32 v%d, 5, v%d' % (S, S))
a('v_bfe_u32 v%d, v0, 4, 1' % (S + 1))
a('v_lshl_add_u32 v%d, v%d, 4, v%d' % (S, S + 1, S))
a('v_lshrrev_b32 v%d, 5, v0' % (S + 1))
a('v_mul_u32_u24 v%d, 768, v%d' % (S + 1, S + 1))
a('s_sub_u32 s%d, s%d, 8' % (sU, sWV))
a('s_mul_i32 s%d, s%d, 1536' % (sT0, sU))
a('s_add_u32 s%d, s%d, %d' % (sT0, sT0, RED))
a('v_add3_u32 v%d, v%d, v%d, s%d' % (S, S, S + 1, sT0))
a('s_lshl_b32 s%d, s%d, 3' % (sT0, sU))
a('s_add_u32 s%d, s%d, %d' % (sT0, sT0, MW))
a('v_mov_b32 v%d, s%d' % (S + 1, sT0))
a('v_mov_b32 v%d, v%d' % (S + 2, mm))
a('v_mov_b32 v%d, v%d' % (S + 3, ll))
a('s_mov_b64 exec, 1')
a('ds_write_b64 v%d, %s' % (S + 1, vr(S + 2, 2)))
a('s_mov_b64 exec, %s' % sp(sEXA))
for t in range(3):
    a('ds_write_b128 v%d, %s offset:%d' % (S, vr(Q + 4 * t, 4), 256 * t))
a('s_mov_b64 exec, -1')
a('s_waitcnt lgkmcnt(0)')
stamp(3)
a('s_barrier')
a('s_cmp_eq_u32 s%d, 1' % sROLE)
a.branch('s_cbranch_scc1', 'L_kv_r1')
a('s_cmp_eq_u32 s%d, 2' % sROLE)
a.branch('s_cbranch_scc1', 'L_kv_r2')
h1_gather()
stamp(5)
a('s_barrier')
a('s_barrier')
a.branch('s_branch', 'L_kv_roledone')
a.label('L_kv_r1')
h2_gather()
stamp(5)
a.label('L_kv_r2')
a('s_barrier')
a.label('L_kv_roledone')
a('s_cmp_lg_u32 s%d, 0' % sLAY)
a.branch('s_cbranch_scc1', 'L_end')
next_layer()
a('s_barrier')
a.branch('s_branch', 'L_kv_loop')

a.label('L_end')
dump_stamps()
a.label('L_exit')
a.raw('    s_endpgm')
a.raw('.section .rodata,"a"')
a.raw('.p2align 6')
a.raw('.amdhsa_kernel %s_kernel' % NAME)
a.raw('  .amdhsa_next_free_vgpr 128')
a.raw('  .amdhsa_next_free_sgpr 102')
a.raw('  .amdhsa_accum_offset 128')
a.raw('  .amdhsa_group_segment_fixed_size 0')
a.raw('  .amdhsa_kernarg_size 96')
a.raw('  .amdhsa_user_sgpr_count 2')
a.raw('  .amdhsa_user_sgpr_kernarg_segment_ptr 1')
a.raw('  .amdhsa_system_sgpr_workgroup_id_x 1')
a.raw('.end_amdhsa_kernel')
open(OUT, 'w').write(a.text())
print('wrote', OUT, len(a.out), 'lines')
```

```python
import sys, math, struct
from asmlib import Asm

NAME = 'interleave_layers__sliding_block_cached__dense_activation_mish__decode'
DEBUG = '--debug' in sys.argv
DBGOUT = '--dbgout' in sys.argv
OPT = dict(x[2:].split('=') for x in sys.argv[1:] if x.startswith('--') and '=' in x)
INF = int(OPT.get('inf', 24))
INFV = int(OPT.get('infv', INF))
VFREE = int(OPT.get('vfree', 24))
NT = {'nt': ' nt', 'plain': '', 'sc1': ' sc1', 'all': ' sc0 sc1 nt'}[OPT.get('pol', 'nt')]
OUT = [a for a in sys.argv[1:] if not a.startswith('--')]
OUT = OUT[0] if OUT else 'cdna_kernels/%s.s' % NAME


def f2u(x):
    return struct.unpack('<I', struct.pack('<f', x))[0]


LB = 0xC0000
SOFF = 0x200000
QP, AT, ML, YY, HP, HS, ZZ = 0x0, 0x40000, 0x80000, 0x84000, 0x90000, 0x9C000, 0xA0000
CS, CS1, X2, EPOCH = SOFF + 0x180000, SOFF + 0x1C0000, SOFF + 0x1D0000, SOFF + 0x1E0000
STAMPS = 0x800000
RS, HSZ = 400, 3200
IMGQ, IMGR = 0, 6400
QV = 12800
MW = 13312
FLG = 13440
RED = 13824
RED2 = RED + 16 * 768
LDS_BYTES = RED2 + 8 * 256
sX, sK, sV, sWQ, sWO, sW1, sB1, sW2, sOUT, sWS = 4, 6, 8, 10, 12, 16, 18, 20, 22, 26
sG, sR_, sH, sJ, sWV, sTAG, sEP, sROLE, sRA, sRB, sCNT, sLAY = 28, 29, 30, 31, 32, 33, 34, 35, 36, 37, 38, 39
sF, sS, sRD = 40, 42, 44
sT0, sT1, sT2, sT3 = 46, 47, 48, 49
sMASK = 50
sEXA, sEXB = 52, 54
sU = 56
sHI = 57
NFAST = 96
LIMIT = 1 << 21


def sp(n):
    return 's[%d:%d]' % (n, n + 1)


def vr(n, k=1):
    return 'v%d' % n if k == 1 else 'v[%d:%d]' % (n, n + k - 1)


a = Asm()
nstamp = [0]


def stamp(i):
    if DEBUG:
        a('s_memrealtime s[%d:%d]' % (64 + 2 * i, 65 + 2 * i))
        a('s_waitcnt lgkmcnt(0)')


vLANE, vMK = 0, 1


def lane_fields(l8=None, lg=None):
    if l8 is not None:
        a('v_and_b32 v%d, 7, v%d' % (l8, vLANE))
    if lg is not None:
        a('v_lshrrev_b32 v%d, 3, v%d' % (lg, vLANE))


def sub_field(dst, tmp):
    a('v_lshrrev_b32 v%d, 4, v%d' % (dst, vLANE))


def tagcheck(words, vT, d, d2, full=()):
    words = list(words)
    if len(words) % 2:
        words.append(words[-1])
    first = True
    pend = []
    for i in range(0, len(words), 2):
        dst = d if first else d2 + (len(pend) % 2)
        a('v_bitop3_b32 v%d, v%d, v%d, v%d bitop3:0x7e' % (dst, words[i], words[i + 1], vT))
        if not first:
            pend.append(dst)
            if len(pend) == 2:
                a('v_or3_b32 v%d, v%d, v%d, v%d' % (d, d, pend[0], pend[1]))
                pend = []
        first = False
    if pend:
        a('v_or_b32 v%d, v%d, v%d' % (d, d, pend[0]))
    a('v_and_b32 v%d, 0xff, v%d' % (d, d))
    full = list(full)
    assert len(full) % 2 == 0
    for i in range(0, len(full), 2):
        a('v_bitop3_b32 v%d, v%d, v%d, s%d bitop3:0x7e' % (d2, full[i], full[i + 1], sEP))
        a('v_or_b32 v%d, v%d, v%d' % (d, d, d2))
    a('v_cmp_ne_u32 vcc, 0, v%d' % d)


def poll(loads, words, vT, d, d2, fast, pre_issued=False, full=()):
    L = a.newlabel('poll')
    W = a.newlabel('pollw')
    D = a.newlabel('polld')
    a('s_mov_b32 s%d, 0' % sCNT)
    if pre_issued:
        a.branch('s_branch', W)
    a.label(L)
    loads(sRD if fast else sS)
    if pre_issued:
        a.label(W)
    a('s_waitcnt vmcnt(0)')
    tagcheck(words, vT, d, d2, full)
    a.branch('s_cbranch_vccz', D)
    a('s_add_u32 s%d, s%d, 1' % (sCNT, sCNT))
    if fast:
        a('s_cmp_ge_u32 s%d, %d' % (sCNT, NFAST))
        a('s_cselect_b64 %s, %s, %s' % (sp(sRD), sp(sS), sp(sRD)))
    a('s_cmp_lt_u32 s%d, %d' % (sCNT, LIMIT))
    a.branch('s_cbranch_scc1', L)
    a.branch('s_branch', 'L_end')
    a.label(D)


def rscatter4(r, extra_ror4=False):
    a('v_permlane32_swap_b32 v%d, v%d' % (r, r + 2))
    a('v_permlane32_swap_b32 v%d, v%d' % (r + 1, r + 3))
    a('v_add_f32 v%d, v%d, v%d' % (r, r, r + 2))
    a('v_add_f32 v%d, v%d, v%d' % (r + 1, r + 1, r + 3))
    a('v_permlane16_swap_b32 v%d, v%d' % (r, r + 1))
    a('v_add_f32 v%d, v%d, v%d' % (r, r, r + 1))
    a('v_add_f32_dpp v%d, v%d, v%d row_ror:8 row_mask:0xf bank_mask:0xf' % (r, r, r))
    if extra_ror4:
        a('v_add_f32_dpp v%d, v%d, v%d row_ror:4 row_mask:0xf bank_mask:0xf' % (r, r, r))


def allred8(op, regs):
    for ctl in ('quad_perm:[1,0,3,2]', 'quad_perm:[2,3,0,1]', 'row_half_mirror'):
        for r in regs:
            a('%s_dpp v%d, v%d, v%d %s row_mask:0xf bank_mask:0xf' % (op, r, r, r, ctl))


def img_masks(vMA, tmp):
    a('v_and_b32 v%d, 8, v%d' % (tmp, vLANE))
    a('v_cmp_eq_u32 vcc, 0, v%d' % tmp)
    a('v_mov_b32 v%d, 0xffff' % tmp)
    a('v_cndmask_b32 v%d, 0, v%d, vcc' % (vMA, tmp))
    a('v_mov_b32 v%d, 0xffff0000' % tmp)
    a('v_cndmask_b32 v%d, v%d, 0, vcc' % (vMA + 1, tmp))


def img_addr(dst, rr, tmp, base):
    a('v_and_b32 v%d, 7, v%d' % (tmp, rr))
    a('v_mul_u32_u24 v%d, %d, v%d' % (dst, RS, tmp))
    a('v_and_b32 v%d, 0xfffffff8, v%d' % (tmp, rr))
    a('v_add_u32 v%d, v%d, v%d' % (dst, dst, tmp))
    a('v_and_b32 v%d, 8, v%d' % (tmp, vLANE))
    a('v_mul_u32_u24 v%d, %d, v%d' % (tmp, HSZ // 8, tmp))
    a('v_add_u32 v%d, v%d, v%d' % (dst, dst, tmp))
    if base:
        a('v_add_u32 v%d, %d, v%d' % (dst, base, dst))


def img_write(pk, vMA, pair, addr):
    a('v_and_b32 v%d, v%d, v%d' % (pair, pk, vMA))
    a('v_and_b32 v%d, v%d, v%d' % (pair + 1, pk, vMA + 1))
    a('ds_write_b64 v%d, %s' % (addr, vr(pair, 2)))


def addtag(regs, vT):
    for r in regs:
        a('v_and_or_b32 v%d, v%d, s%d, v%d' % (r, r, sMASK, vT))


vS1, vS2, vIRD, vCS, vCS1, vB1, vPUB = 120, 121, 122, 123, 124, 125, 126
WROLE, WWQ = 32, 80


def gemv(nU, wbase, imgoff, tmp, acc, rdaddr, ones=None):
    n2 = nU // 2
    for i in range(n2):
        a('ds_read_b128 %s, v%d offset:%d' % (vr(tmp + 4 * i, 4), rdaddr, imgoff + 16 * i))
    A = tmp + 4 * n2

    def build(u):
        if u % 2 == 0:
            a('s_waitcnt lgkmcnt(%d)' % min(15, n2 - 1 - u // 2))
        src = tmp + 2 * u
        d = A + 4 * (u % 2)
        a('v_lshlrev_b64 %s, v%d, %s' % (vr(d, 2), vS1, vr(src, 2)))
        a('v_lshrrev_b64 %s, v%d, %s' % (vr(d + 2, 2), vS2, vr(src, 2)))
    build(0)
    for u in range(nU):
        if u + 1 < nU:
            build(u + 1)
        a('v_mfma_f32_16x16x32_bf16 %s, %s, %s, %s' % (vr(acc, 4), vr(A + 4 * (u % 2), 4), vr(wbase + 4 * u, 4),
                                                      '0' if u == 0 else vr(acc, 4)))


def colsum(nU, wbase, A, acc):
    for k in range(4):
        a('v_and_b32 v%d, 0x3f803f80, v%d' % (A + k, vMK + k))
    for u in range(nU):
        a('v_mfma_f32_16x16x32_bf16 %s, %s, %s, %s' % (vr(acc, 4), vr(A, 4), vr(wbase + 4 * u, 4),
                                                      '0' if u == 0 else vr(acc, 4)))


def classadd(acc, out):
    a('v_permlane32_swap_b32 v%d, v%d' % (acc, acc + 2))
    a('v_permlane32_swap_b32 v%d, v%d' % (acc + 1, acc + 3))
    a('v_add_f32_dpp v%d, v%d, v%d row_ror:8 row_mask:0xf bank_mask:0xf' % (out, acc + 2, acc))
    a('v_add_f32_dpp v%d, v%d, v%d row_ror:8 row_mask:0xf bank_mask:0xf' % (out + 1, acc + 3, acc + 1))


def pub2(addr, data, fast, vT):
    addtag([data, data + 1], vT)
    a('s_mov_b64 exec, %s' % sp(sEXB))
    if fast:
        a('global_store_dwordx2 v%d, %s, %s' % (addr, vr(data, 2), sp(sF)))
    a('global_store_dwordx2 v%d, %s, %s sc1' % (addr, vr(data, 2), sp(sS)))
    a('s_mov_b64 exec, -1')


def stats_wave(imgbase, nrd, addr_fn, fast):
    ad, s1, s2, t, vT = 5, 6, 7, 8, 9
    x = 10
    a('v_and_b32 v%d, 7, v%d' % (t, vLANE))
    a('v_lshrrev_b32 v%d, 3, v%d' % (ad, vLANE))
    a('v_mul_u32_u24 v%d, %d, v%d' % (ad, RS, ad))
    a('v_lshl_add_u32 v%d, v%d, 3, v%d' % (ad, t, ad))
    for i in range(nrd):
        a('ds_read_b32 v%d, v%d offset:%d' % (x + i, ad, imgbase + 64 * i))
    addr_fn(ad, t)
    a('v_mov_b32 v%d, s%d' % (vT, sTAG))
    a('s_waitcnt lgkmcnt(0)')
    for i in range(nrd):
        a('v_lshlrev_b32 v%d, 16, v%d' % (x + i, x + i))
    a('v_mov_b32 v%d, v%d' % (s1, x))
    a('v_mul_f32 v%d, v%d, v%d' % (s2, x, x))
    for i in range(1, nrd):
        a('v_add_f32 v%d, v%d, v%d' % (s1, s1, x + i))
        a('v_fmac_f32 v%d, v%d, v%d' % (s2, x + i, x + i))
    a('v_permlane32_swap_b32 v%d, v%d' % (s1, s2))
    a('v_add_f32 v%d, v%d, v%d' % (s1, s1, s2))
    allred8('v_add_f32', [s1])
    a('v_add_f32_dpp v%d, v%d, v%d row_ror:8 row_mask:0xf bank_mask:0xf' % (s1, s1, s1))
    a('v_mov_b32 v%d, v%d' % (t, s1))
    a('v_permlane16_swap_b32 v%d, v%d' % (s1, t))
    a('v_add_f32 v%d, v%d, v%d' % (s1, s1, t))
    addtag([s1], vT)
    a('v_mov_b32 v%d, s%d' % (s2, sEP))
    a('s_mov_b32 exec_lo, 1')
    a('s_mov_b32 exec_hi, 1')
    if fast:
        a('global_store_dwordx2 v%d, %s, %s' % (ad, vr(s1, 2), sp(sF)))
    a('global_store_dwordx2 v%d, %s, %s sc1' % (ad, vr(s1, 2), sp(sS)))
    a('s_mov_b64 exec, -1')


def ln_from_stats(s1, s2, t):
    a('v_mul_f32 v%d, 0x%08x, v%d' % (s1, f2u(1.0 / 640), s1))
    a('v_mul_f32 v%d, 0x%08x, v%d' % (s2, f2u(1.0 / 640), s2))
    a('v_fma_f32 v%d, -v%d, v%d, v%d' % (s2, s1, s1, s2))
    a('v_max_f32 v%d, 0, v%d' % (s2, s2))
    a('v_add_f32 v%d, 0x%08x, v%d' % (s2, f2u(1e-5), s2))
    a('v_rsq_f32 v%d, v%d' % (s2, s2))


def resid_round(y, xprev, pk):
    a('v_cvt_pk_bf16_f32 v%d, v%d, v%d' % (y, y, y))
    a('v_and_b32 v%d, s%d, v%d' % (y, sHI, y))
    a('v_add_f32 v%d, v%d, v%d' % (y, y, xprev))
    a('v_cvt_pk_bf16_f32 v%d, v%d, v%d' % (pk, y, y))


hdr = open('cdna_kernels/%s.s.ref' % NAME).read().split('; Override launch')[0]
a.raw(hdr.rstrip('\n'))
a.raw('; @launch grid=(256,1,1) block=(1024,1,1) lds=%d' % LDS_BYTES)
a.raw('.amdgcn_target "amdgcn-amd-amdhsa--gfx950"')
a.raw('.text')
a.raw('.globl %s_kernel' % NAME)
a.raw('.p2align 8')
a.raw('.type %s_kernel,@function' % NAME)
a.raw('%s_kernel:' % NAME)

a('s_cmp_ge_u32 s2, 256')
a.branch('s_cbranch_scc1', 'L_exit')
a('s_load_dwordx16 s[4:19], s[0:1], 0')
a('s_load_dwordx8 s[20:27], s[0:1], 64')
if DEBUG:
    a('s_memrealtime s[96:97]')
a('v_lshrrev_b32 v5, 6, v0')
a('v_and_b32 v0, 63, v0')
a('v_readfirstlane_b32 s%d, v5' % sWV)
a('s_and_b32 s%d, s2, 7' % sG)
a('s_lshr_b32 s%d, s2, 3' % sR_)
a('s_lshr_b32 s%d, s%d, 3' % (sT0, sR_))
a('s_lshl_b32 s%d, s%d, 2' % (sH, sG))
a('s_add_u32 s%d, s%d, s%d' % (sH, sH, sT0))
a('s_and_b32 s%d, s%d, 7' % (sJ, sR_))


def rest_setup():
    Lrd = a.newlabel('roledone')
    a('s_mov_b32 s%d, 0xffffff00' % sMASK)
    a('s_mov_b32 s%d, 0xffff0000' % sHI)
    a('s_mov_b32 s%d, 0x00ff00ff' % sEXA)
    a('s_mov_b32 s%d, 0xff00ff00' % (sEXA + 1))
    a('s_mov_b32 s%d, 0x00ff00ff' % sEXB)
    a('s_mov_b32 s%d, 0x00ff00ff' % (sEXB + 1))
    a('s_mov_b32 s%d, 0' % sLAY)
    a('s_cmp_ge_u32 s%d, 10' % sR_)
    a('s_cselect_b32 s%d, 1, 0' % sRA)
    a('s_mul_i32 s%d, s%d, 10' % (sT0, sRA))
    a('s_sub_u32 s%d, s%d, s%d' % (sRB, sR_, sT0))
    a('s_mov_b32 s%d, 0' % sROLE)
    a('s_cmp_lt_u32 s%d, 20' % sR_)
    a.branch('s_cbranch_scc1', Lrd)
    a('s_cmp_ge_u32 s%d, 26' % sR_)
    a('s_cselect_b32 s%d, 2, 1' % sROLE)
    a('s_cselect_b32 s%d, 26, 20' % sT0)
    a('s_sub_u32 s%d, s%d, s%d' % (sT0, sR_, sT0))
    a('s_and_b32 s%d, s%d, 1' % (sRB, sT0))
    a('s_lshr_b32 s%d, s%d, 1' % (sT0, sT0))
    a('s_mul_i32 s%d, s%d, 3' % (sRA, sG))
    a('s_add_u32 s%d, s%d, s%d' % (sRA, sRA, sT0))
    a.label(Lrd)
    a('v_and_b32 v5, 1, v0')
    a('v_cmp_eq_u32 vcc, 0, v5')
    a('v_mov_b32 v6, 0xffff')
    a('v_mov_b32 v7, 0xffff0000')
    a('v_cndmask_b32 v6, v7, v6, vcc')
    a('v_bfe_u32 v5, v0, 1, 2')
    for k in range(4):
        a('v_cmp_eq_u32 vcc, %d, v5' % k)
        a('v_cndmask_b32 v%d, 0, v6, vcc' % (vMK + k))
    a('s_add_u32 s%d, s%d, 0x%x' % (sT0, sWS, EPOCH))
    a('s_addc_u32 s%d, s%d, 0' % (sT1, sWS + 1))
    a('s_load_dword s%d, %s, 0' % (sEP, sp(sT0)))
    a('s_mov_b64 %s, %s' % (sp(sF), sp(sWS)))
    a('s_mov_b64 %s, %s' % (sp(sRD), sp(sWS)))
    a('s_add_u32 s%d, s%d, 0x%x' % (sS, sWS, SOFF))
    a('s_addc_u32 s%d, s%d, 0' % (sS + 1, sWS + 1))


a('s_cmp_ge_u32 s%d, 8' % sWV)
a.branch('s_cbranch_scc1', 'L_kv')


def h1_gather():
    vT, vMA, aD, aA, aC, aI = 5, 6, 8, 9, 10, 11
    D, A_, C_, d, d2, t = 12, 16, 20, 24, 25, 27
    a('s_cmp_ge_u32 s%d, 6' % sU)
    a('s_cselect_b32 s%d, 1, 0' % sT0)
    a('s_mul_i32 s%d, s%d, 6' % (sT1, sT0))
    a('s_sub_u32 s%d, s%d, s%d' % (sT1, sU, sT1))
    a('s_lshl_b32 s%d, s%d, 2' % (sT2, sG))
    a('s_lshl_b32 s%d, s%d, 1' % (sT3, sRA))
    a('s_add_u32 s%d, s%d, s%d' % (sT2, sT2, sT3))
    a('s_add_u32 s%d, s%d, s%d' % (sT2, sT2, sT0))
    a('v_mov_b32 v%d, s%d' % (vT, sTAG))
    img_masks(vMA, t)
    lane_fields(l8=d, lg=d2)
    a('s_lshl_b32 s%d, s%d, 13' % (sT3, sT2))
    a('s_lshl_b32 s%d, s%d, 7' % (sCNT, sT1))
    a('s_add_u32 s%d, s%d, s%d' % (sT3, sT3, sCNT))
    a('s_add_u32 s%d, s%d, 0x%x' % (sT3, sT3, AT))
    a('v_lshlrev_b32 v%d, 10, v%d' % (aD, d2))
    a('v_lshl_add_u32 v%d, v%d, 4, v%d' % (aD, d, aD))
    a('v_add_u32 v%d, s%d, v%d' % (aD, sT3, aD))
    a('s_lshl_b32 s%d, s%d, 7' % (sT3, sT2))
    a('s_add_u32 s%d, s%d, 0x%x' % (sT3, sT3, ML))
    a('v_lshlrev_b32 v%d, 4, v%d' % (aA, d))
    a('v_add_u32 v%d, s%d, v%d' % (aA, sT3, aA))
    a('v_lshlrev_b32 v%d, 4, v%d' % (aC, d2))
    a('v_add_u32 v%d, s%d, v%d' % (aC, sT3, aC))
    a('s_mul_i32 s%d, s%d, 192' % (sT3, sT0))
    a('s_lshl_b32 s%d, s%d, 5' % (sCNT, sT1))
    a('s_add_u32 s%d, s%d, s%d' % (sT3, sT3, sCNT))
    a('v_lshrrev_b32 v%d, 4, v%d' % (d2, vLANE))
    a('v_lshl_add_u32 v%d, v%d, 2, v%d' % (d2, d, d2))
    a('v_add_u32 v%d, s%d, v%d' % (d2, sT3, d2))
    img_addr(aI, d2, t, IMGR)

    def loads(b):
        a('global_load_dwordx4 %s, v%d, %s sc1' % (vr(A_, 4), aA, sp(b)))
        a('global_load_dwordx4 %s, v%d, %s sc1' % (vr(C_, 4), aC, sp(b)))
        a('global_load_dwordx4 %s, v%d, %s sc1' % (vr(D, 4), aD, sp(b)))
    poll(loads, [A_, A_ + 1, A_ + 2, C_, C_ + 2, D, D + 1, D + 2, D + 3], vT, d, d2, True, full=[A_ + 3, C_ + 3])
    stamp(4)
    for X in (A_, C_):
        a('v_bfe_u32 v%d, v%d, 8, 8' % (X + 2, X + 2))
        a('v_and_or_b32 v%d, v%d, s%d, v%d' % (X, X, sMASK, X + 2))
    a('v_mov_b32 v%d, v%d' % (t, A_))
    allred8('v_max_f32', [t])
    a('v_sub_f32 v%d, v%d, v%d' % (A_, A_, t))
    a('v_sub_f32 v%d, v%d, v%d' % (C_, C_, t))
    a('v_exp_f32 v%d, v%d' % (A_, A_))
    a('v_exp_f32 v%d, v%d' % (C_, C_))
    a('v_mul_f32 v%d, v%d, v%d' % (A_, A_, A_ + 1))
    for k in range(4):
        a('v_mul_f32 v%d, v%d, v%d' % (D + k, D + k, C_))
    allred8('v_add_f32', [A_])
    a('v_rcp_f32 v%d, v%d' % (A_, A_))
    rscatter4(D)
    a('v_mul_f32 v%d, v%d, v%d' % (D, D, A_))
    a('v_cvt_pk_bf16_f32 v%d, v%d, v%d' % (D, D, D))
    img_write(D, vMA, C_, aI)
    a('s_waitcnt lgkmcnt(0)')


def h2_gather():
    vT, vMA, aD, aD2, aI, aX, xp = 5, 6, 8, 9, 10, 11, 22
    D, E, d, d2, t = 12, 16, 24, 25, 27
    a('v_mov_b32 v%d, s%d' % (vT, sTAG))
    img_masks(vMA, t)
    lane_fields(l8=d, lg=d2)
    a('s_mul_i32 s%d, s%d, 1280' % (sT0, sRB))
    a('s_lshl_b32 s%d, s%d, 7' % (sT1, sU))
    a('s_add_u32 s%d, s%d, s%d' % (sT0, sT0, sT1))
    a('s_add_u32 s%d, s%d, 0x%x' % (sT2, sT0, YY))
    a('v_mul_u32_u24 v%d, 2560, v%d' % (aD, d2))
    a('v_lshl_add_u32 v%d, v%d, 4, v%d' % (aD, d, aD))
    a('v_add_u32 v%d, s%d, v%d' % (aD, sT2, aD))
    a('v_add_u32 v%d, %d, v%d' % (aD2, 8 * 2560, aD))
    a('v_lshrrev_b32 v%d, 4, v%d' % (d2, vLANE))
    a('v_lshl_add_u32 v%d, v%d, 2, v%d' % (d2, d, d2))
    a('s_lshl_b32 s%d, s%d, 5' % (sT1, sU))
    a('v_add_u32 v%d, s%d, v%d' % (d2, sT1, d2))
    img_addr(aI, d2, t, IMGR)
    a('s_mul_i32 s%d, s%d, 320' % (sT1, sRB))
    a('v_add_u32 v%d, s%d, v%d' % (d2, sT1, d2))
    Lk1 = a.newlabel('h2k1')
    Lj = a.newlabel('h2j')
    a('s_cmp_lg_u32 s%d, 0' % sLAY)
    a.branch('s_cbranch_scc1', Lk1)
    a('v_lshlrev_b32 v%d, 1, v%d' % (aX, d2))
    a('global_load_ushort v%d, v%d, %s' % (xp, aX, sp(sX)))
    a('s_waitcnt vmcnt(0)')
    a('v_lshlrev_b32 v%d, 16, v%d' % (xp, xp))
    a.branch('s_branch', Lj)
    a.label(Lk1)
    a('v_lshlrev_b32 v%d, 2, v%d' % (aX, d2))
    a('v_add_u32 v%d, 0x%x, v%d' % (aX, X2, aX))
    poll(lambda b: a('global_load_dword v%d, v%d, %s sc1' % (xp, aX, sp(sWS))), [xp], vT, d, t, False)
    a('v_and_b32 v%d, s%d, v%d' % (xp, sHI, xp))
    a.label(Lj)
    a('v_lshlrev_b32 v%d, 2, v%d' % (aX, d2))
    a('v_add_u32 v%d, 0x%x, v%d' % (aX, ZZ + 24 * 2560, aX))

    def loads(b):
        a('global_load_dwordx4 %s, v%d, %s sc1' % (vr(D, 4), aD, sp(b)))
        a('global_load_dwordx4 %s, v%d, %s sc1' % (vr(E, 4), aD2, sp(b)))
    poll(loads, list(range(D, D + 8)), vT, d, d2, False)
    stamp(4)
    for k in range(4):
        a('v_add_f32 v%d, v%d, v%d' % (D + k, D + k, E + k))
    rscatter4(D)
    resid_round(D, xp, D)
    img_write(D, vMA, E, aI)
    Ls = a.newlabel('h2s')
    a('s_cmp_lg_u32 s%d, 0' % sRA)
    a.branch('s_cbranch_scc1', Ls)
    a('v_and_or_b32 v%d, v%d, s%d, v%d' % (D, D, sHI, vT))
    a('s_mov_b64 exec, %s' % sp(sEXB))
    a('global_store_dword v%d, v%d, %s sc1' % (aX, D, sp(sS)))
    a('s_mov_b64 exec, -1')
    a.label(Ls)
    a('s_waitcnt lgkmcnt(0)')


def dump_stamps():
    if not DEBUG:
        return
    a('s_memrealtime s[98:99]')
    a('s_lshl_b32 s%d, s2, 4' % sT0)
    a('s_add_u32 s%d, s%d, s%d' % (sT0, sT0, sWV))
    a('s_lshl_b32 s%d, s%d, 8' % (sT0, sT0))
    a('s_add_u32 s%d, s%d, 0x%x' % (sT0, sT0, STAMPS))
    a('v_mov_b32 v5, s%d' % sT0)
    a('s_waitcnt lgkmcnt(0)')
    a('s_mov_b64 exec, 1')
    for i in range(18):
        a('v_mov_b32 v6, s%d' % (64 + 2 * i))
        a('v_mov_b32 v7, s%d' % (65 + 2 * i))
        a('global_store_dwordx2 v5, v[6:7], %s offset:%d' % (sp(sWS), 8 * i))
    if DBGOUT:
        a('v_mov_b32 v5, 0')
        a('s_not_b32 s%d, s96' % sT0)
        sel = [(0, sT0), (1, 98), (2, 96)]
        Lk = a.newlabel('dbgk')
        for (i, sr) in sel:
            a('v_mov_b32 v6, s%d' % sr)
            a('global_atomic_umax v5, v6, s[24:25] offset:%d' % (4 * i))
        a('s_cmp_lg_u32 s%d, 0' % sWV)
        a.branch('s_cbranch_scc1', Lk)
        for (i, st) in enumerate([8 + 0, 8 + 2, 8 + 3, 8 + 5, 8 + 6, 8 + 7, 0, 2, 3, 5, 6, 7]):
            a('v_mov_b32 v6, s%d' % (64 + 2 * st))
            a('global_atomic_umax v5, v6, s[24:25] offset:%d' % (4 * (3 + i)))
        a.label(Lk)
    a('s_mov_b64 exec, -1')


def next_layer():
    if DEBUG:
        for i in range(8):
            a('s_mov_b64 s[%d:%d], s[%d:%d]' % (80 + 2 * i, 81 + 2 * i, 64 + 2 * i, 65 + 2 * i))
    for b in (sF, sS, sRD):
        a('s_add_u32 s%d, s%d, 0x%x' % (b, b, LB))
        a('s_addc_u32 s%d, s%d, 0' % (b + 1, b + 1))
    a('s_mov_b32 s%d, 1' % sLAY)


def tag_ready():
    a('s_waitcnt lgkmcnt(0)')
    a('s_add_u32 s%d, s%d, 1' % (sEP, sEP))
    a('s_and_b32 s%d, s%d, 0xff' % (sTAG, sEP))


if DEBUG:
    pass
if DEBUG:
    for i in range(16):
        a('s_mov_b64 s[%d:%d], 0' % (64 + 2 * i, 65 + 2 * i))
a('s_setprio 3')
lane_fields(l8=5, lg=6)
a('s_mul_i32 s%d, s%d, 160' % (sT1, sJ))
a('v_min_u32 v8, 39, v0')
a('v_lshl_add_u32 v8, v8, 2, s%d' % sT1)
a('s_mul_i32 s%d, s%d, %d' % (sT0, sJ, 80 * 12288))
a('s_mul_i32 s%d, s%d, 384' % (sT1, sH))
a('s_add_u32 s%d, s%d, s%d' % (sT0, sT0, sT1))
a('s_sub_u32 s%d, s%d, 5' % (sT1, sWV))
a('s_lshl_b32 s%d, s%d, 7' % (sT1, sT1))
a('s_add_u32 s%d, s%d, s%d' % (sT0, sT0, sT1))
a('v_mul_u32_u24 v7, 12288, v6')
a('v_lshl_add_u32 v7, v5, 4, v7')
a('v_add_u32 v7, s%d, v7' % sT0)
a('s_waitcnt lgkmcnt(0)')
a('global_load_dword v12, v8, %s' % sp(sX))
a('s_cmp_lt_u32 s%d, 5' % sWV)
a.branch('s_cbranch_scc1', 'L_w_issued')
for u in range(10):
    a('global_load_dwordx4 %s, v7, %s' % (vr(WWQ + 4 * u, 4), sp(sWQ)) + NT)
    if u < 9:
        a('v_add_u32 v7, %d, v7' % 98304)
a.label('L_w_issued')
a('v_mov_b32 v9, %d' % FLG)
a('v_mov_b32 v10, 0')
a('ds_write_b32 v9, v10')
a('s_waitcnt lgkmcnt(0)')
a('s_barrier')
rest_setup()
lane_fields(l8=5, lg=6)
a('v_and_b32 v7, 3, v0')
a('v_lshlrev_b32 v7, 4, v7')
a('v_cmp_gt_u32 vcc, 4, v5')
a('v_sub_u32 v8, 48, v7')
a('v_cndmask_b32 v%d, 32, v7, vcc' % vS1)
a('v_mov_b32 v9, 32')
a('v_cndmask_b32 v%d, v8, v9, vcc' % vS2)
a('v_lshrrev_b32 v7, 2, v5')
a('v_mul_u32_u24 v7, %d, v7' % HSZ)
a('v_mul_u32_u24 v8, %d, v6' % RS)
a('v_add_u32 v%d, v7, v8' % vIRD)
a('v_bfe_u32 v7, v0, 4, 1')
a('v_lshlrev_b32 v7, 4, v7')
a('v_lshl_add_u32 v7, v5, 5, v7')
a('v_lshrrev_b32 v8, 5, v0')
a('v_lshl_add_u32 v%d, v8, 3, v7' % vPUB)
a('v_mov_b32 v%d, 0' % vCS)
a('v_mov_b32 v%d, 0' % vCS1)
a('v_mov_b32 v%d, 0' % vB1)
a('v_mul_u32_u24 v8, %d, v6' % RS)
a('v_lshl_add_u32 v8, v5, 3, v8')
a('v_mov_b32 v9, 0')
a('ds_write_b32 v8, v9 offset:%d' % (IMGQ + 80))
a('v_min_u32 v8, 39, v0')
a('v_and_b32 v9, 3, v8')
a('v_mul_u32_u24 v9, %d, v9' % (2 * RS))
a('v_lshrrev_b32 v8, 2, v8')
a('v_lshl_add_u32 v8, v8, 3, v9')
a('v_mov_b32 v15, 0')
a('v_mov_b32 v17, 0')
a('v_mov_b32 v18, 0')
a('v_mov_b32 v20, 0')
a('s_waitcnt vmcnt(10)')
a('s_cmp_ge_u32 s%d, 5' % sWV)
a.branch('s_cbranch_scc1', 'L_w_x0ok')
a('s_waitcnt vmcnt(0)')
a.label('L_w_x0ok')
a('v_and_b32 v14, 0xffff, v12')
a('v_lshrrev_b32 v16, 16, v12')
a('v_lshlrev_b32 v19, 16, v12')
a('v_and_b32 v21, s%d, v12' % sHI)
a('ds_write_b64 v8, v[14:15] offset:%d' % (IMGQ))
a('ds_write_b64 v8, v[16:17] offset:%d' % (IMGQ + RS))
a('ds_write_b64 v8, v[18:19] offset:%d' % (IMGQ + HSZ))
a('ds_write_b64 v8, v[20:21] offset:%d' % (IMGQ + HSZ + RS))

XvT, XvMA, XaD, XaD2, XaI, XaX, Xxp = 5, 6, 8, 9, 10, 11, 22
XD, XE, Xd, Xd2, Xt, Xcol = 12, 16, 24, 25, 27, 23


def x_stage_setup():
    img_masks(XvMA, Xt)
    a('v_and_b32 v%d, 3, v%d' % (Xd, vLANE))
    a('v_lshrrev_b32 v%d, 4, v%d' % (Xd2, vLANE))
    a('v_lshl_add_u32 v%d, v%d, 2, v%d' % (Xd2, Xd, Xd2))
    a('s_lshl_b32 s%d, s%d, 4' % (sT0, sWV))
    a('v_add_u32 v%d, s%d, v%d' % (Xd2, sT0, Xd2))
    img_addr(XaI, Xd2, Xt, IMGQ)
    a('s_mul_i32 s%d, s%d, 80' % (sT1, sJ))
    a('v_add_u32 v%d, s%d, v%d' % (Xcol, sT1, Xd2))


tag_ready()
a.branch('s_branch', 'L_w_loop0')

a.label('L_w_loop')
a('s_waitcnt lgkmcnt(0)')
a('s_barrier')
a.label('L_w_loop0')
stamp(0)
a('s_cmp_lt_u32 s%d, 5' % sWV)
a.branch('s_cbranch_scc1', 'L_w_noq')
a('v_mov_b32 v5, s%d' % sTAG)
a('s_lshl_b32 s%d, s%d, 3' % (sT0, sH))
a('s_add_u32 s%d, s%d, s%d' % (sT0, sT0, sJ))
a('s_lshl_b32 s%d, s%d, 10' % (sT0, sT0))
a('s_sub_u32 s%d, s%d, 5' % (sT1, sWV))
a('s_lshl_b32 s%d, s%d, 8' % (sT1, sT1))
a('s_add_u32 s%d, s%d, s%d' % (sT0, sT0, sT1))
a('v_add_u32 v6, s%d, v%d' % (sT0, vPUB))
a('s_waitcnt vmcnt(0)')
gemv(10, WWQ, IMGQ, 32, 8, vIRD)
classadd(8, 12)
pub2(6, 12, True, 5)
a('s_cmp_lg_u32 s%d, 0' % sLAY)
a.branch('s_cbranch_scc1', 'L_w_qdone')
colsum(10, WWQ, 16, 8)
classadd(8, 12)
addtag([12, 13], 5)
a('v_add_u32 v6, 0x%x, v6' % CS)
a('s_mov_b64 exec, %s' % sp(sEXB))
a('global_store_dwordx2 v6, v[12:13], %s sc1' % sp(sWS))
a('s_mov_b64 exec, -1')
a.branch('s_branch', 'L_w_qsig')
a.label('L_w_noq')
a('s_cmp_lg_u32 s%d, 3' % sWV)
a.branch('s_cbranch_scc1', 'L_w_qdone')


def q_stats_addr(ad, t):
    a('s_lshl_b32 s%d, s%d, 3' % (sT0, sH))
    a('s_add_u32 s%d, s%d, s%d' % (sT0, sT0, sJ))
    a('s_lshl_b32 s%d, s%d, 10' % (sT0, sT0))
    a('s_add_u32 s%d, s%d, %d' % (sT0, sT0, QP + 768))
    a('v_lshrrev_b32 v%d, 5, v%d' % (t, vLANE))
    a('v_lshlrev_b32 v%d, 3, v%d' % (t, t))
    a('v_add_u32 v%d, s%d, v%d' % (ad, sT0, t))


stats_wave(IMGQ, 2, q_stats_addr, True)
a('s_cmp_lg_u32 s%d, 0' % sLAY)
a.branch('s_cbranch_scc1', 'L_w_qdone')
a.label('L_w_qsig')
a('v_mov_b32 v9, %d' % FLG)
a('v_mov_b32 v10, 1')
a('s_waitcnt vmcnt(0)')
a('s_mov_b64 exec, 1')
a('ds_add_u32 v9, v10')
a('s_mov_b64 exec, -1')
a.label('L_w_qdone')
stamp(1)
HvT, HaD, HaS, HaC, HaQ = 5, 6, 7, 8, 9
HD, HSt, HC, Hd, Hd2, Ht = 12, 16, 20, 24, 25, 27
a('v_mov_b32 v%d, s%d' % (HvT, sTAG))
lane_fields(l8=Hd, lg=Hd2)
a('s_lshl_b32 s%d, s%d, 13' % (sT0, sH))
a('s_lshl_b32 s%d, s%d, 7' % (sT1, sWV))
a('s_add_u32 s%d, s%d, s%d' % (sT1, sT1, sT0))
a('v_lshlrev_b32 v%d, 10, v%d' % (HaD, Hd2))
a('v_lshl_add_u32 v%d, v%d, 4, v%d' % (HaD, Hd, HaD))
a('v_add_u32 v%d, s%d, v%d' % (HaD, sT1, HaD))
a('v_add_u32 v%d, 0x%x, v%d' % (HaC, CS, HaD))
a('v_lshlrev_b32 v%d, 10, v%d' % (HaS, Hd))
a('s_add_u32 s%d, s%d, %d' % (sT0, sT0, QP + 768))
a('v_add_u32 v%d, s%d, v%d' % (HaS, sT0, HaS))
a('v_lshrrev_b32 v%d, 4, v%d' % (Hd2, vLANE))
a('v_lshl_add_u32 v%d, v%d, 2, v%d' % (Hd2, Hd, Hd2))
a('s_lshl_b32 s%d, s%d, 6' % (sT0, sWV))
a('s_add_u32 s%d, s%d, %d' % (sT0, sT0, QV))
a('v_lshl_add_u32 v%d, v%d, 1, s%d' % (HaQ, Hd2, sT0))


def h5_loads(b):
    a('global_load_dwordx4 %s, v%d, %s sc1' % (vr(HSt, 4), HaS, sp(b)))
    a('global_load_dwordx4 %s, v%d, %s sc1' % (vr(HD, 4), HaD, sp(b)))


def h5_loads0(b):
    h5_loads(b)
    a('global_load_dwordx4 %s, v%d, %s sc1' % (vr(HC, 4), HaC, sp(sWS)))


a('s_cmp_ge_u32 s%d, 6' % sWV)
a.branch('s_cbranch_scc1', 'L_w_h5done')
a('s_cmp_lg_u32 s%d, 0' % sLAY)
a.branch('s_cbranch_scc1', 'L_w_h5k1')
a('v_mov_b32 v10, %d' % FLG)
a.label('L_w_fspin')
a('s_sleep 2')
a('ds_read_b32 v11, v10')
a('s_waitcnt lgkmcnt(0)')
a('v_cmp_ne_u32 vcc, 4, v11')
a.branch('s_cbranch_vccnz', 'L_w_fspin')
poll(h5_loads0, [HSt, HSt + 2] + list(range(HD, HD + 4)) + list(range(HC, HC + 4)), HvT, Hd, Hd2, True, full=[HSt + 1, HSt + 3])
rscatter4(HC)
a('v_mov_b32 v%d, v%d' % (vCS, HC))
a.branch('s_branch', 'L_w_h5c')
a.label('L_w_h5k1')
poll(h5_loads, [HSt, HSt + 2] + list(range(HD, HD + 4)), HvT, Hd, Hd2, True, full=[HSt + 1, HSt + 3])
a.label('L_w_h5c')
stamp(2)
allred8('v_add_f32', [HSt, HSt + 2])
rscatter4(HD)
ln_from_stats(HSt, HSt + 2, Ht)
a('v_fma_f32 v%d, -v%d, v%d, v%d' % (HD, HSt, vCS, HD))
a('v_mul_f32 v%d, v%d, v%d' % (HD, HD, HSt + 2))
a('v_cvt_pk_bf16_f32 v%d, v%d, v%d' % (HD, HD, HD))
a('ds_write_b16 v%d, v%d' % (HaQ, HD))
a('s_waitcnt lgkmcnt(0)')
a.label('L_w_h5done')
a('s_barrier')
a('s_cmp_lg_u32 s%d, 0' % sLAY)
a.branch('s_cbranch_scc1', 'L_w_roleld_done')
lane_fields(l8=5, lg=6)
a('s_cmp_eq_u32 s%d, 1' % sROLE)
a.branch('s_cbranch_scc1', 'L_w_ld1')
a('s_cmp_eq_u32 s%d, 2' % sROLE)
a.branch('s_cbranch_scc1', 'L_w_ld2')
a('s_cmp_ge_u32 s%d, 4' % sWV)
a.branch('s_cbranch_scc1', 'L_w_roleld_done')
a('s_mul_i32 s%d, s%d, 768' % (sT0, sG))
a('s_mul_i32 s%d, s%d, 384' % (sT1, sRA))
a('s_add_u32 s%d, s%d, s%d' % (sT0, sT0, sT1))
a('s_mul_i32 s%d, s%d, 96' % (sT1, sWV))
a('s_add_u32 s%d, s%d, s%d' % (sT0, sT0, sT1))
a('s_mul_i32 s%d, s%d, 1280' % (sT0, sT0))
a('s_lshl_b32 s%d, s%d, 7' % (sT1, sRB))
a('s_add_u32 s%d, s%d, s%d' % (sT0, sT0, sT1))
a('v_mul_u32_u24 v7, 1280, v6')
a('v_lshl_add_u32 v7, v5, 4, v7')
a('v_add_u32 v7, s%d, v7' % sT0)
for u in range(12):
    a('global_load_dwordx4 %s, v7, %s' % (vr(WROLE + 4 * u, 4), sp(sWO)) + NT)
    if u < 11:
        a('v_add_u32 v7, %d, v7' % (8 * 1280))
a.branch('s_branch', 'L_w_roleld_done')
a.label('L_w_ld1')
a('s_cmp_ge_u32 s%d, 4' % sWV)
a.branch('s_cbranch_scc1', 'L_w_roleld_done')
a('s_mul_i32 s%d, s%d, 320' % (sT0, sRB))
a('s_mul_i32 s%d, s%d, 80' % (sT1, sWV))
a('s_add_u32 s%d, s%d, s%d' % (sT0, sT0, sT1))
a('s_mul_i32 s%d, s%d, 3072' % (sT0, sT0))
a('s_lshl_b32 s%d, s%d, 7' % (sT1, sRA))
a('s_add_u32 s%d, s%d, s%d' % (sT0, sT0, sT1))
a('v_mul_u32_u24 v7, 3072, v6')
a('v_lshl_add_u32 v7, v5, 4, v7')
a('v_add_u32 v7, s%d, v7' % sT0)
for u in range(10):
    a('global_load_dwordx4 %s, v7, %s' % (vr(WROLE + 4 * u, 4), sp(sW1)) + NT)
    if u < 9:
        a('v_add_u32 v7, %d, v7' % (8 * 3072))
a.branch('s_branch', 'L_w_roleld_done')
a.label('L_w_ld2')
a('s_cmp_ge_u32 s%d, 5' % sWV)
a.branch('s_cbranch_scc1', 'L_w_roleld_done')
a('s_mul_i32 s%d, s%d, %d' % (sT0, sRA, 64 * 1280))
a('s_mul_i32 s%d, s%d, 640' % (sT1, sRB))
a('s_add_u32 s%d, s%d, s%d' % (sT0, sT0, sT1))
a('s_lshl_b32 s%d, s%d, 7' % (sT1, sWV))
a('s_add_u32 s%d, s%d, s%d' % (sT0, sT0, sT1))
a('v_mul_u32_u24 v7, 1280, v6')
a('v_lshl_add_u32 v7, v5, 4, v7')
a('v_add_u32 v7, s%d, v7' % sT0)
for u in range(8):
    a('global_load_dwordx4 %s, v7, %s' % (vr(WROLE + 4 * u, 4), sp(sW2)) + NT)
    if u < 7:
        a('v_add_u32 v7, %d, v7' % (8 * 1280))
a.label('L_w_roleld_done')
CvT, CaR, CaP, CM = 5, 6, 7, 80
CP = 96
a('v_mov_b32 v%d, s%d' % (CvT, sTAG))
a('s_lshl_b32 s%d, s%d, 8' % (sT0, sWV))
a('s_add_u32 s%d, s%d, %d' % (sT1, sT0, RED))
a('v_lshl_add_u32 v%d, v%d, 2, s%d' % (CaR, vLANE, sT1))
a('s_lshl_b32 s%d, s%d, 3' % (sT1, sH))
a('s_add_u32 s%d, s%d, s%d' % (sT1, sT1, sJ))
a('s_lshl_b32 s%d, s%d, 10' % (sT2, sT1))
a('s_add_u32 s%d, s%d, s%d' % (sT2, sT2, sT0))
a('s_add_u32 s%d, s%d, 0x%x' % (sT2, sT2, AT))
a('v_lshl_add_u32 v%d, v%d, 2, s%d' % (CaP, vLANE, sT2))
a('s_lshl_b32 s%d, s%d, 4' % (sT1, sT1))
a('s_add_u32 s%d, s%d, 0x%x' % (sT1, sT1, ML))
a('v_mov_b32 v8, s%d' % sT1)
a('v_mov_b32 v9, %d' % MW)
a('s_barrier')
stamp(3)
a('s_cmp_ge_u32 s%d, 4' % sWV)
a.branch('s_cbranch_scc1', 'L_w_combdone')
for i in range(4):
    a('ds_read_b128 %s, v9 offset:%d' % (vr(CM + 4 * i, 4), 16 * i))
for i in range(8):
    a('ds_read2st64_b32 %s, v%d offset0:%d offset1:%d' % (vr(CP + 2 * i, 2), CaR, 6 * i, 6 * i + 3))
a('s_waitcnt lgkmcnt(8)')
a('v_max3_f32 v10, v%d, v%d, v%d' % (CM, CM + 2, CM + 4))
a('v_max3_f32 v11, v%d, v%d, v%d' % (CM + 6, CM + 8, CM + 10))
a('v_max3_f32 v10, v10, v%d, v%d' % (CM + 12, CM + 14))
a('v_max_f32 v10, v10, v11')
for i in range(8):
    a('v_sub_f32 v%d, v%d, v10' % (CM + 2 * i, CM + 2 * i))
for i in range(8):
    a('v_exp_f32 v%d, v%d' % (CM + 2 * i, CM + 2 * i))
a('s_cmp_eq_u32 s%d, 3' % sWV)
a.branch('s_cbranch_scc1', 'L_w_ml')
a('s_waitcnt lgkmcnt(0)')
for i in range(8):
    a('v_add_f32 v%d, v%d, v%d' % (CP + 2 * i, CP + 2 * i, CP + 2 * i + 1))
a('v_mul_f32 v11, v%d, v%d' % (CP, CM))
a('v_mul_f32 v12, v%d, v%d' % (CP + 2, CM + 2))
for i in range(2, 8):
    a('v_fmac_f32 v%d, v%d, v%d' % (11 + i % 2, CP + 2 * i, CM + 2 * i))
a('v_add_f32 v11, v11, v12')
addtag([11], CvT)
a('global_store_dword v%d, v11, %s' % (CaP, sp(sF)))
a('global_store_dword v%d, v11, %s sc1' % (CaP, sp(sS)))
a.branch('s_branch', 'L_w_combdone')
a.label('L_w_ml')
a('v_mul_f32 v13, v%d, v%d' % (CM, CM + 1))
for i in range(1, 8):
    a('v_fmac_f32 v13, v%d, v%d' % (CM + 2 * i, CM + 2 * i + 1))
a('v_mov_b32 v12, v10')
a('v_lshlrev_b32 v14, 8, v10')
a('v_mov_b32 v15, s%d' % sEP)
addtag([12, 13, 14], CvT)
a('s_mov_b64 exec, 1')
a('global_store_dwordx4 v8, v[12:15], %s' % sp(sF))
a('global_store_dwordx4 v8, v[12:15], %s sc1' % sp(sS))
a('s_mov_b64 exec, -1')
a('s_waitcnt lgkmcnt(0)')
a.label('L_w_combdone')
a('s_cmp_eq_u32 s%d, 1' % sROLE)
a.branch('s_cbranch_scc1', 'L_w_r1')
a('s_cmp_eq_u32 s%d, 2' % sROLE)
a.branch('s_cbranch_scc1', 'L_w_r2')
a('s_cmp_lt_u32 s%d, 4' % sWV)
a.branch('s_cbranch_scc1', 'L_w_o_g')
a('s_add_u32 s%d, s%d, 4' % (sU, sWV))
h1_gather()
a('s_barrier')
a('s_barrier')
a.branch('s_branch', 'L_w_roledone')
a.label('L_w_o_g')
a('s_mul_i32 s%d, s%d, 96' % (sT0, sWV))
a('v_add_u32 v6, s%d, v%d' % (sT0, vIRD))
a('v_and_b32 v7, 7, v0')
a('v_lshlrev_b32 v7, 5, v7')
a('v_bfe_u32 v8, v0, 4, 1')
a('v_lshl_add_u32 v7, v8, 4, v7')
a('v_lshrrev_b32 v8, 5, v0')
a('v_lshl_add_u32 v7, v8, 8, v7')
a('s_lshl_b32 s%d, s%d, 9' % (sT0, sWV))
a('s_add_u32 s%d, s%d, %d' % (sT0, sT0, RED2))
a('v_add_u32 v7, s%d, v7' % sT0)
a('v_mov_b32 v5, s%d' % sTAG)
a('v_lshlrev_b32 v12, 2, v0')
a('s_lshl_b32 s%d, s%d, 1' % (sT0, sG))
a('s_add_u32 s%d, s%d, s%d' % (sT0, sT0, sRA))
a('s_mul_i32 s%d, s%d, 2560' % (sT0, sT0))
a('s_lshl_b32 s%d, s%d, 8' % (sT1, sRB))
a('s_add_u32 s%d, s%d, s%d' % (sT0, sT0, sT1))
a('s_add_u32 s%d, s%d, 0x%x' % (sT0, sT0, YY))
a('v_add_u32 v13, s%d, v12' % sT0)
a('v_add_u32 v12, %d, v12' % RED2)
a('s_waitcnt vmcnt(0)')
stamp(4)
a('s_barrier')
stamp(5)
gemv(12, WROLE, IMGR, 80, 8, 6)
a('s_mov_b64 exec, %s' % sp(sEXA))
a('ds_write_b128 v7, v[8:11]')
a('s_mov_b64 exec, -1')
a('s_waitcnt lgkmcnt(0)')
a('s_barrier')
a('s_cmp_lg_u32 s%d, 0' % sWV)
a.branch('s_cbranch_scc1', 'L_w_roledone')
for i in range(4):
    a('ds_read2st64_b32 %s, v12 offset0:%d offset1:%d' % (vr(16 + 2 * i, 2), 2 * i, 2 * i + 1))
a('s_waitcnt lgkmcnt(0)')
a('v_add_f32 v16, v16, v17')
a('v_add_f32 v18, v18, v19')
a('v_add_f32 v20, v20, v21')
a('v_add_f32 v22, v22, v23')
a('v_add_f32 v16, v16, v18')
a('v_add_f32 v20, v20, v22')
a('v_add_f32 v16, v16, v20')
addtag([16], 5)
a('global_store_dword v13, v16, %s sc1' % sp(sS))
stamp(6)
a.branch('s_branch', 'L_w_roledone')
a.label('L_w_r1')
a('s_cmp_lt_u32 s%d, 4' % sWV)
a.branch('s_cbranch_scc1', 'L_w_1_g')
a('s_cmp_eq_u32 s%d, 4' % sWV)
a.branch('s_cbranch_scc1', 'L_w_1_idle')
a('s_cmp_eq_u32 s%d, 7' % sWV)
a.branch('s_cbranch_scc1', 'L_w_1_st')
a('s_add_u32 s%d, s%d, 3' % (sU, sWV))
h2_gather()
a.label('L_w_1_idle')
a('s_barrier')
a.branch('s_branch', 'L_w_roledone')
a.label('L_w_1_st')
a('s_barrier')


def w1_stats_addr(ad, t):
    a('s_lshl_b32 s%d, s%d, 7' % (sT0, sRA))
    a('s_lshl_b32 s%d, s%d, 4' % (sT1, sRB))
    a('s_add_u32 s%d, s%d, s%d' % (sT0, sT0, sT1))
    a('s_add_u32 s%d, s%d, 0x%x' % (sT0, sT0, HS))
    a('v_lshrrev_b32 v%d, 5, v%d' % (t, vLANE))
    a('v_lshlrev_b32 v%d, 3, v%d' % (t, t))
    a('v_add_u32 v%d, s%d, v%d' % (ad, sT0, t))


stats_wave(IMGR, 5, w1_stats_addr, True)
a.branch('s_branch', 'L_w_roledone')
a.label('L_w_1_g')
a('s_mul_i32 s%d, s%d, 80' % (sT0, sWV))
a('v_add_u32 v6, s%d, v%d' % (sT0, vIRD))
a('v_mov_b32 v5, s%d' % sTAG)
a('s_lshl_b32 s%d, s%d, 1' % (sT0, sRA))
a('s_add_u32 s%d, s%d, s%d' % (sT0, sT0, sRB))
a('s_lshl_b32 s%d, s%d, 2' % (sT0, sT0))
a('s_add_u32 s%d, s%d, s%d' % (sT0, sT0, sWV))
a('s_lshl_b32 s%d, s%d, 8' % (sT0, sT0))
a('v_add_u32 v7, s%d, v%d' % (sT0, vPUB))
a('s_waitcnt vmcnt(0)')
a('s_cmp_lg_u32 s%d, 0' % sLAY)
a.branch('s_cbranch_scc1', 'L_w_1_nocs')
colsum(10, WROLE, 16, 8)
classadd(8, 12)
addtag([12, 13], 5)
a('v_add_u32 v14, 0x%x, v7' % CS1)
a('s_mov_b64 exec, %s' % sp(sEXB))
a('global_store_dwordx2 v14, v[12:13], %s sc1' % sp(sWS))
a('s_mov_b64 exec, -1')
a.label('L_w_1_nocs')
a('v_add_u32 v7, 0x%x, v7' % HP)
stamp(4)
a('s_barrier')
stamp(5)
gemv(10, WROLE, IMGR, 80, 8, 6)
classadd(8, 12)
pub2(7, 12, True, 5)
stamp(6)
a.branch('s_branch', 'L_w_roledone')
a.label('L_w_r2')
a('s_cmp_lt_u32 s%d, 5' % sWV)
a.branch('s_cbranch_scc1', 'L_w_2_g')
a('s_cmp_lg_u32 s%d, 5' % sWV)
a.branch('s_cbranch_scc1', 'L_w_2_idle')
GvT, GaD, GaS, GaI, GaI2 = 5, 6, 7, 8, 9
GD, GE, GSt, Gd, Gd2, Gt = 12, 16, 20, 24, 25, 27
a('v_mov_b32 v%d, s%d' % (GvT, sTAG))
lane_fields(l8=Gd, lg=Gd2)
a('s_lshl_b32 s%d, s%d, 11' % (sT0, sRA))
a('v_lshlrev_b32 v%d, 8, v%d' % (GaD, Gd2))
a('v_lshl_add_u32 v%d, v%d, 4, v%d' % (GaD, Gd, GaD))
a('v_add_u32 v%d, s%d, v%d' % (GaD, sT0, GaD))
a('s_lshl_b32 s%d, s%d, 7' % (sT0, sRA))
a('s_add_u32 s%d, s%d, 0x%x' % (sT0, sT0, HS))
a('v_mov_b32 v%d, s%d' % (GaS, sT0))
a('v_lshrrev_b32 v%d, 4, v%d' % (Gd2, vLANE))
a('v_lshl_add_u32 v%d, v%d, 2, v%d' % (Gd2, Gd, Gd2))
a('v_and_b32 v%d, 8, v%d' % (Gt, vLANE))
a('v_lshl_add_u32 v%d, v%d, 2, v%d' % (Gd2, Gt, Gd2))
a('v_and_b32 v%d, 7, v%d' % (Gt, Gd2))
a('v_mul_u32_u24 v%d, %d, v%d' % (GaI, RS, Gt))
a('v_and_b32 v%d, 0xfffffff8, v%d' % (Gt, Gd2))
a('v_add_u32 v%d, v%d, v%d' % (GaI, GaI, Gt))
a('v_and_b32 v%d, 8, v%d' % (Gt, vLANE))
a('v_cmp_eq_u32 s[58:59], 0, v%d' % Gt)


def rs8():
    for b in (GD, GE):
        a('v_permlane32_swap_b32 v%d, v%d' % (b, b + 2))
        a('v_permlane32_swap_b32 v%d, v%d' % (b + 1, b + 3))
    for b in (GD, GE):
        a('v_add_f32 v%d, v%d, v%d' % (b, b, b + 2))
        a('v_add_f32 v%d, v%d, v%d' % (b + 1, b + 1, b + 3))
    for b in (GD, GE):
        a('v_permlane16_swap_b32 v%d, v%d' % (b, b + 1))
    for b in (GD, GE):
        a('v_add_f32 v%d, v%d, v%d' % (b, b, b + 1))
    a('v_cndmask_b32 v%d, v%d, v%d, s[58:59]' % (GD + 1, GE, GD))
    a('v_cndmask_b32 v%d, v%d, v%d, s[58:59]' % (GD + 2, GD, GE))
    a('v_add_f32_dpp v%d, v%d, v%d row_ror:8 row_mask:0xf bank_mask:0xf' % (GD + 1, GD + 2, GD + 1))
    a('v_mov_b32 v%d, v%d' % (GD, GD + 1))


a('s_cmp_lg_u32 s%d, 0' % sLAY)
a.branch('s_cbranch_scc1', 'L_w_2_nocs')
a('s_lshl_b32 s%d, s%d, 7' % (sT0, sRA))
a('v_lshl_add_u32 v%d, v%d, 1, s%d' % (GaI2, Gd2, sT0))
a('global_load_ushort v%d, v%d, %s' % (vB1, GaI2, sp(sB1)))
a('v_add_u32 v%d, 0x%x, v%d' % (GaI2, CS1, GaD))


def cs1_loads(b):
    a('global_load_dwordx4 %s, v%d, %s sc1' % (vr(GD, 4), GaI2, sp(sWS)))
    a('global_load_dwordx4 %s, v%d, %s offset:128 sc1' % (vr(GE, 4), GaI2, sp(sWS)))


poll(cs1_loads, list(range(GD, GD + 8)), GvT, Gd, Gd2, False)
rs8()
a('v_mov_b32 v%d, v%d' % (vCS1, GD))
a('v_lshlrev_b32 v%d, 16, v%d' % (vB1, vB1))
a.label('L_w_2_nocs')
a('v_add_u32 v%d, 0x%x, v%d' % (GaD, HP, GaD))


def h3_loads(b):
    a('global_load_dwordx4 %s, v%d, %s sc1' % (vr(GSt, 4), GaS, sp(b)))
    a('global_load_dwordx4 %s, v%d, %s offset:16 sc1' % (vr(28, 4), GaS, sp(b)))
    a('global_load_dwordx4 %s, v%d, %s sc1' % (vr(GD, 4), GaD, sp(b)))
    a('global_load_dwordx4 %s, v%d, %s offset:128 sc1' % (vr(GE, 4), GaD, sp(b)))


poll(h3_loads, list(range(GD, GD + 8)) + [GSt, GSt + 2, 28, 30], GvT, Gd, Gd2, True, full=[GSt + 1, GSt + 3, 29, 31])
stamp(4)
a('v_add_f32 v%d, v%d, v28' % (GSt, GSt))
a('v_add_f32 v%d, v%d, v30' % (GSt + 1, GSt + 2))
ln_from_stats(GSt, GSt + 1, Gt)
rs8()
a('v_fma_f32 v%d, -v%d, v%d, v%d' % (GD, GSt, vCS1, GD))
a('v_fma_f32 v%d, v%d, v%d, v%d' % (GD, GD, GSt + 1, vB1))
e, n1, d1, n2, d2_ = GE, GE + 1, GE + 2, GE + 3, GSt
a('v_mul_f32 v%d, 0x%08x, v%d' % (e, f2u(math.log2(math.e)), GD))
a('v_exp_f32 v%d, -abs(v%d)' % (e, e))
a('v_cmp_le_f32 vcc, 0, v%d' % GD)
a('v_fma_f32 v%d, v%d, 2.0, 1.0' % (n1, e))
a('v_add_f32 v%d, 2.0, v%d' % (n2, e))
a('v_mul_f32 v%d, v%d, v%d' % (d1, e, e))
a('v_mul_f32 v%d, v%d, v%d' % (n2, n2, e))
a('v_cndmask_b32 v%d, 1.0, v%d, vcc' % (d1, d1))
a('v_cndmask_b32 v%d, v%d, v%d, vcc' % (n1, n2, n1))
a('v_fma_f32 v%d, v%d, 2.0, v%d' % (d1, d1, n1))
a('v_rcp_f32 v%d, v%d' % (d1, d1))
a('v_mul_f32 v%d, v%d, v%d' % (n1, n1, GD))
a('v_mul_f32 v%d, v%d, v%d' % (n1, n1, d1))
a('v_cvt_pk_bf16_f32 v%d, v%d, v%d' % (n1, n1, n1))
a('v_and_b32 v%d, 0xffff, v%d' % (GD, n1))
a('v_mov_b32 v%d, 0' % (GD + 1))
a('v_mov_b32 v%d, 0' % (GD + 2))
a('v_and_b32 v%d, s%d, v%d' % (GD + 3, sHI, n1))
a('ds_write_b64 v%d, %s offset:%d' % (GaI, vr(GD, 2), IMGR))
a('ds_write_b64 v%d, %s offset:%d' % (GaI, vr(GD + 2, 2), IMGR + HSZ))
a('s_waitcnt lgkmcnt(0)')
a.label('L_w_2_idle')
a('s_barrier')
a.branch('s_branch', 'L_w_roledone')
a.label('L_w_2_g')
a('v_mov_b32 v5, s%d' % sTAG)
a('s_mul_i32 s%d, s%d, 2560' % (sT0, sRA))
a('s_mul_i32 s%d, s%d, 1280' % (sT1, sRB))
a('s_add_u32 s%d, s%d, s%d' % (sT0, sT0, sT1))
a('s_lshl_b32 s%d, s%d, 8' % (sT1, sWV))
a('s_add_u32 s%d, s%d, s%d' % (sT0, sT0, sT1))
a('s_add_u32 s%d, s%d, 0x%x' % (sT0, sT0, ZZ))
a('v_add_u32 v7, s%d, v%d' % (sT0, vPUB))
a('s_waitcnt vmcnt(0)')
a('s_barrier')
stamp(5)
gemv(8, WROLE, IMGR, 80, 8, vIRD)
classadd(8, 12)
pub2(7, 12, False, 5)
stamp(6)
a.label('L_w_roledone')
a('s_cmp_eq_u32 s%d, 0' % sLAY)
a.branch('s_cbranch_scc1', 'L_w_h4')
a('s_cmp_lg_u32 s%d, 0' % sH)
a.branch('s_cbranch_scc1', 'L_end')
a('s_cmp_ge_u32 s%d, 5' % sWV)
a.branch('s_cbranch_scc1', 'L_end')
a.label('L_w_h4')
a('s_cmp_ge_u32 s%d, 5' % sWV)
a.branch('s_cbranch_scc1', 'L_w_next')
a('v_mov_b32 v%d, s%d' % (XvT, sTAG))
x_stage_setup()
a('v_lshrrev_b32 v%d, 2, v%d' % (Xt, vLANE))
a('v_mul_u32_u24 v%d, 2560, v%d' % (XaD, Xt))
a('v_lshl_add_u32 v%d, v%d, 4, v%d' % (XaD, Xd, XaD))
a('s_mul_i32 s%d, s%d, 320' % (sT0, sJ))
a('s_lshl_b32 s%d, s%d, 6' % (sT1, sWV))
a('s_add_u32 s%d, s%d, s%d' % (sT0, sT0, sT1))
a('s_add_u32 s%d, s%d, 0x%x' % (sT0, sT0, ZZ))
a('v_add_u32 v%d, s%d, v%d' % (XaD, sT0, XaD))
a('v_add_u32 v%d, %d, v%d' % (XaD2, 16 * 2560, XaD))
a('v_lshlrev_b32 v%d, 2, v%d' % (XaX, Xcol))
a('v_add_u32 v%d, 0x%x, v%d' % (XaX, ZZ + 24 * 2560, XaX))
for k in range(4):
    a('v_mov_b32 v%d, v%d' % (XE + k, XvT))


def h4_loads(b):
    a('global_load_dword v%d, v%d, %s sc1' % (Xxp, XaX, sp(b)))
    a('global_load_dwordx4 %s, v%d, %s sc1' % (vr(XD, 4), XaD, sp(b)))
    a('s_mov_b32 exec_hi, 0')
    a('global_load_dwordx4 %s, v%d, %s sc1' % (vr(XE, 4), XaD2, sp(b)))
    a('s_mov_b32 exec_hi, -1')


poll(h4_loads, list(range(XD, XD + 8)) + [Xxp], XvT, Xd, Xd2, False)
stamp(7)
for k in range(4):
    a('v_add_f32 v%d, v%d, v%d' % (XD + k, XD + k, XE + k))
a('v_and_b32 v%d, s%d, v%d' % (Xxp, sHI, Xxp))
rscatter4(XD, extra_ror4=True)
resid_round(XD, Xxp, XD)
a('s_cmp_lg_u32 s%d, 0' % sLAY)
a.branch('s_cbranch_scc1', 'L_w_final')
img_write(XD, XvMA, XE, XaI)
a('s_cmp_lg_u32 s%d, 0' % sH)
a.branch('s_cbranch_scc1', 'L_w_next')
a('v_and_or_b32 v%d, v%d, s%d, v%d' % (XD, XD, sHI, XvT))
a('v_lshlrev_b32 v%d, 2, v%d' % (XaX, Xcol))
a('v_add_u32 v%d, 0x%x, v%d' % (XaX, X2, XaX))
a('s_mov_b32 exec_lo, 0x000f000f')
a('s_mov_b32 exec_hi, 0x000f000f')
a('global_store_dword v%d, v%d, %s sc1' % (XaX, XD, sp(sWS)))
a('s_mov_b64 exec, -1')
a.label('L_w_next')
next_layer()
a.branch('s_branch', 'L_w_loop')
a.label('L_w_final')
a('v_lshlrev_b32 v%d, 1, v%d' % (XaX, Xcol))
a('s_mov_b32 exec_lo, 0x000f000f')
a('s_mov_b32 exec_hi, 0x000f000f')
a('global_store_short v%d, v%d, %s' % (XaX, XD, sp(sOUT)))
a('s_mov_b64 exec, -1')
a('s_or_b32 s%d, s%d, s%d' % (sT0, sJ, sWV))
a('s_cmp_lg_u32 s%d, 0' % sT0)
a.branch('s_cbranch_scc1', 'L_end')
a('v_mov_b32 v5, 0x%x' % EPOCH)
a('v_mov_b32 v6, s%d' % sEP)
a('s_mov_b64 exec, 1')
a('global_store_dword v5, v6, %s sc1' % sp(sWS))
a('s_mov_b64 exec, -1')
a.branch('s_branch', 'L_end')

a.label('L_kv')
if DEBUG:
    for i in range(16):
        a('s_mov_b64 s[%d:%d], 0' % (64 + 2 * i, 65 + 2 * i))
KB, VB = 32, 80
lane_fields(l8=5, lg=6)
a('s_sub_u32 s%d, s%d, 8' % (sU, sWV))
a('s_mul_i32 s%d, s%d, 3145728' % (sT0, sH))
a('s_lshl_b32 s%d, s%d, 8' % (sT1, sJ))
a('s_lshl_b32 s%d, s%d, 5' % (sT2, sU))
a('s_add_u32 s%d, s%d, s%d' % (sT1, sT1, sT2))
a('s_add_u32 s%d, s%d, 6144' % (sT1, sT1))
a('s_mul_i32 s%d, s%d, 384' % (sT1, sT1))
a('s_add_u32 s%d, s%d, s%d' % (sT0, sT0, sT1))
a('v_mul_u32_u24 v30, 384, v6')
a('v_lshl_add_u32 v30, v5, 4, v30')
a('v_add_u32 v30, s%d, v30' % sT0)
a('v_add_u32 v31, 6144, v30')


def kvload(base, sp_, u, t):
    a('global_load_dwordx4 %s, v%d, %s offset:%d' % (vr(base + 12 * u + 4 * t, 4), 30 + u // 2, sp(sp_), (u % 2) * 3072 + 128 * t) + NT)


a('s_waitcnt lgkmcnt(0)')
a('s_barrier')
n = 0
for (base, sp_) in ((KB, sK), (VB, sV)):
    for u in range(4):
        for t in range(3):
            lim = INF if n < VFREE else 64
            if n >= lim:
                a('s_waitcnt vmcnt(%d)' % (lim - 1))
            kvload(base, sp_, u, t)
            n += 1
            if n == min(INF, 8):
                rest_setup()
tag_ready()
a.label('L_kv_loop')
Q, S, A0, mm, ll, tt = 8, 20, 24, 5, 6, 7
a('v_and_b32 v%d, 7, v0' % tt)
a('v_lshlrev_b32 v%d, 4, v%d' % (tt, tt))
for u in range(4):
    a('v_mov_b32 v%d, 0' % (S + u))
a('s_barrier')
stamp(0)
for t in range(3):
    a('ds_read_b128 %s, v%d offset:%d' % (vr(Q + 4 * t, 4), tt, QV + 128 * t))
a('s_waitcnt vmcnt(12)')
stamp(1)
for t in range(3):
    a('s_waitcnt lgkmcnt(%d)' % (2 - t))
    for k in range(4):
        for u in range(4):
            a('v_dot2c_f32_bf16 v%d, v%d, v%d' % (S + u, KB + 12 * u + 4 * t + k, Q + 4 * t + k))
allred8('v_add_f32', [S, S + 1, S + 2, S + 3])
cscale = math.log2(math.e) / math.sqrt(192.0)
for u in range(4):
    a('v_mul_f32 v%d, 0x%08x, v%d' % (S + u, f2u(cscale), S + u))
a('v_max3_f32 v%d, v%d, v%d, v%d' % (mm, S, S + 1, S + 2))
a('v_max_f32 v%d, v%d, v%d' % (mm, mm, S + 3))
a('v_max_f32_dpp v%d, v%d, v%d row_ror:8 row_mask:0xf bank_mask:0xf' % (mm, mm, mm))
a('v_mov_b32 v%d, v%d' % (tt, mm))
a('v_permlane16_swap_b32 v%d, v%d' % (mm, tt))
a('v_max_f32 v%d, v%d, v%d' % (mm, mm, tt))
a('v_mov_b32 v%d, v%d' % (tt, mm))
a('v_permlane32_swap_b32 v%d, v%d' % (mm, tt))
a('v_max_f32 v%d, v%d, v%d' % (mm, mm, tt))
for u in range(4):
    a('v_sub_f32 v%d, v%d, v%d' % (S + u, S + u, mm))
for u in range(4):
    a('v_exp_f32 v%d, v%d' % (S + u, S + u))
a('v_add_f32 v%d, v%d, v%d' % (ll, S, S + 1))
a('v_add_f32 v%d, v%d, v%d' % (tt, S + 2, S + 3))
a('v_add_f32 v%d, v%d, v%d' % (ll, ll, tt))
for u in range(4):
    a('v_cvt_pk_bf16_f32 v%d, v%d, v%d' % (S + u, S + u, S + u))
stamp(2)


def buildA(u):
    for k in range(4):
        a('v_and_b32 v%d, v%d, v%d' % (A0 + 4 * (u % 2) + k, S + u, vMK + k))


lred = [
    'v_add_f32_dpp v%d, v%d, v%d row_ror:8 row_mask:0xf bank_mask:0xf' % (ll, ll, ll),
    'v_mov_b32 v%d, v%d' % (tt, ll),
    'v_permlane16_swap_b32 v%d, v%d' % (ll, tt),
    'v_add_f32 v%d, v%d, v%d' % (ll, ll, tt),
    'v_mov_b32 v%d, v%d' % (tt, ll),
    'v_permlane32_swap_b32 v%d, v%d' % (ll, tt),
    'v_add_f32 v%d, v%d, v%d' % (ll, ll, tt),
]
buildA(0)
for u in range(4):
    if u < 3:
        buildA(u + 1)
    a('s_waitcnt vmcnt(%d)' % (9 - 3 * u))
    for t in range(3):
        a('v_mfma_f32_16x16x32_bf16 %s, %s, %s, %s' % (vr(Q + 4 * t, 4), vr(A0 + 4 * (u % 2), 4), vr(VB + 12 * u + 4 * t, 4),
                                                      '0' if u == 0 else vr(Q + 4 * t, 4)))
        if lred:
            a(lred.pop(0))
a('v_and_b32 v%d, 7, v0' % S)
a('v_lshlrev_b32 v%d, 5, v%d' % (S, S))
a('v_bfe_u32 v%d, v0, 4, 1' % (S + 1))
a('v_lshl_add_u32 v%d, v%d, 4, v%d' % (S, S + 1, S))
a('v_lshrrev_b32 v%d, 5, v0' % (S + 1))
a('v_mul_u32_u24 v%d, 768, v%d' % (S + 1, S + 1))
a('s_sub_u32 s%d, s%d, 8' % (sU, sWV))
a('s_mul_i32 s%d, s%d, 1536' % (sT0, sU))
a('s_add_u32 s%d, s%d, %d' % (sT0, sT0, RED))
a('v_add3_u32 v%d, v%d, v%d, s%d' % (S, S, S + 1, sT0))
a('s_lshl_b32 s%d, s%d, 3' % (sT0, sU))
a('s_add_u32 s%d, s%d, %d' % (sT0, sT0, MW))
a('v_mov_b32 v%d, s%d' % (S + 1, sT0))
a('v_mov_b32 v%d, v%d' % (S + 2, mm))
a('v_mov_b32 v%d, v%d' % (S + 3, ll))
a('s_mov_b64 exec, 1')
a('ds_write_b64 v%d, %s' % (S + 1, vr(S + 2, 2)))
a('s_mov_b64 exec, %s' % sp(sEXA))
for t in range(3):
    a('ds_write_b128 v%d, %s offset:%d' % (S, vr(Q + 4 * t, 4), 256 * t))
a('s_mov_b64 exec, -1')
a('s_waitcnt lgkmcnt(0)')
stamp(3)
a('s_barrier')
a('s_cmp_eq_u32 s%d, 1' % sROLE)
a.branch('s_cbranch_scc1', 'L_kv_r1')
a('s_cmp_eq_u32 s%d, 2' % sROLE)
a.branch('s_cbranch_scc1', 'L_kv_r2')
h1_gather()
stamp(5)
a('s_barrier')
a('s_barrier')
a.branch('s_branch', 'L_kv_roledone')
a.label('L_kv_r1')
h2_gather()
stamp(5)
a.label('L_kv_r2')
a('s_barrier')
a.label('L_kv_roledone')
a('s_cmp_lg_u32 s%d, 0' % sLAY)
a.branch('s_cbranch_scc1', 'L_end')
next_layer()
a('s_barrier')
a.branch('s_branch', 'L_kv_loop')

a.label('L_end')
dump_stamps()
a.label('L_exit')
a.raw('    s_endpgm')
a.raw('.section .rodata,"a"')
a.raw('.p2align 6')
a.raw('.amdhsa_kernel %s_kernel' % NAME)
a.raw('  .amdhsa_next_free_vgpr 128')
a.raw('  .amdhsa_next_free_sgpr 102')
a.raw('  .amdhsa_accum_offset 128')
a.raw('  .amdhsa_group_segment_fixed_size 0')
a.raw('  .amdhsa_kernarg_size 96')
a.raw('  .amdhsa_user_sgpr_count 2')
a.raw('  .amdhsa_user_sgpr_kernarg_segment_ptr 1')
a.raw('  .amdhsa_system_sgpr_workgroup_id_x 1')
a.raw('.end_amdhsa_kernel')
open(OUT, 'w').write(a.text())
print('wrote', OUT, len(a.out), 'lines')
```

```python
import sys, math, struct
from asmlib import Asm

NAME = 'interleave_layers__sliding_block_cached__dense_activation_mish__decode'
DEBUG = '--debug' in sys.argv
DBGOUT = '--dbgout' in sys.argv
OPT = dict(x[2:].split('=') for x in sys.argv[1:] if x.startswith('--') and '=' in x)
INF = int(OPT.get('inf', 24))
INFV = int(OPT.get('infv', INF))
VFREE = int(OPT.get('vfree', 24))
NT = {'nt': ' nt', 'plain': '', 'sc1': ' sc1', 'all': ' sc0 sc1 nt'}[OPT.get('pol', 'nt')]
OUT = [a for a in sys.argv[1:] if not a.startswith('--')]
OUT = OUT[0] if OUT else 'cdna_kernels/%s.s' % NAME


def f2u(x):
    return struct.unpack('<I', struct.pack('<f', x))[0]


LB = 0xC0000
SOFF = 0x200000
QP, AT, ML, YY, HP, HS, ZZ = 0x0, 0x40000, 0x80000, 0x84000, 0x90000, 0x9C000, 0xA0000
CS, CS1, X2, EPOCH = SOFF + 0x180000, SOFF + 0x1C0000, SOFF + 0x1D0000, SOFF + 0x1E0000
STAMPS = 0x800000
RS, HSZ = 400, 3200
IMGQ, IMGR = 0, 6400
QV = 12800
MW = 13312
FLG = 13440
RED = 13824
RED2 = RED + 16 * 768
LDS_BYTES = RED2 + 8 * 256
sX, sK, sV, sWQ, sWO, sW1, sB1, sW2, sOUT, sWS = 4, 6, 8, 10, 12, 16, 18, 20, 22, 26
sG, sR_, sH, sJ, sWV, sTAG, sEP, sROLE, sRA, sRB, sCNT, sLAY = 28, 29, 30, 31, 32, 33, 34, 35, 36, 37, 38, 39
sF, sS, sRD = 40, 42, 44
sT0, sT1, sT2, sT3 = 46, 47, 48, 49
sMASK = 50
sEXA, sEXB = 52, 54
sU = 56
sHI = 57
NFAST = 96
LIMIT = 1 << 21


def sp(n):
    return 's[%d:%d]' % (n, n + 1)


def vr(n, k=1):
    return 'v%d' % n if k == 1 else 'v[%d:%d]' % (n, n + k - 1)


a = Asm()
nstamp = [0]


def stamp(i):
    if DEBUG:
        a('s_memrealtime s[%d:%d]' % (64 + 2 * i, 65 + 2 * i))
        a('s_waitcnt lgkmcnt(0)')


vLANE, vMK = 0, 1


def lane_fields(l8=None, lg=None):
    if l8 is not None:
        a('v_and_b32 v%d, 7, v%d' % (l8, vLANE))
    if lg is not None:
        a('v_lshrrev_b32 v%d, 3, v%d' % (lg, vLANE))


def sub_field(dst, tmp):
    a('v_lshrrev_b32 v%d, 4, v%d' % (dst, vLANE))


def tagcheck(words, vT, d, d2, full=()):
    words = list(words)
    if len(words) % 2:
        words.append(words[-1])
    first = True
    pend = []
    for i in range(0, len(words), 2):
        dst = d if first else d2 + (len(pend) % 2)
        a('v_bitop3_b32 v%d, v%d, v%d, v%d bitop3:0x7e' % (dst, words[i], words[i + 1], vT))
        if not first:
            pend.append(dst)
            if len(pend) == 2:
                a('v_or3_b32 v%d, v%d, v%d, v%d' % (d, d, pend[0], pend[1]))
                pend = []
        first = False
    if pend:
        a('v_or_b32 v%d, v%d, v%d' % (d, d, pend[0]))
    a('v_and_b32 v%d, 0xff, v%d' % (d, d))
    full = list(full)
    assert len(full) % 2 == 0
    for i in range(0, len(full), 2):
        a('v_bitop3_b32 v%d, v%d, v%d, s%d bitop3:0x7e' % (d2, full[i], full[i + 1], sEP))
        a('v_or_b32 v%d, v%d, v%d' % (d, d, d2))
    a('v_cmp_ne_u32 vcc, 0, v%d' % d)


def poll(loads, words, vT, d, d2, fast, pre_issued=False, full=()):
    L = a.newlabel('poll')
    W = a.newlabel('pollw')
    D = a.newlabel('polld')
    a('s_mov_b32 s%d, 0' % sCNT)
    if pre_issued:
        a.branch('s_branch', W)
    a.label(L)
    loads(sRD if fast else sS)
    if pre_issued:
        a.label(W)
    a('s_waitcnt vmcnt(0)')
    tagcheck(words, vT, d, d2, full)
    a.branch('s_cbranch_vccz', D)
    a('s_add_u32 s%d, s%d, 1' % (sCNT, sCNT))
    if fast:
        a('s_cmp_ge_u32 s%d, %d' % (sCNT, NFAST))
        a('s_cselect_b64 %s, %s, %s' % (sp(sRD), sp(sS), sp(sRD)))
    a('s_cmp_lt_u32 s%d, %d' % (sCNT, LIMIT))
    a.branch('s_cbranch_scc1', L)
    a.branch('s_branch', 'L_end')
    a.label(D)


def rscatter4(r, extra_ror4=False):
    a('v_permlane32_swap_b32 v%d, v%d' % (r, r + 2))
    a('v_permlane32_swap_b32 v%d, v%d' % (r + 1, r + 3))
    a('v_add_f32 v%d, v%d, v%d' % (r, r, r + 2))
    a('v_add_f32 v%d, v%d, v%d' % (r + 1, r + 1, r + 3))
    a('v_permlane16_swap_b32 v%d, v%d' % (r, r + 1))
    a('v_add_f32 v%d, v%d, v%d' % (r, r, r + 1))
    a('v_add_f32_dpp v%d, v%d, v%d row_ror:8 row_mask:0xf bank_mask:0xf' % (r, r, r))
    if extra_ror4:
        a('v_add_f32_dpp v%d, v%d, v%d row_ror:4 row_mask:0xf bank_mask:0xf' % (r, r, r))


def allred8(op, regs):
    for ctl in ('quad_perm:[1,0,3,2]', 'quad_perm:[2,3,0,1]', 'row_half_mirror'):
        for r in regs:
            a('%s_dpp v%d, v%d, v%d %s row_mask:0xf bank_mask:0xf' % (op, r, r, r, ctl))


def img_masks(vMA, tmp):
    a('v_and_b32 v%d, 8, v%d' % (tmp, vLANE))
    a('v_cmp_eq_u32 vcc, 0, v%d' % tmp)
    a('v_mov_b32 v%d, 0xffff' % tmp)
    a('v_cndmask_b32 v%d, 0, v%d, vcc' % (vMA, tmp))
    a('v_mov_b32 v%d, 0xffff0000' % tmp)
    a('v_cndmask_b32 v%d, v%d, 0, vcc' % (vMA + 1, tmp))


def img_addr(dst, rr, tmp, base):
    a('v_and_b32 v%d, 7, v%d' % (tmp, rr))
    a('v_mul_u32_u24 v%d, %d, v%d' % (dst, RS, tmp))
    a('v_and_b32 v%d, 0xfffffff8, v%d' % (tmp, rr))
    a('v_add_u32 v%d, v%d, v%d' % (dst, dst, tmp))
    a('v_and_b32 v%d, 8, v%d' % (tmp, vLANE))
    a('v_mul_u32_u24 v%d, %d, v%d' % (tmp, HSZ // 8, tmp))
    a('v_add_u32 v%d, v%d, v%d' % (dst, dst, tmp))
    if base:
        a('v_add_u32 v%d, %d, v%d' % (dst, base, dst))


def img_write(pk, vMA, pair, addr):
    a('v_and_b32 v%d, v%d, v%d' % (pair, pk, vMA))
    a('v_and_b32 v%d, v%d, v%d' % (pair + 1, pk, vMA + 1))
    a('ds_write_b64 v%d, %s' % (addr, vr(pair, 2)))


def addtag(regs, vT):
    for r in regs:
        a('v_and_or_b32 v%d, v%d, s%d, v%d' % (r, r, sMASK, vT))


vS1, vS2, vIRD, vCS, vCS1, vB1, vPUB = 120, 121, 122, 123, 124, 125, 126
WROLE, WWQ = 32, 80


def gemv(nU, wbase, imgoff, tmp, acc, rdaddr, ones=None):
    n2 = nU // 2
    for i in range(n2):
        a('ds_read_b128 %s, v%d offset:%d' % (vr(tmp + 4 * i, 4), rdaddr, imgoff + 16 * i))
    A = tmp + 4 * n2

    def build(u):
        if u % 2 == 0:
            a('s_waitcnt lgkmcnt(%d)' % min(15, n2 - 1 - u // 2))
        src = tmp + 2 * u
        d = A + 4 * (u % 2)
        a('v_lshlrev_b64 %s, v%d, %s' % (vr(d, 2), vS1, vr(src, 2)))
        a('v_lshrrev_b64 %s, v%d, %s' % (vr(d + 2, 2), vS2, vr(src, 2)))
    build(0)
    for u in range(nU):
        if u + 1 < nU:
            build(u + 1)
        a('v_mfma_f32_16x16x32_bf16 %s, %s, %s, %s' % (vr(acc, 4), vr(A + 4 * (u % 2), 4), vr(wbase + 4 * u, 4),
                                                      '0' if u == 0 else vr(acc, 4)))


def colsum(nU, wbase, A, acc):
    for k in range(4):
        a('v_and_b32 v%d, 0x3f803f80, v%d' % (A + k, vMK + k))
    for u in range(nU):
        a('v_mfma_f32_16x16x32_bf16 %s, %s, %s, %s' % (vr(acc, 4), vr(A, 4), vr(wbase + 4 * u, 4),
                                                      '0' if u == 0 else vr(acc, 4)))


def classadd(acc, out):
    a('v_permlane32_swap_b32 v%d, v%d' % (acc, acc + 2))
    a('v_permlane32_swap_b32 v%d, v%d' % (acc + 1, acc + 3))
    a('v_add_f32_dpp v%d, v%d, v%d row_ror:8 row_mask:0xf bank_mask:0xf' % (out, acc + 2, acc))
    a('v_add_f32_dpp v%d, v%d, v%d row_ror:8 row_mask:0xf bank_mask:0xf' % (out + 1, acc + 3, acc + 1))


def pub2(addr, data, fast, vT):
    addtag([data, data + 1], vT)
    a('s_mov_b64 exec, %s' % sp(sEXB))
    if fast:
        a('global_store_dwordx2 v%d, %s, %s' % (addr, vr(data, 2), sp(sF)))
    a('global_store_dwordx2 v%d, %s, %s sc1' % (addr, vr(data, 2), sp(sS)))
    a('s_mov_b64 exec, -1')


def stats_wave(imgbase, nrd, addr_fn, fast):
    ad, s1, s2, t, vT = 5, 6, 7, 8, 9
    x = 10
    a('v_and_b32 v%d, 7, v%d' % (t, vLANE))
    a('v_lshrrev_b32 v%d, 3, v%d' % (ad, vLANE))
    a('v_mul_u32_u24 v%d, %d, v%d' % (ad, RS, ad))
    a('v_lshl_add_u32 v%d, v%d, 3, v%d' % (ad, t, ad))
    for i in range(nrd):
        a('ds_read_b32 v%d, v%d offset:%d' % (x + i, ad, imgbase + 64 * i))
    addr_fn(ad, t)
    a('v_mov_b32 v%d, s%d' % (vT, sTAG))
    a('s_waitcnt lgkmcnt(0)')
    for i in range(nrd):
        a('v_lshlrev_b32 v%d, 16, v%d' % (x + i, x + i))
    a('v_mov_b32 v%d, v%d' % (s1, x))
    a('v_mul_f32 v%d, v%d, v%d' % (s2, x, x))
    for i in range(1, nrd):
        a('v_add_f32 v%d, v%d, v%d' % (s1, s1, x + i))
        a('v_fmac_f32 v%d, v%d, v%d' % (s2, x + i, x + i))
    a('v_permlane32_swap_b32 v%d, v%d' % (s1, s2))
    a('v_add_f32 v%d, v%d, v%d' % (s1, s1, s2))
    allred8('v_add_f32', [s1])
    a('v_add_f32_dpp v%d, v%d, v%d row_ror:8 row_mask:0xf bank_mask:0xf' % (s1, s1, s1))
    a('v_mov_b32 v%d, v%d' % (t, s1))
    a('v_permlane16_swap_b32 v%d, v%d' % (s1, t))
    a('v_add_f32 v%d, v%d, v%d' % (s1, s1, t))
    addtag([s1], vT)
    a('v_mov_b32 v%d, s%d' % (s2, sEP))
    a('s_mov_b32 exec_lo, 1')
    a('s_mov_b32 exec_hi, 1')
    if fast:
        a('global_store_dwordx2 v%d, %s, %s' % (ad, vr(s1, 2), sp(sF)))
    a('global_store_dwordx2 v%d, %s, %s sc1' % (ad, vr(s1, 2), sp(sS)))
    a('s_mov_b64 exec, -1')


def ln_from_stats(s1, s2, t):
    a('v_mul_f32 v%d, 0x%08x, v%d' % (s1, f2u(1.0 / 640), s1))
    a('v_mul_f32 v%d, 0x%08x, v%d' % (s2, f2u(1.0 / 640), s2))
    a('v_fma_f32 v%d, -v%d, v%d, v%d' % (s2, s1, s1, s2))
    a('v_max_f32 v%d, 0, v%d' % (s2, s2))
    a('v_add_f32 v%d, 0x%08x, v%d' % (s2, f2u(1e-5), s2))
    a('v_rsq_f32 v%d, v%d' % (s2, s2))


def resid_round(y, xprev, pk):
    a('v_cvt_pk_bf16_f32 v%d, v%d, v%d' % (y, y, y))
    a('v_and_b32 v%d, s%d, v%d' % (y, sHI, y))
    a('v_add_f32 v%d, v%d, v%d' % (y, y, xprev))
    a('v_cvt_pk_bf16_f32 v%d, v%d, v%d' % (pk, y, y))


hdr = open('cdna_kernels/%s.s.ref' % NAME).read().split('; Override launch')[0]
a.raw(hdr.rstrip('\n'))
a.raw('; @launch grid=(256,1,1) block=(1024,1,1) lds=%d' % LDS_BYTES)
a.raw('.amdgcn_target "amdgcn-amd-amdhsa--gfx950"')
a.raw('.text')
a.raw('.globl %s_kernel' % NAME)
a.raw('.p2align 8')
a.raw('.type %s_kernel,@function' % NAME)
a.raw('%s_kernel:' % NAME)

a('s_cmp_ge_u32 s2, 256')
a.branch('s_cbranch_scc1', 'L_exit')
a('s_load_dwordx16 s[4:19], s[0:1], 0')
a('s_load_dwordx8 s[20:27], s[0:1], 64')
if DEBUG:
    a('s_memrealtime s[96:97]')
a('v_lshrrev_b32 v5, 6, v0')
a('v_and_b32 v0, 63, v0')
a('v_readfirstlane_b32 s%d, v5' % sWV)
a('s_and_b32 s%d, s2, 7' % sG)
a('s_lshr_b32 s%d, s2, 3' % sR_)
a('s_lshr_b32 s%d, s%d, 3' % (sT0, sR_))
a('s_lshl_b32 s%d, s%d, 2' % (sH, sG))
a('s_add_u32 s%d, s%d, s%d' % (sH, sH, sT0))
a('s_and_b32 s%d, s%d, 7' % (sJ, sR_))


def rest_setup():
    Lrd = a.newlabel('roledone')
    a('s_mov_b32 s%d, 0xffffff00' % sMASK)
    a('s_mov_b32 s%d, 0xffff0000' % sHI)
    a('s_mov_b32 s%d, 0x00ff00ff' % sEXA)
    a('s_mov_b32 s%d, 0xff00ff00' % (sEXA + 1))
    a('s_mov_b32 s%d, 0x00ff00ff' % sEXB)
    a('s_mov_b32 s%d, 0x00ff00ff' % (sEXB + 1))
    a('s_mov_b32 s%d, 0' % sLAY)
    a('s_cmp_ge_u32 s%d, 10' % sR_)
    a('s_cselect_b32 s%d, 1, 0' % sRA)
    a('s_mul_i32 s%d, s%d, 10' % (sT0, sRA))
    a('s_sub_u32 s%d, s%d, s%d' % (sRB, sR_, sT0))
    a('s_mov_b32 s%d, 0' % sROLE)
    a('s_cmp_lt_u32 s%d, 20' % sR_)
    a.branch('s_cbranch_scc1', Lrd)
    a('s_cmp_ge_u32 s%d, 26' % sR_)
    a('s_cselect_b32 s%d, 2, 1' % sROLE)
    a('s_cselect_b32 s%d, 26, 20' % sT0)
    a('s_sub_u32 s%d, s%d, s%d' % (sT0, sR_, sT0))
    a('s_and_b32 s%d, s%d, 1' % (sRB, sT0))
    a('s_lshr_b32 s%d, s%d, 1' % (sT0, sT0))
    a('s_mul_i32 s%d, s%d, 3' % (sRA, sG))
    a('s_add_u32 s%d, s%d, s%d' % (sRA, sRA, sT0))
    a.label(Lrd)
    a('v_and_b32 v5, 1, v0')
    a('v_cmp_eq_u32 vcc, 0, v5')
    a('v_mov_b32 v6, 0xffff')
    a('v_mov_b32 v7, 0xffff0000')
    a('v_cndmask_b32 v6, v7, v6, vcc')
    a('v_bfe_u32 v5, v0, 1, 2')
    for k in range(4):
        a('v_cmp_eq_u32 vcc, %d, v5' % k)
        a('v_cndmask_b32 v%d, 0, v6, vcc' % (vMK + k))
    a('s_add_u32 s%d, s%d, 0x%x' % (sT0, sWS, EPOCH))
    a('s_addc_u32 s%d, s%d, 0' % (sT1, sWS + 1))
    a('s_load_dword s%d, %s, 0' % (sEP, sp(sT0)))
    a('s_mov_b64 %s, %s' % (sp(sF), sp(sWS)))
    a('s_mov_b64 %s, %s' % (sp(sRD), sp(sWS)))
    a('s_add_u32 s%d, s%d, 0x%x' % (sS, sWS, SOFF))
    a('s_addc_u32 s%d, s%d, 0' % (sS + 1, sWS + 1))


a('s_cmp_ge_u32 s%d, 8' % sWV)
a.branch('s_cbranch_scc1', 'L_kv')


def h1_gather():
    vT, vMA, aD, aA, aC, aI = 5, 6, 8, 9, 10, 11
    D, A_, C_, d, d2, t = 12, 16, 20, 24, 25, 27
    a('s_cmp_ge_u32 s%d, 6' % sU)
    a('s_cselect_b32 s%d, 1, 0' % sT0)
    a('s_mul_i32 s%d, s%d, 6' % (sT1, sT0))
    a('s_sub_u32 s%d, s%d, s%d' % (sT1, sU, sT1))
    a('s_lshl_b32 s%d, s%d, 2' % (sT2, sG))
    a('s_lshl_b32 s%d, s%d, 1' % (sT3, sRA))
    a('s_add_u32 s%d, s%d, s%d' % (sT2, sT2, sT3))
    a('s_add_u32 s%d, s%d, s%d' % (sT2, sT2, sT0))
    a('v_mov_b32 v%d, s%d' % (vT, sTAG))
    img_masks(vMA, t)
    lane_fields(l8=d, lg=d2)
    a('s_lshl_b32 s%d, s%d, 13' % (sT3, sT2))
    a('s_lshl_b32 s%d, s%d, 7' % (sCNT, sT1))
    a('s_add_u32 s%d, s%d, s%d' % (sT3, sT3, sCNT))
    a('s_add_u32 s%d, s%d, 0x%x' % (sT3, sT3, AT))
    a('v_lshlrev_b32 v%d, 10, v%d' % (aD, d2))
    a('v_lshl_add_u32 v%d, v%d, 4, v%d' % (aD, d, aD))
    a('v_add_u32 v%d, s%d, v%d' % (aD, sT3, aD))
    a('s_lshl_b32 s%d, s%d, 7' % (sT3, sT2))
    a('s_add_u32 s%d, s%d, 0x%x' % (sT3, sT3, ML))
    a('v_lshlrev_b32 v%d, 4, v%d' % (aA, d))
    a('v_add_u32 v%d, s%d, v%d' % (aA, sT3, aA))
    a('v_lshlrev_b32 v%d, 4, v%d' % (aC, d2))
    a('v_add_u32 v%d, s%d, v%d' % (aC, sT3, aC))
    a('s_mul_i32 s%d, s%d, 192' % (sT3, sT0))
    a('s_lshl_b32 s%d, s%d, 5' % (sCNT, sT1))
    a('s_add_u32 s%d, s%d, s%d' % (sT3, sT3, sCNT))
    a('v_lshrrev_b32 v%d, 4, v%d' % (d2, vLANE))
    a('v_lshl_add_u32 v%d, v%d, 2, v%d' % (d2, d, d2))
    a('v_add_u32 v%d, s%d, v%d' % (d2, sT3, d2))
    img_addr(aI, d2, t, IMGR)

    def loads(b):
        a('global_load_dwordx4 %s, v%d, %s sc1' % (vr(A_, 4), aA, sp(b)))
        a('global_load_dwordx4 %s, v%d, %s sc1' % (vr(C_, 4), aC, sp(b)))
        a('global_load_dwordx4 %s, v%d, %s sc1' % (vr(D, 4), aD, sp(b)))
    poll(loads, [A_, A_ + 1, A_ + 2, C_, C_ + 2, D, D + 1, D + 2, D + 3], vT, d, d2, True, full=[A_ + 3, C_ + 3])
    stamp(4)
    for X in (A_, C_):
        a('v_bfe_u32 v%d, v%d, 8, 8' % (X + 2, X + 2))
        a('v_and_or_b32 v%d, v%d, s%d, v%d' % (X, X, sMASK, X + 2))
    a('v_mov_b32 v%d, v%d' % (t, A_))
    allred8('v_max_f32', [t])
    a('v_sub_f32 v%d, v%d, v%d' % (A_, A_, t))
    a('v_sub_f32 v%d, v%d, v%d' % (C_, C_, t))
    a('v_exp_f32 v%d, v%d' % (A_, A_))
    a('v_exp_f32 v%d, v%d' % (C_, C_))
    a('v_mul_f32 v%d, v%d, v%d' % (A_, A_, A_ + 1))
    for k in range(4):
        a('v_mul_f32 v%d, v%d, v%d' % (D + k, D + k, C_))
    allred8('v_add_f32', [A_])
    a('v_rcp_f32 v%d, v%d' % (A_, A_))
    rscatter4(D)
    a('v_mul_f32 v%d, v%d, v%d' % (D, D, A_))
    a('v_cvt_pk_bf16_f32 v%d, v%d, v%d' % (D, D, D))
    img_write(D, vMA, C_, aI)
    a('s_waitcnt lgkmcnt(0)')


def h2_gather():
    vT, vMA, aD, aD2, aI, aX, xp = 5, 6, 8, 9, 10, 11, 22
    D, E, d, d2, t = 12, 16, 24, 25, 27
    a('v_mov_b32 v%d, s%d' % (vT, sTAG))
    img_masks(vMA, t)
    lane_fields(l8=d, lg=d2)
    a('s_mul_i32 s%d, s%d, 1280' % (sT0, sRB))
    a('s_lshl_b32 s%d, s%d, 7' % (sT1, sU))
    a('s_add_u32 s%d, s%d, s%d' % (sT0, sT0, sT1))
    a('s_add_u32 s%d, s%d, 0x%x' % (sT2, sT0, YY))
    a('v_mul_u32_u24 v%d, 2560, v%d' % (aD, d2))
    a('v_lshl_add_u32 v%d, v%d, 4, v%d' % (aD, d, aD))
    a('v_add_u32 v%d, s%d, v%d' % (aD, sT2, aD))
    a('v_add_u32 v%d, %d, v%d' % (aD2, 8 * 2560, aD))
    a('v_lshrrev_b32 v%d, 4, v%d' % (d2, vLANE))
    a('v_lshl_add_u32 v%d, v%d, 2, v%d' % (d2, d, d2))
    a('s_lshl_b32 s%d, s%d, 5' % (sT1, sU))
    a('v_add_u32 v%d, s%d, v%d' % (d2, sT1, d2))
    img_addr(aI, d2, t, IMGR)
    a('s_mul_i32 s%d, s%d, 320' % (sT1, sRB))
    a('v_add_u32 v%d, s%d, v%d' % (d2, sT1, d2))
    Lk1 = a.newlabel('h2k1')
    Lj = a.newlabel('h2j')
    a('s_cmp_lg_u32 s%d, 0' % sLAY)
    a.branch('s_cbranch_scc1', Lk1)
    a('v_lshlrev_b32 v%d, 1, v%d' % (aX, d2))
    a('global_load_ushort v%d, v%d, %s' % (xp, aX, sp(sX)))
    a('s_waitcnt vmcnt(0)')
    a('v_lshlrev_b32 v%d, 16, v%d' % (xp, xp))
    a.branch('s_branch', Lj)
    a.label(Lk1)
    a('v_lshlrev_b32 v%d, 2, v%d' % (aX, d2))
    a('v_add_u32 v%d, 0x%x, v%d' % (aX, X2, aX))
    poll(lambda b: a('global_load_dword v%d, v%d, %s sc1' % (xp, aX, sp(sWS))), [xp], vT, d, t, False)
    a('v_and_b32 v%d, s%d, v%d' % (xp, sHI, xp))
    a.label(Lj)
    a('v_lshlrev_b32 v%d, 2, v%d' % (aX, d2))
    a('v_add_u32 v%d, 0x%x, v%d' % (aX, ZZ + 24 * 2560, aX))

    def loads(b):
        a('global_load_dwordx4 %s, v%d, %s sc1' % (vr(D, 4), aD, sp(b)))
        a('global_load_dwordx4 %s, v%d, %s sc1' % (vr(E, 4), aD2, sp(b)))
    poll(loads, list(range(D, D + 8)), vT, d, d2, False)
    stamp(4)
    for k in range(4):
        a('v_add_f32 v%d, v%d, v%d' % (D + k, D + k, E + k))
    rscatter4(D)
    resid_round(D, xp, D)
    img_write(D, vMA, E, aI)
    Ls = a.newlabel('h2s')
    a('s_cmp_lg_u32 s%d, 0' % sRA)
    a.branch('s_cbranch_scc1', Ls)
    a('v_and_or_b32 v%d, v%d, s%d, v%d' % (D, D, sHI, vT))
    a('s_mov_b64 exec, %s' % sp(sEXB))
    a('global_store_dword v%d, v%d, %s sc1' % (aX, D, sp(sS)))
    a('s_mov_b64 exec, -1')
    a.label(Ls)
    a('s_waitcnt lgkmcnt(0)')


def dump_stamps():
    if not DEBUG:
        return
    a('s_memrealtime s[98:99]')
    a('s_lshl_b32 s%d, s2, 4' % sT0)
    a('s_add_u32 s%d, s%d, s%d' % (sT0, sT0, sWV))
    a('s_lshl_b32 s%d, s%d, 8' % (sT0, sT0))
    a('s_add_u32 s%d, s%d, 0x%x' % (sT0, sT0, STAMPS))
    a('v_mov_b32 v5, s%d' % sT0)
    a('s_waitcnt lgkmcnt(0)')
    a('s_mov_b64 exec, 1')
    for i in range(18):
        a('v_mov_b32 v6, s%d' % (64 + 2 * i))
        a('v_mov_b32 v7, s%d' % (65 + 2 * i))
        a('global_store_dwordx2 v5, v[6:7], %s offset:%d' % (sp(sWS), 8 * i))
    if DBGOUT:
        Lk = a.newlabel('dbgk')
        Lp = a.newlabel('dbgp')
        a('s_cmp_lg_u32 s%d, 0' % sWV)
        a.branch('s_cbranch_scc1', Lk)
        a('v_mov_b32 v5, 0x%x' % EPOCH)
        a('s_mov_b32 s%d, 0' % sCNT)
        a.label(Lp)
        a('s_sleep 20')
        a('global_load_dword v6, v5, %s sc1' % sp(sWS))
        a('s_waitcnt vmcnt(0)')
        a('s_add_u32 s%d, s%d, 1' % (sCNT, sCNT))
        a('s_cmp_gt_u32 s%d, 100000' % sCNT)
        a.branch('s_cbranch_scc1', Lk)
        a('v_cmp_ne_u32 vcc, s%d, v6' % sEP)
        a.branch('s_cbranch_vccnz', Lp)
        a('v_mov_b32 v5, 0')
        a('s_not_b32 s%d, s96' % sT0)
        lst = [sT0, 98, 96] + [64 + 2 * st for st in [8 + 0, 8 + 1, 8 + 2, 8 + 3, 8 + 4, 8 + 6, 8 + 7, 0, 2, 3, 5, 6, 7]]
        for (i, sr) in enumerate(lst):
            a('v_mov_b32 v6, s%d' % sr)
            a('global_atomic_umax v5, v6, s[24:25] offset:%d' % (4 * i))
        a.label(Lk)
    a('s_mov_b64 exec, -1')


def next_layer():
    if DEBUG:
        for i in range(8):
            a('s_mov_b64 s[%d:%d], s[%d:%d]' % (80 + 2 * i, 81 + 2 * i, 64 + 2 * i, 65 + 2 * i))
    for b in (sF, sS, sRD):
        a('s_add_u32 s%d, s%d, 0x%x' % (b, b, LB))
        a('s_addc_u32 s%d, s%d, 0' % (b + 1, b + 1))
    a('s_mov_b32 s%d, 1' % sLAY)


def tag_ready():
    a('s_waitcnt lgkmcnt(0)')
    a('s_add_u32 s%d, s%d, 1' % (sEP, sEP))
    a('s_and_b32 s%d, s%d, 0xff' % (sTAG, sEP))


if DEBUG:
    pass
if DEBUG:
    for i in range(16):
        a('s_mov_b64 s[%d:%d], 0' % (64 + 2 * i, 65 + 2 * i))
a('s_setprio 3')
lane_fields(l8=5, lg=6)
a('s_mul_i32 s%d, s%d, 160' % (sT1, sJ))
a('v_min_u32 v8, 39, v0')
a('v_lshl_add_u32 v8, v8, 2, s%d' % sT1)
a('s_mul_i32 s%d, s%d, %d' % (sT0, sJ, 80 * 12288))
a('s_mul_i32 s%d, s%d, 384' % (sT1, sH))
a('s_add_u32 s%d, s%d, s%d' % (sT0, sT0, sT1))
a('s_sub_u32 s%d, s%d, 5' % (sT1, sWV))
a('s_lshl_b32 s%d, s%d, 7' % (sT1, sT1))
a('s_add_u32 s%d, s%d, s%d' % (sT0, sT0, sT1))
a('v_mul_u32_u24 v7, 12288, v6')
a('v_lshl_add_u32 v7, v5, 4, v7')
a('v_add_u32 v7, s%d, v7' % sT0)
a('s_waitcnt lgkmcnt(0)')
a('global_load_dword v12, v8, %s' % sp(sX))
a('s_cmp_lt_u32 s%d, 5' % sWV)
a.branch('s_cbranch_scc1', 'L_w_issued')
for u in range(10):
    a('global_load_dwordx4 %s, v7, %s' % (vr(WWQ + 4 * u, 4), sp(sWQ)) + NT)
    if u < 9:
        a('v_add_u32 v7, %d, v7' % 98304)
a.label('L_w_issued')
a('v_mov_b32 v9, %d' % FLG)
a('v_mov_b32 v10, 0')
a('ds_write_b32 v9, v10')
a('s_waitcnt lgkmcnt(0)')
a('s_barrier')
rest_setup()
lane_fields(l8=5, lg=6)
a('v_and_b32 v7, 3, v0')
a('v_lshlrev_b32 v7, 4, v7')
a('v_cmp_gt_u32 vcc, 4, v5')
a('v_sub_u32 v8, 48, v7')
a('v_cndmask_b32 v%d, 32, v7, vcc' % vS1)
a('v_mov_b32 v9, 32')
a('v_cndmask_b32 v%d, v8, v9, vcc' % vS2)
a('v_lshrrev_b32 v7, 2, v5')
a('v_mul_u32_u24 v7, %d, v7' % HSZ)
a('v_mul_u32_u24 v8, %d, v6' % RS)
a('v_add_u32 v%d, v7, v8' % vIRD)
a('v_bfe_u32 v7, v0, 4, 1')
a('v_lshlrev_b32 v7, 4, v7')
a('v_lshl_add_u32 v7, v5, 5, v7')
a('v_lshrrev_b32 v8, 5, v0')
a('v_lshl_add_u32 v%d, v8, 3, v7' % vPUB)
a('v_mov_b32 v%d, 0' % vCS)
a('v_mov_b32 v%d, 0' % vCS1)
a('v_mov_b32 v%d, 0' % vB1)
a('v_mul_u32_u24 v8, %d, v6' % RS)
a('v_lshl_add_u32 v8, v5, 3, v8')
a('v_mov_b32 v9, 0')
a('ds_write_b32 v8, v9 offset:%d' % (IMGQ + 80))
a('v_min_u32 v8, 39, v0')
a('v_and_b32 v9, 3, v8')
a('v_mul_u32_u24 v9, %d, v9' % (2 * RS))
a('v_lshrrev_b32 v8, 2, v8')
a('v_lshl_add_u32 v8, v8, 3, v9')
a('v_mov_b32 v15, 0')
a('v_mov_b32 v17, 0')
a('v_mov_b32 v18, 0')
a('v_mov_b32 v20, 0')
a('s_waitcnt vmcnt(10)')
a('s_cmp_ge_u32 s%d, 5' % sWV)
a.branch('s_cbranch_scc1', 'L_w_x0ok')
a('s_waitcnt vmcnt(0)')
a.label('L_w_x0ok')
a('v_and_b32 v14, 0xffff, v12')
a('v_lshrrev_b32 v16, 16, v12')
a('v_lshlrev_b32 v19, 16, v12')
a('v_and_b32 v21, s%d, v12' % sHI)
a('ds_write_b64 v8, v[14:15] offset:%d' % (IMGQ))
a('ds_write_b64 v8, v[16:17] offset:%d' % (IMGQ + RS))
a('ds_write_b64 v8, v[18:19] offset:%d' % (IMGQ + HSZ))
a('ds_write_b64 v8, v[20:21] offset:%d' % (IMGQ + HSZ + RS))

XvT, XvMA, XaD, XaD2, XaI, XaX, Xxp = 5, 6, 8, 9, 10, 11, 22
XD, XE, Xd, Xd2, Xt, Xcol = 12, 16, 24, 25, 27, 23


def x_stage_setup():
    img_masks(XvMA, Xt)
    a('v_and_b32 v%d, 3, v%d' % (Xd, vLANE))
    a('v_lshrrev_b32 v%d, 4, v%d' % (Xd2, vLANE))
    a('v_lshl_add_u32 v%d, v%d, 2, v%d' % (Xd2, Xd, Xd2))
    a('s_lshl_b32 s%d, s%d, 4' % (sT0, sWV))
    a('v_add_u32 v%d, s%d, v%d' % (Xd2, sT0, Xd2))
    img_addr(XaI, Xd2, Xt, IMGQ)
    a('s_mul_i32 s%d, s%d, 80' % (sT1, sJ))
    a('v_add_u32 v%d, s%d, v%d' % (Xcol, sT1, Xd2))


tag_ready()
a.branch('s_branch', 'L_w_loop0')

a.label('L_w_loop')
a('s_waitcnt lgkmcnt(0)')
a('s_barrier')
a.label('L_w_loop0')
stamp(0)
a('s_cmp_lt_u32 s%d, 5' % sWV)
a.branch('s_cbranch_scc1', 'L_w_noq')
a('v_mov_b32 v5, s%d' % sTAG)
a('s_lshl_b32 s%d, s%d, 3' % (sT0, sH))
a('s_add_u32 s%d, s%d, s%d' % (sT0, sT0, sJ))
a('s_lshl_b32 s%d, s%d, 10' % (sT0, sT0))
a('s_sub_u32 s%d, s%d, 5' % (sT1, sWV))
a('s_lshl_b32 s%d, s%d, 8' % (sT1, sT1))
a('s_add_u32 s%d, s%d, s%d' % (sT0, sT0, sT1))
a('v_add_u32 v6, s%d, v%d' % (sT0, vPUB))
a('s_waitcnt vmcnt(0)')
gemv(10, WWQ, IMGQ, 32, 8, vIRD)
classadd(8, 12)
pub2(6, 12, True, 5)
a('s_cmp_lg_u32 s%d, 0' % sLAY)
a.branch('s_cbranch_scc1', 'L_w_qdone')
colsum(10, WWQ, 16, 8)
classadd(8, 12)
addtag([12, 13], 5)
a('v_add_u32 v6, 0x%x, v6' % CS)
a('s_mov_b64 exec, %s' % sp(sEXB))
a('global_store_dwordx2 v6, v[12:13], %s sc1' % sp(sWS))
a('s_mov_b64 exec, -1')
a.branch('s_branch', 'L_w_qsig')
a.label('L_w_noq')
a('s_cmp_lg_u32 s%d, 3' % sWV)
a.branch('s_cbranch_scc1', 'L_w_qdone')


def q_stats_addr(ad, t):
    a('s_lshl_b32 s%d, s%d, 3' % (sT0, sH))
    a('s_add_u32 s%d, s%d, s%d' % (sT0, sT0, sJ))
    a('s_lshl_b32 s%d, s%d, 10' % (sT0, sT0))
    a('s_add_u32 s%d, s%d, %d' % (sT0, sT0, QP + 768))
    a('v_lshrrev_b32 v%d, 5, v%d' % (t, vLANE))
    a('v_lshlrev_b32 v%d, 3, v%d' % (t, t))
    a('v_add_u32 v%d, s%d, v%d' % (ad, sT0, t))


stats_wave(IMGQ, 2, q_stats_addr, True)
a('s_cmp_lg_u32 s%d, 0' % sLAY)
a.branch('s_cbranch_scc1', 'L_w_qdone')
a.label('L_w_qsig')
a('v_mov_b32 v9, %d' % FLG)
a('v_mov_b32 v10, 1')
a('s_waitcnt vmcnt(0)')
a('s_mov_b64 exec, 1')
a('ds_add_u32 v9, v10')
a('s_mov_b64 exec, -1')
a.label('L_w_qdone')
stamp(1)
HvT, HaD, HaS, HaC, HaQ = 5, 6, 7, 8, 9
HD, HSt, HC, Hd, Hd2, Ht = 12, 16, 20, 24, 25, 27
a('v_mov_b32 v%d, s%d' % (HvT, sTAG))
lane_fields(l8=Hd, lg=Hd2)
a('s_lshl_b32 s%d, s%d, 13' % (sT0, sH))
a('s_lshl_b32 s%d, s%d, 7' % (sT1, sWV))
a('s_add_u32 s%d, s%d, s%d' % (sT1, sT1, sT0))
a('v_lshlrev_b32 v%d, 10, v%d' % (HaD, Hd2))
a('v_lshl_add_u32 v%d, v%d, 4, v%d' % (HaD, Hd, HaD))
a('v_add_u32 v%d, s%d, v%d' % (HaD, sT1, HaD))
a('v_add_u32 v%d, 0x%x, v%d' % (HaC, CS, HaD))
a('v_lshlrev_b32 v%d, 10, v%d' % (HaS, Hd))
a('s_add_u32 s%d, s%d, %d' % (sT0, sT0, QP + 768))
a('v_add_u32 v%d, s%d, v%d' % (HaS, sT0, HaS))
a('v_lshrrev_b32 v%d, 4, v%d' % (Hd2, vLANE))
a('v_lshl_add_u32 v%d, v%d, 2, v%d' % (Hd2, Hd, Hd2))
a('s_lshl_b32 s%d, s%d, 6' % (sT0, sWV))
a('s_add_u32 s%d, s%d, %d' % (sT0, sT0, QV))
a('v_lshl_add_u32 v%d, v%d, 1, s%d' % (HaQ, Hd2, sT0))


def h5_loads(b):
    a('global_load_dwordx4 %s, v%d, %s sc1' % (vr(HSt, 4), HaS, sp(b)))
    a('global_load_dwordx4 %s, v%d, %s sc1' % (vr(HD, 4), HaD, sp(b)))


def h5_loads0(b):
    h5_loads(b)
    a('global_load_dwordx4 %s, v%d, %s sc1' % (vr(HC, 4), HaC, sp(sWS)))


a('s_cmp_ge_u32 s%d, 6' % sWV)
a.branch('s_cbranch_scc1', 'L_w_h5done')
a('s_cmp_lg_u32 s%d, 0' % sLAY)
a.branch('s_cbranch_scc1', 'L_w_h5k1')
a('v_mov_b32 v10, %d' % FLG)
a.label('L_w_fspin')
a('s_sleep 2')
a('ds_read_b32 v11, v10')
a('s_waitcnt lgkmcnt(0)')
a('v_cmp_ne_u32 vcc, 4, v11')
a.branch('s_cbranch_vccnz', 'L_w_fspin')
poll(h5_loads0, [HSt, HSt + 2] + list(range(HD, HD + 4)) + list(range(HC, HC + 4)), HvT, Hd, Hd2, True, full=[HSt + 1, HSt + 3])
rscatter4(HC)
a('v_mov_b32 v%d, v%d' % (vCS, HC))
a.branch('s_branch', 'L_w_h5c')
a.label('L_w_h5k1')
poll(h5_loads, [HSt, HSt + 2] + list(range(HD, HD + 4)), HvT, Hd, Hd2, True, full=[HSt + 1, HSt + 3])
a.label('L_w_h5c')
stamp(2)
allred8('v_add_f32', [HSt, HSt + 2])
rscatter4(HD)
ln_from_stats(HSt, HSt + 2, Ht)
a('v_fma_f32 v%d, -v%d, v%d, v%d' % (HD, HSt, vCS, HD))
a('v_mul_f32 v%d, v%d, v%d' % (HD, HD, HSt + 2))
a('v_cvt_pk_bf16_f32 v%d, v%d, v%d' % (HD, HD, HD))
a('ds_write_b16 v%d, v%d' % (HaQ, HD))
a('s_waitcnt lgkmcnt(0)')
a.label('L_w_h5done')
a('s_barrier')
a('s_cmp_lg_u32 s%d, 0' % sLAY)
a.branch('s_cbranch_scc1', 'L_w_roleld_done')
lane_fields(l8=5, lg=6)
a('s_cmp_eq_u32 s%d, 1' % sROLE)
a.branch('s_cbranch_scc1', 'L_w_ld1')
a('s_cmp_eq_u32 s%d, 2' % sROLE)
a.branch('s_cbranch_scc1', 'L_w_ld2')
a('s_cmp_ge_u32 s%d, 4' % sWV)
a.branch('s_cbranch_scc1', 'L_w_roleld_done')
a('s_mul_i32 s%d, s%d, 768' % (sT0, sG))
a('s_mul_i32 s%d, s%d, 384' % (sT1, sRA))
a('s_add_u32 s%d, s%d, s%d' % (sT0, sT0, sT1))
a('s_mul_i32 s%d, s%d, 96' % (sT1, sWV))
a('s_add_u32 s%d, s%d, s%d' % (sT0, sT0, sT1))
a('s_mul_i32 s%d, s%d, 1280' % (sT0, sT0))
a('s_lshl_b32 s%d, s%d, 7' % (sT1, sRB))
a('s_add_u32 s%d, s%d, s%d' % (sT0, sT0, sT1))
a('v_mul_u32_u24 v7, 1280, v6')
a('v_lshl_add_u32 v7, v5, 4, v7')
a('v_add_u32 v7, s%d, v7' % sT0)
for u in range(12):
    a('global_load_dwordx4 %s, v7, %s' % (vr(WROLE + 4 * u, 4), sp(sWO)) + NT)
    if u < 11:
        a('v_add_u32 v7, %d, v7' % (8 * 1280))
a.branch('s_branch', 'L_w_roleld_done')
a.label('L_w_ld1')
a('s_cmp_ge_u32 s%d, 4' % sWV)
a.branch('s_cbranch_scc1', 'L_w_roleld_done')
a('s_mul_i32 s%d, s%d, 320' % (sT0, sRB))
a('s_mul_i32 s%d, s%d, 80' % (sT1, sWV))
a('s_add_u32 s%d, s%d, s%d' % (sT0, sT0, sT1))
a('s_mul_i32 s%d, s%d, 3072' % (sT0, sT0))
a('s_lshl_b32 s%d, s%d, 7' % (sT1, sRA))
a('s_add_u32 s%d, s%d, s%d' % (sT0, sT0, sT1))
a('v_mul_u32_u24 v7, 3072, v6')
a('v_lshl_add_u32 v7, v5, 4, v7')
a('v_add_u32 v7, s%d, v7' % sT0)
for u in range(10):
    a('global_load_dwordx4 %s, v7, %s' % (vr(WROLE + 4 * u, 4), sp(sW1)) + NT)
    if u < 9:
        a('v_add_u32 v7, %d, v7' % (8 * 3072))
a.branch('s_branch', 'L_w_roleld_done')
a.label('L_w_ld2')
a('s_cmp_ge_u32 s%d, 5' % sWV)
a.branch('s_cbranch_scc1', 'L_w_roleld_done')
a('s_mul_i32 s%d, s%d, %d' % (sT0, sRA, 64 * 1280))
a('s_mul_i32 s%d, s%d, 640' % (sT1, sRB))
a('s_add_u32 s%d, s%d, s%d' % (sT0, sT0, sT1))
a('s_lshl_b32 s%d, s%d, 7' % (sT1, sWV))
a('s_add_u32 s%d, s%d, s%d' % (sT0, sT0, sT1))
a('v_mul_u32_u24 v7, 1280, v6')
a('v_lshl_add_u32 v7, v5, 4, v7')
a('v_add_u32 v7, s%d, v7' % sT0)
for u in range(8):
    a('global_load_dwordx4 %s, v7, %s' % (vr(WROLE + 4 * u, 4), sp(sW2)) + NT)
    if u < 7:
        a('v_add_u32 v7, %d, v7' % (8 * 1280))
a.label('L_w_roleld_done')
CvT, CaR, CaP, CM = 5, 6, 7, 80
CP = 96
a('v_mov_b32 v%d, s%d' % (CvT, sTAG))
a('s_lshl_b32 s%d, s%d, 8' % (sT0, sWV))
a('s_add_u32 s%d, s%d, %d' % (sT1, sT0, RED))
a('v_lshl_add_u32 v%d, v%d, 2, s%d' % (CaR, vLANE, sT1))
a('s_lshl_b32 s%d, s%d, 3' % (sT1, sH))
a('s_add_u32 s%d, s%d, s%d' % (sT1, sT1, sJ))
a('s_lshl_b32 s%d, s%d, 10' % (sT2, sT1))
a('s_add_u32 s%d, s%d, s%d' % (sT2, sT2, sT0))
a('s_add_u32 s%d, s%d, 0x%x' % (sT2, sT2, AT))
a('v_lshl_add_u32 v%d, v%d, 2, s%d' % (CaP, vLANE, sT2))
a('s_lshl_b32 s%d, s%d, 4' % (sT1, sT1))
a('s_add_u32 s%d, s%d, 0x%x' % (sT1, sT1, ML))
a('v_mov_b32 v8, s%d' % sT1)
a('v_mov_b32 v9, %d' % MW)
a('s_barrier')
stamp(3)
a('s_cmp_ge_u32 s%d, 4' % sWV)
a.branch('s_cbranch_scc1', 'L_w_combdone')
for i in range(4):
    a('ds_read_b128 %s, v9 offset:%d' % (vr(CM + 4 * i, 4), 16 * i))
for i in range(8):
    a('ds_read2st64_b32 %s, v%d offset0:%d offset1:%d' % (vr(CP + 2 * i, 2), CaR, 6 * i, 6 * i + 3))
a('s_waitcnt lgkmcnt(8)')
a('v_max3_f32 v10, v%d, v%d, v%d' % (CM, CM + 2, CM + 4))
a('v_max3_f32 v11, v%d, v%d, v%d' % (CM + 6, CM + 8, CM + 10))
a('v_max3_f32 v10, v10, v%d, v%d' % (CM + 12, CM + 14))
a('v_max_f32 v10, v10, v11')
for i in range(8):
    a('v_sub_f32 v%d, v%d, v10' % (CM + 2 * i, CM + 2 * i))
for i in range(8):
    a('v_exp_f32 v%d, v%d' % (CM + 2 * i, CM + 2 * i))
a('s_cmp_eq_u32 s%d, 3' % sWV)
a.branch('s_cbranch_scc1', 'L_w_ml')
a('s_waitcnt lgkmcnt(0)')
for i in range(8):
    a('v_add_f32 v%d, v%d, v%d' % (CP + 2 * i, CP + 2 * i, CP + 2 * i + 1))
a('v_mul_f32 v11, v%d, v%d' % (CP, CM))
a('v_mul_f32 v12, v%d, v%d' % (CP + 2, CM + 2))
for i in range(2, 8):
    a('v_fmac_f32 v%d, v%d, v%d' % (11 + i % 2, CP + 2 * i, CM + 2 * i))
a('v_add_f32 v11, v11, v12')
addtag([11], CvT)
a('global_store_dword v%d, v11, %s' % (CaP, sp(sF)))
a('global_store_dword v%d, v11, %s sc1' % (CaP, sp(sS)))
a.branch('s_branch', 'L_w_combdone')
a.label('L_w_ml')
a('v_mul_f32 v13, v%d, v%d' % (CM, CM + 1))
for i in range(1, 8):
    a('v_fmac_f32 v13, v%d, v%d' % (CM + 2 * i, CM + 2 * i + 1))
a('v_mov_b32 v12, v10')
a('v_lshlrev_b32 v14, 8, v10')
a('v_mov_b32 v15, s%d' % sEP)
addtag([12, 13, 14], CvT)
a('s_mov_b64 exec, 1')
a('global_store_dwordx4 v8, v[12:15], %s' % sp(sF))
a('global_store_dwordx4 v8, v[12:15], %s sc1' % sp(sS))
a('s_mov_b64 exec, -1')
a('s_waitcnt lgkmcnt(0)')
a.label('L_w_combdone')
a('s_cmp_eq_u32 s%d, 1' % sROLE)
a.branch('s_cbranch_scc1', 'L_w_r1')
a('s_cmp_eq_u32 s%d, 2' % sROLE)
a.branch('s_cbranch_scc1', 'L_w_r2')
a('s_cmp_lt_u32 s%d, 4' % sWV)
a.branch('s_cbranch_scc1', 'L_w_o_g')
a('s_add_u32 s%d, s%d, 4' % (sU, sWV))
h1_gather()
a('s_barrier')
a('s_barrier')
a.branch('s_branch', 'L_w_roledone')
a.label('L_w_o_g')
a('s_mul_i32 s%d, s%d, 96' % (sT0, sWV))
a('v_add_u32 v6, s%d, v%d' % (sT0, vIRD))
a('v_and_b32 v7, 7, v0')
a('v_lshlrev_b32 v7, 5, v7')
a('v_bfe_u32 v8, v0, 4, 1')
a('v_lshl_add_u32 v7, v8, 4, v7')
a('v_lshrrev_b32 v8, 5, v0')
a('v_lshl_add_u32 v7, v8, 8, v7')
a('s_lshl_b32 s%d, s%d, 9' % (sT0, sWV))
a('s_add_u32 s%d, s%d, %d' % (sT0, sT0, RED2))
a('v_add_u32 v7, s%d, v7' % sT0)
a('v_mov_b32 v5, s%d' % sTAG)
a('v_lshlrev_b32 v12, 2, v0')
a('s_lshl_b32 s%d, s%d, 1' % (sT0, sG))
a('s_add_u32 s%d, s%d, s%d' % (sT0, sT0, sRA))
a('s_mul_i32 s%d, s%d, 2560' % (sT0, sT0))
a('s_lshl_b32 s%d, s%d, 8' % (sT1, sRB))
a('s_add_u32 s%d, s%d, s%d' % (sT0, sT0, sT1))
a('s_add_u32 s%d, s%d, 0x%x' % (sT0, sT0, YY))
a('v_add_u32 v13, s%d, v12' % sT0)
a('v_add_u32 v12, %d, v12' % RED2)
a('s_waitcnt vmcnt(0)')
stamp(4)
a('s_barrier')
stamp(5)
gemv(12, WROLE, IMGR, 80, 8, 6)
a('s_mov_b64 exec, %s' % sp(sEXA))
a('ds_write_b128 v7, v[8:11]')
a('s_mov_b64 exec, -1')
a('s_waitcnt lgkmcnt(0)')
a('s_barrier')
a('s_cmp_lg_u32 s%d, 0' % sWV)
a.branch('s_cbranch_scc1', 'L_w_roledone')
for i in range(4):
    a('ds_read2st64_b32 %s, v12 offset0:%d offset1:%d' % (vr(16 + 2 * i, 2), 2 * i, 2 * i + 1))
a('s_waitcnt lgkmcnt(0)')
a('v_add_f32 v16, v16, v17')
a('v_add_f32 v18, v18, v19')
a('v_add_f32 v20, v20, v21')
a('v_add_f32 v22, v22, v23')
a('v_add_f32 v16, v16, v18')
a('v_add_f32 v20, v20, v22')
a('v_add_f32 v16, v16, v20')
addtag([16], 5)
a('global_store_dword v13, v16, %s sc1' % sp(sS))
stamp(6)
a.branch('s_branch', 'L_w_roledone')
a.label('L_w_r1')
a('s_cmp_lt_u32 s%d, 4' % sWV)
a.branch('s_cbranch_scc1', 'L_w_1_g')
a('s_cmp_eq_u32 s%d, 4' % sWV)
a.branch('s_cbranch_scc1', 'L_w_1_idle')
a('s_cmp_eq_u32 s%d, 7' % sWV)
a.branch('s_cbranch_scc1', 'L_w_1_st')
a('s_add_u32 s%d, s%d, 3' % (sU, sWV))
h2_gather()
a.label('L_w_1_idle')
a('s_barrier')
a.branch('s_branch', 'L_w_roledone')
a.label('L_w_1_st')
a('s_barrier')


def w1_stats_addr(ad, t):
    a('s_lshl_b32 s%d, s%d, 7' % (sT0, sRA))
    a('s_lshl_b32 s%d, s%d, 4' % (sT1, sRB))
    a('s_add_u32 s%d, s%d, s%d' % (sT0, sT0, sT1))
    a('s_add_u32 s%d, s%d, 0x%x' % (sT0, sT0, HS))
    a('v_lshrrev_b32 v%d, 5, v%d' % (t, vLANE))
    a('v_lshlrev_b32 v%d, 3, v%d' % (t, t))
    a('v_add_u32 v%d, s%d, v%d' % (ad, sT0, t))


stats_wave(IMGR, 5, w1_stats_addr, True)
a.branch('s_branch', 'L_w_roledone')
a.label('L_w_1_g')
a('s_mul_i32 s%d, s%d, 80' % (sT0, sWV))
a('v_add_u32 v6, s%d, v%d' % (sT0, vIRD))
a('v_mov_b32 v5, s%d' % sTAG)
a('s_lshl_b32 s%d, s%d, 1' % (sT0, sRA))
a('s_add_u32 s%d, s%d, s%d' % (sT0, sT0, sRB))
a('s_lshl_b32 s%d, s%d, 2' % (sT0, sT0))
a('s_add_u32 s%d, s%d, s%d' % (sT0, sT0, sWV))
a('s_lshl_b32 s%d, s%d, 8' % (sT0, sT0))
a('v_add_u32 v7, s%d, v%d' % (sT0, vPUB))
a('s_waitcnt vmcnt(0)')
a('s_cmp_lg_u32 s%d, 0' % sLAY)
a.branch('s_cbranch_scc1', 'L_w_1_nocs')
colsum(10, WROLE, 16, 8)
classadd(8, 12)
addtag([12, 13], 5)
a('v_add_u32 v14, 0x%x, v7' % CS1)
a('s_mov_b64 exec, %s' % sp(sEXB))
a('global_store_dwordx2 v14, v[12:13], %s sc1' % sp(sWS))
a('s_mov_b64 exec, -1')
a.label('L_w_1_nocs')
a('v_add_u32 v7, 0x%x, v7' % HP)
stamp(4)
a('s_barrier')
stamp(5)
gemv(10, WROLE, IMGR, 80, 8, 6)
classadd(8, 12)
pub2(7, 12, True, 5)
stamp(6)
a.branch('s_branch', 'L_w_roledone')
a.label('L_w_r2')
a('s_cmp_lt_u32 s%d, 5' % sWV)
a.branch('s_cbranch_scc1', 'L_w_2_g')
a('s_cmp_lg_u32 s%d, 5' % sWV)
a.branch('s_cbranch_scc1', 'L_w_2_idle')
GvT, GaD, GaS, GaI, GaI2 = 5, 6, 7, 8, 9
GD, GE, GSt, Gd, Gd2, Gt = 12, 16, 20, 24, 25, 27
a('v_mov_b32 v%d, s%d' % (GvT, sTAG))
lane_fields(l8=Gd, lg=Gd2)
a('s_lshl_b32 s%d, s%d, 11' % (sT0, sRA))
a('v_lshlrev_b32 v%d, 8, v%d' % (GaD, Gd2))
a('v_lshl_add_u32 v%d, v%d, 4, v%d' % (GaD, Gd, GaD))
a('v_add_u32 v%d, s%d, v%d' % (GaD, sT0, GaD))
a('s_lshl_b32 s%d, s%d, 7' % (sT0, sRA))
a('s_add_u32 s%d, s%d, 0x%x' % (sT0, sT0, HS))
a('v_mov_b32 v%d, s%d' % (GaS, sT0))
a('v_lshrrev_b32 v%d, 4, v%d' % (Gd2, vLANE))
a('v_lshl_add_u32 v%d, v%d, 2, v%d' % (Gd2, Gd, Gd2))
a('v_and_b32 v%d, 8, v%d' % (Gt, vLANE))
a('v_lshl_add_u32 v%d, v%d, 2, v%d' % (Gd2, Gt, Gd2))
a('v_and_b32 v%d, 7, v%d' % (Gt, Gd2))
a('v_mul_u32_u24 v%d, %d, v%d' % (GaI, RS, Gt))
a('v_and_b32 v%d, 0xfffffff8, v%d' % (Gt, Gd2))
a('v_add_u32 v%d, v%d, v%d' % (GaI, GaI, Gt))
a('v_and_b32 v%d, 8, v%d' % (Gt, vLANE))
a('v_cmp_eq_u32 s[58:59], 0, v%d' % Gt)


def rs8():
    for b in (GD, GE):
        a('v_permlane32_swap_b32 v%d, v%d' % (b, b + 2))
        a('v_permlane32_swap_b32 v%d, v%d' % (b + 1, b + 3))
    for b in (GD, GE):
        a('v_add_f32 v%d, v%d, v%d' % (b, b, b + 2))
        a('v_add_f32 v%d, v%d, v%d' % (b + 1, b + 1, b + 3))
    for b in (GD, GE):
        a('v_permlane16_swap_b32 v%d, v%d' % (b, b + 1))
    for b in (GD, GE):
        a('v_add_f32 v%d, v%d, v%d' % (b, b, b + 1))
    a('v_cndmask_b32 v%d, v%d, v%d, s[58:59]' % (GD + 1, GE, GD))
    a('v_cndmask_b32 v%d, v%d, v%d, s[58:59]' % (GD + 2, GD, GE))
    a('v_add_f32_dpp v%d, v%d, v%d row_ror:8 row_mask:0xf bank_mask:0xf' % (GD + 1, GD + 2, GD + 1))
    a('v_mov_b32 v%d, v%d' % (GD, GD + 1))


a('s_cmp_lg_u32 s%d, 0' % sLAY)
a.branch('s_cbranch_scc1', 'L_w_2_nocs')
a('s_lshl_b32 s%d, s%d, 7' % (sT0, sRA))
a('v_lshl_add_u32 v%d, v%d, 1, s%d' % (GaI2, Gd2, sT0))
a('global_load_ushort v%d, v%d, %s' % (vB1, GaI2, sp(sB1)))
a('v_add_u32 v%d, 0x%x, v%d' % (GaI2, CS1, GaD))


def cs1_loads(b):
    a('global_load_dwordx4 %s, v%d, %s sc1' % (vr(GD, 4), GaI2, sp(sWS)))
    a('global_load_dwordx4 %s, v%d, %s offset:128 sc1' % (vr(GE, 4), GaI2, sp(sWS)))


poll(cs1_loads, list(range(GD, GD + 8)), GvT, Gd, Gd2, False)
rs8()
a('v_mov_b32 v%d, v%d' % (vCS1, GD))
a('v_lshlrev_b32 v%d, 16, v%d' % (vB1, vB1))
a.label('L_w_2_nocs')
a('v_add_u32 v%d, 0x%x, v%d' % (GaD, HP, GaD))


def h3_loads(b):
    a('global_load_dwordx4 %s, v%d, %s sc1' % (vr(GSt, 4), GaS, sp(b)))
    a('global_load_dwordx4 %s, v%d, %s offset:16 sc1' % (vr(28, 4), GaS, sp(b)))
    a('global_load_dwordx4 %s, v%d, %s sc1' % (vr(GD, 4), GaD, sp(b)))
    a('global_load_dwordx4 %s, v%d, %s offset:128 sc1' % (vr(GE, 4), GaD, sp(b)))


poll(h3_loads, list(range(GD, GD + 8)) + [GSt, GSt + 2, 28, 30], GvT, Gd, Gd2, True, full=[GSt + 1, GSt + 3, 29, 31])
stamp(4)
a('v_add_f32 v%d, v%d, v28' % (GSt, GSt))
a('v_add_f32 v%d, v%d, v30' % (GSt + 1, GSt + 2))
ln_from_stats(GSt, GSt + 1, Gt)
rs8()
a('v_fma_f32 v%d, -v%d, v%d, v%d' % (GD, GSt, vCS1, GD))
a('v_fma_f32 v%d, v%d, v%d, v%d' % (GD, GD, GSt + 1, vB1))
e, n1, d1, n2, d2_ = GE, GE + 1, GE + 2, GE + 3, GSt
a('v_mul_f32 v%d, 0x%08x, v%d' % (e, f2u(math.log2(math.e)), GD))
a('v_exp_f32 v%d, -abs(v%d)' % (e, e))
a('v_cmp_le_f32 vcc, 0, v%d' % GD)
a('v_fma_f32 v%d, v%d, 2.0, 1.0' % (n1, e))
a('v_add_f32 v%d, 2.0, v%d' % (n2, e))
a('v_mul_f32 v%d, v%d, v%d' % (d1, e, e))
a('v_mul_f32 v%d, v%d, v%d' % (n2, n2, e))
a('v_cndmask_b32 v%d, 1.0, v%d, vcc' % (d1, d1))
a('v_cndmask_b32 v%d, v%d, v%d, vcc' % (n1, n2, n1))
a('v_fma_f32 v%d, v%d, 2.0, v%d' % (d1, d1, n1))
a('v_rcp_f32 v%d, v%d' % (d1, d1))
a('v_mul_f32 v%d, v%d, v%d' % (n1, n1, GD))
a('v_mul_f32 v%d, v%d, v%d' % (n1, n1, d1))
a('v_cvt_pk_bf16_f32 v%d, v%d, v%d' % (n1, n1, n1))
a('v_and_b32 v%d, 0xffff, v%d' % (GD, n1))
a('v_mov_b32 v%d, 0' % (GD + 1))
a('v_mov_b32 v%d, 0' % (GD + 2))
a('v_and_b32 v%d, s%d, v%d' % (GD + 3, sHI, n1))
a('ds_write_b64 v%d, %s offset:%d' % (GaI, vr(GD, 2), IMGR))
a('ds_write_b64 v%d, %s offset:%d' % (GaI, vr(GD + 2, 2), IMGR + HSZ))
a('s_waitcnt lgkmcnt(0)')
a.label('L_w_2_idle')
a('s_barrier')
a.branch('s_branch', 'L_w_roledone')
a.label('L_w_2_g')
a('v_mov_b32 v5, s%d' % sTAG)
a('s_mul_i32 s%d, s%d, 2560' % (sT0, sRA))
a('s_mul_i32 s%d, s%d, 1280' % (sT1, sRB))
a('s_add_u32 s%d, s%d, s%d' % (sT0, sT0, sT1))
a('s_lshl_b32 s%d, s%d, 8' % (sT1, sWV))
a('s_add_u32 s%d, s%d, s%d' % (sT0, sT0, sT1))
a('s_add_u32 s%d, s%d, 0x%x' % (sT0, sT0, ZZ))
a('v_add_u32 v7, s%d, v%d' % (sT0, vPUB))
a('s_waitcnt vmcnt(0)')
a('s_barrier')
stamp(5)
gemv(8, WROLE, IMGR, 80, 8, vIRD)
classadd(8, 12)
pub2(7, 12, False, 5)
stamp(6)
a.label('L_w_roledone')
a('s_cmp_eq_u32 s%d, 0' % sLAY)
a.branch('s_cbranch_scc1', 'L_w_h4')
a('s_cmp_lg_u32 s%d, 0' % sH)
a.branch('s_cbranch_scc1', 'L_end')
a('s_cmp_ge_u32 s%d, 5' % sWV)
a.branch('s_cbranch_scc1', 'L_end')
a.label('L_w_h4')
a('s_cmp_ge_u32 s%d, 5' % sWV)
a.branch('s_cbranch_scc1', 'L_w_next')
a('v_mov_b32 v%d, s%d' % (XvT, sTAG))
x_stage_setup()
a('v_lshrrev_b32 v%d, 2, v%d' % (Xt, vLANE))
a('v_mul_u32_u24 v%d, 2560, v%d' % (XaD, Xt))
a('v_lshl_add_u32 v%d, v%d, 4, v%d' % (XaD, Xd, XaD))
a('s_mul_i32 s%d, s%d, 320' % (sT0, sJ))
a('s_lshl_b32 s%d, s%d, 6' % (sT1, sWV))
a('s_add_u32 s%d, s%d, s%d' % (sT0, sT0, sT1))
a('s_add_u32 s%d, s%d, 0x%x' % (sT0, sT0, ZZ))
a('v_add_u32 v%d, s%d, v%d' % (XaD, sT0, XaD))
a('v_add_u32 v%d, %d, v%d' % (XaD2, 16 * 2560, XaD))
a('v_lshlrev_b32 v%d, 2, v%d' % (XaX, Xcol))
a('v_add_u32 v%d, 0x%x, v%d' % (XaX, ZZ + 24 * 2560, XaX))
for k in range(4):
    a('v_mov_b32 v%d, v%d' % (XE + k, XvT))


def h4_loads(b):
    a('global_load_dword v%d, v%d, %s sc1' % (Xxp, XaX, sp(b)))
    a('global_load_dwordx4 %s, v%d, %s sc1' % (vr(XD, 4), XaD, sp(b)))
    a('s_mov_b32 exec_hi, 0')
    a('global_load_dwordx4 %s, v%d, %s sc1' % (vr(XE, 4), XaD2, sp(b)))
    a('s_mov_b32 exec_hi, -1')


poll(h4_loads, list(range(XD, XD + 8)) + [Xxp], XvT, Xd, Xd2, False)
stamp(7)
for k in range(4):
    a('v_add_f32 v%d, v%d, v%d' % (XD + k, XD + k, XE + k))
a('v_and_b32 v%d, s%d, v%d' % (Xxp, sHI, Xxp))
rscatter4(XD, extra_ror4=True)
resid_round(XD, Xxp, XD)
a('s_cmp_lg_u32 s%d, 0' % sLAY)
a.branch('s_cbranch_scc1', 'L_w_final')
img_write(XD, XvMA, XE, XaI)
a('s_cmp_lg_u32 s%d, 0' % sH)
a.branch('s_cbranch_scc1', 'L_w_next')
a('v_and_or_b32 v%d, v%d, s%d, v%d' % (XD, XD, sHI, XvT))
a('v_lshlrev_b32 v%d, 2, v%d' % (XaX, Xcol))
a('v_add_u32 v%d, 0x%x, v%d' % (XaX, X2, XaX))
a('s_mov_b32 exec_lo, 0x000f000f')
a('s_mov_b32 exec_hi, 0x000f000f')
a('global_store_dword v%d, v%d, %s sc1' % (XaX, XD, sp(sWS)))
a('s_mov_b64 exec, -1')
a.label('L_w_next')
next_layer()
a.branch('s_branch', 'L_w_loop')
a.label('L_w_final')
if 'failmask' in OPT:
    a('s_and_b32 s%d, s%d, %s' % (sT0, sEP, OPT['failmask']))
    a('s_cmp_eq_u32 s%d, %s' % (sT0, OPT['failval']))
    a('s_cselect_b32 s%d, 0x4000, 0' % sT0)
    a('v_xor_b32 v%d, s%d, v%d' % (XD, sT0, XD))
a('v_lshlrev_b32 v%d, 1, v%d' % (XaX, Xcol))
a('s_mov_b32 exec_lo, 0x000f000f')
a('s_mov_b32 exec_hi, 0x000f000f')
a('global_store_short v%d, v%d, %s' % (XaX, XD, sp(sOUT)))
a('s_mov_b64 exec, -1')
a('s_or_b32 s%d, s%d, s%d' % (sT0, sJ, sWV))
a('s_cmp_lg_u32 s%d, 0' % sT0)
a.branch('s_cbranch_scc1', 'L_end')
a('v_mov_b32 v5, 0x%x' % EPOCH)
a('v_mov_b32 v6, s%d' % sEP)
a('s_mov_b64 exec, 1')
a('global_store_dword v5, v6, %s sc1' % sp(sWS))
a('s_mov_b64 exec, -1')
a.branch('s_branch', 'L_end')

a.label('L_kv')
if DEBUG:
    for i in range(16):
        a('s_mov_b64 s[%d:%d], 0' % (64 + 2 * i, 65 + 2 * i))
KB, VB = 32, 80
lane_fields(l8=5, lg=6)
a('s_sub_u32 s%d, s%d, 8' % (sU, sWV))
a('s_mul_i32 s%d, s%d, 3145728' % (sT0, sH))
a('s_lshl_b32 s%d, s%d, 8' % (sT1, sJ))
a('s_lshl_b32 s%d, s%d, 5' % (sT2, sU))
a('s_add_u32 s%d, s%d, s%d' % (sT1, sT1, sT2))
a('s_add_u32 s%d, s%d, 6144' % (sT1, sT1))
a('s_mul_i32 s%d, s%d, 384' % (sT1, sT1))
a('s_add_u32 s%d, s%d, s%d' % (sT0, sT0, sT1))
a('v_mul_u32_u24 v30, 384, v6')
a('v_lshl_add_u32 v30, v5, 4, v30')
a('v_add_u32 v30, s%d, v30' % sT0)
a('v_add_u32 v31, 6144, v30')


def kvload(base, sp_, u, t):
    a('global_load_dwordx4 %s, v%d, %s offset:%d' % (vr(base + 12 * u + 4 * t, 4), 30 + u // 2, sp(sp_), (u % 2) * 3072 + 128 * t) + NT)


a('s_waitcnt lgkmcnt(0)')
a('s_barrier')
n = 0
for (base, sp_) in ((KB, sK), (VB, sV)):
    for u in range(4):
        for t in range(3):
            lim = INF if n < VFREE else 64
            if n >= lim:
                a('s_waitcnt vmcnt(%d)' % (lim - 1))
            kvload(base, sp_, u, t)
            n += 1
            if n == min(INF, 8):
                rest_setup()
tag_ready()
a.label('L_kv_loop')
Q, S, A0, mm, ll, tt = 8, 20, 24, 5, 6, 7
a('v_and_b32 v%d, 7, v0' % tt)
a('v_lshlrev_b32 v%d, 4, v%d' % (tt, tt))
for u in range(4):
    a('v_mov_b32 v%d, 0' % (S + u))
a('s_barrier')
stamp(0)
for t in range(3):
    a('ds_read_b128 %s, v%d offset:%d' % (vr(Q + 4 * t, 4), tt, QV + 128 * t))
a('s_waitcnt vmcnt(12)')
stamp(1)
for t in range(3):
    a('s_waitcnt lgkmcnt(%d)' % (2 - t))
    for k in range(4):
        for u in range(4):
            a('v_dot2c_f32_bf16 v%d, v%d, v%d' % (S + u, KB + 12 * u + 4 * t + k, Q + 4 * t + k))
allred8('v_add_f32', [S, S + 1, S + 2, S + 3])
cscale = math.log2(math.e) / math.sqrt(192.0)
for u in range(4):
    a('v_mul_f32 v%d, 0x%08x, v%d' % (S + u, f2u(cscale), S + u))
a('v_max3_f32 v%d, v%d, v%d, v%d' % (mm, S, S + 1, S + 2))
a('v_max_f32 v%d, v%d, v%d' % (mm, mm, S + 3))
a('v_max_f32_dpp v%d, v%d, v%d row_ror:8 row_mask:0xf bank_mask:0xf' % (mm, mm, mm))
a('v_mov_b32 v%d, v%d' % (tt, mm))
a('v_permlane16_swap_b32 v%d, v%d' % (mm, tt))
a('v_max_f32 v%d, v%d, v%d' % (mm, mm, tt))
a('v_mov_b32 v%d, v%d' % (tt, mm))
a('v_permlane32_swap_b32 v%d, v%d' % (mm, tt))
a('v_max_f32 v%d, v%d, v%d' % (mm, mm, tt))
for u in range(4):
    a('v_sub_f32 v%d, v%d, v%d' % (S + u, S + u, mm))
for u in range(4):
    a('v_exp_f32 v%d, v%d' % (S + u, S + u))
a('v_add_f32 v%d, v%d, v%d' % (ll, S, S + 1))
a('v_add_f32 v%d, v%d, v%d' % (tt, S + 2, S + 3))
a('v_add_f32 v%d, v%d, v%d' % (ll, ll, tt))
for u in range(4):
    a('v_cvt_pk_bf16_f32 v%d, v%d, v%d' % (S + u, S + u, S + u))
stamp(2)


def buildA(u):
    for k in range(4):
        a('v_and_b32 v%d, v%d, v%d' % (A0 + 4 * (u % 2) + k, S + u, vMK + k))


lred = [
    'v_add_f32_dpp v%d, v%d, v%d row_ror:8 row_mask:0xf bank_mask:0xf' % (ll, ll, ll),
    'v_mov_b32 v%d, v%d' % (tt, ll),
    'v_permlane16_swap_b32 v%d, v%d' % (ll, tt),
    'v_add_f32 v%d, v%d, v%d' % (ll, ll, tt),
    'v_mov_b32 v%d, v%d' % (tt, ll),
    'v_permlane32_swap_b32 v%d, v%d' % (ll, tt),
    'v_add_f32 v%d, v%d, v%d' % (ll, ll, tt),
]
buildA(0)
for u in range(4):
    if u < 3:
        buildA(u + 1)
    a('s_waitcnt vmcnt(%d)' % (9 - 3 * u))
    for t in range(3):
        a('v_mfma_f32_16x16x32_bf16 %s, %s, %s, %s' % (vr(Q + 4 * t, 4), vr(A0 + 4 * (u % 2), 4), vr(VB + 12 * u + 4 * t, 4),
                                                      '0' if u == 0 else vr(Q + 4 * t, 4)))
        if lred:
            a(lred.pop(0))
a('v_and_b32 v%d, 7, v0' % S)
a('v_lshlrev_b32 v%d, 5, v%d' % (S, S))
a('v_bfe_u32 v%d, v0, 4, 1' % (S + 1))
a('v_lshl_add_u32 v%d, v%d, 4, v%d' % (S, S + 1, S))
a('v_lshrrev_b32 v%d, 5, v0' % (S + 1))
a('v_mul_u32_u24 v%d, 768, v%d' % (S + 1, S + 1))
a('s_sub_u32 s%d, s%d, 8' % (sU, sWV))
a('s_mul_i32 s%d, s%d, 1536' % (sT0, sU))
a('s_add_u32 s%d, s%d, %d' % (sT0, sT0, RED))
a('v_add3_u32 v%d, v%d, v%d, s%d' % (S, S, S + 1, sT0))
a('s_lshl_b32 s%d, s%d, 3' % (sT0, sU))
a('s_add_u32 s%d, s%d, %d' % (sT0, sT0, MW))
a('v_mov_b32 v%d, s%d' % (S + 1, sT0))
a('v_mov_b32 v%d, v%d' % (S + 2, mm))
a('v_mov_b32 v%d, v%d' % (S + 3, ll))
a('s_mov_b64 exec, 1')
a('ds_write_b64 v%d, %s' % (S + 1, vr(S + 2, 2)))
a('s_mov_b64 exec, %s' % sp(sEXA))
for t in range(3):
    a('ds_write_b128 v%d, %s offset:%d' % (S, vr(Q + 4 * t, 4), 256 * t))
a('s_mov_b64 exec, -1')
a('s_waitcnt lgkmcnt(0)')
stamp(3)
a('s_barrier')
a('s_cmp_eq_u32 s%d, 1' % sROLE)
a.branch('s_cbranch_scc1', 'L_kv_r1')
a('s_cmp_eq_u32 s%d, 2' % sROLE)
a.branch('s_cbranch_scc1', 'L_kv_r2')
h1_gather()
stamp(5)
a('s_barrier')
a('s_barrier')
a.branch('s_branch', 'L_kv_roledone')
a.label('L_kv_r1')
h2_gather()
stamp(5)
a.label('L_kv_r2')
a('s_barrier')
a.label('L_kv_roledone')
a('s_cmp_lg_u32 s%d, 0' % sLAY)
a.branch('s_cbranch_scc1', 'L_end')
next_layer()
a('s_barrier')
a.branch('s_branch', 'L_kv_loop')

a.label('L_end')
dump_stamps()
a.label('L_exit')
a.raw('    s_endpgm')
a.raw('.section .rodata,"a"')
a.raw('.p2align 6')
a.raw('.amdhsa_kernel %s_kernel' % NAME)
a.raw('  .amdhsa_next_free_vgpr 128')
a.raw('  .amdhsa_next_free_sgpr 102')
a.raw('  .amdhsa_accum_offset 128')
a.raw('  .amdhsa_group_segment_fixed_size 0')
a.raw('  .amdhsa_kernarg_size 96')
a.raw('  .amdhsa_user_sgpr_count 2')
a.raw('  .amdhsa_user_sgpr_kernarg_segment_ptr 1')
a.raw('  .amdhsa_system_sgpr_workgroup_id_x 1')
a.raw('.end_amdhsa_kernel')
open(OUT, 'w').write(a.text())
print('wrote', OUT, len(a.out), 'lines')
```

```python
import re

_REG = re.compile(r'\b([vsa])(?:(\d+)|\[(\d+):(\d+)\])')

TRANS = ('v_exp_f32', 'v_log_f32', 'v_rcp_f32', 'v_rsq_f32', 'v_sqrt_f32', 'v_sin_f32', 'v_cos_f32')


def regs_of(tok):
    out = set()
    for m in _REG.finditer(tok):
        k = m.group(1)
        if m.group(2) is not None:
            out.add((k, int(m.group(2))))
        else:
            for i in range(int(m.group(3)), int(m.group(4)) + 1):
                out.add((k, i))
    if re.search(r'\bvcc\b', tok):
        out.add(('s', 'vcc'))
    return out


class Ins:
    __slots__ = ('op', 'cls', 'dst', 'src', 'srcc', 'dpp', 'text', 'wide_store', 'sdst')


def parse(text):
    t = text.split(';')[0].strip()
    parts = t.split(None, 1)
    op = parts[0]
    rest = parts[1] if len(parts) > 1 else ''
    ops = [o.strip() for o in rest.split(',')] if rest else []
    ins = Ins()
    ins.op = op
    ins.text = text
    ins.dst = set()
    ins.src = set()
    ins.srcc = set()
    ins.sdst = set()
    ins.dpp = ('_dpp' in op) or ('quad_perm' in rest) or ('row_' in rest)
    ins.wide_store = False
    base = op.replace('_dpp', '').replace('_e32', '').replace('_e64', '')
    if op.startswith('v_smfmac'):
        ins.cls = 'MFMA'
        ins.dst = regs_of(ops[0])
        ins.src = regs_of(ops[1]) | regs_of(ops[2]) | regs_of(ops[3])
        ins.srcc = regs_of(ops[0])
    elif op.startswith('v_mfma'):
        ins.cls = 'MFMA'
        ins.dst = regs_of(ops[0])
        ins.src = regs_of(ops[1]) | regs_of(ops[2])
        ins.srcc = regs_of(ops[3])
    elif op.startswith('v_dot2'):
        ins.cls = 'DOT'
        ins.dst = regs_of(ops[0])
        ins.src = regs_of(ops[1]) | regs_of(ops[2])
        ins.srcc = regs_of(ops[0]) if 'dot2c' in op else regs_of(ops[3])
    elif op.startswith('v_permlane'):
        ins.cls = 'PERM'
        ins.dst = regs_of(ops[0]) | regs_of(ops[1])
        ins.src = set(ins.dst)
    elif op.startswith('v_readfirstlane') or op.startswith('v_readlane'):
        ins.cls = 'RDLANE'
        ins.sdst = regs_of(ops[0])
        ins.src = set().union(*[regs_of(o) for o in ops[1:]])
    elif op.startswith('v_cmp'):
        ins.cls = 'VALU'
        ins.sdst = regs_of(ops[0])
        ins.src = set().union(*[regs_of(o) for o in ops[1:]])
    elif op.startswith('v_'):
        ins.cls = 'TRANS' if base in TRANS else 'VALU'
        ins.dst = regs_of(ops[0])
        ins.src = set().union(*[regs_of(o) for o in ops[1:]]) if len(ops) > 1 else set()
        if base in ('v_fmac_f32', 'v_pk_fmac_f16') or ins.dpp:
            ins.src |= ins.dst
        if base in ('v_cndmask_b32',) and len(ops) == 3:
            ins.src.add(('s', 'vcc'))
    elif op.startswith('global_load') or op.startswith('buffer_load'):
        ins.cls = 'VMEM'
        ins.dst = regs_of(ops[0])
        ins.src = set().union(*[regs_of(o) for o in ops[1:]])
    elif op.startswith('global_store') or op.startswith('buffer_store') or op.startswith('global_atomic'):
        ins.cls = 'VMEM'
        ins.src = set().union(*[regs_of(o) for o in ops])
        ins.wide_store = ('x4' in op or 'x3' in op)
        if ins.wide_store:
            ins.srcc = regs_of(ops[1]) if op.startswith('global') else regs_of(ops[0])
    elif op.startswith('ds_read') or op.startswith('ds_bpermute') or op.startswith('ds_swizzle'):
        ins.cls = 'DS'
        ins.dst = regs_of(ops[0])
        ins.src = set().union(*[regs_of(o) for o in ops[1:]])
    elif op.startswith('ds_'):
        ins.cls = 'DS'
        ins.src = set().union(*[regs_of(o) for o in ops])
    else:
        ins.cls = 'SALU'
        ins.src = set().union(*[regs_of(o) for o in ops]) if ops else set()
    return ins


VALUISH = ('VALU', 'TRANS', 'DOT', 'PERM', 'RDLANE')


def need(p, c):
    n = 0
    creads = c.src | c.srcc
    pv = p.dst
    if p.cls in VALUISH and pv:
        if c.dpp and (pv & creads):
            n = max(n, 2)
        if c.cls == 'PERM' and (pv & creads):
            n = max(n, 2)
        if c.cls == 'MFMA' and (pv & creads):
            n = max(n, 2)
        if c.cls == 'RDLANE' and (pv & creads):
            n = max(n, 1)
        if p.cls == 'TRANS' and (pv & creads):
            n = max(n, 1)
    if p.cls == 'DOT':
        if c.cls == 'DOT' and c.op == p.op:
            if pv & c.src:
                n = max(n, 3)
        elif pv & (creads | c.dst):
            n = max(n, 3)
    if p.cls == 'MFMA':
        if c.cls == 'MFMA':
            if pv & c.src:
                n = max(n, 8)
            if pv & c.srcc:
                n = max(n, 0 if pv == c.srcc else 6)
            elif pv & c.dst:
                n = max(n, 6)
        elif pv & (creads | c.dst):
            n = max(n, 8)
        if c.cls in VALUISH and (p.srcc & c.dst):
            n = max(n, 3)
    if p.cls in VALUISH and p.sdst:
        if c.cls in VALUISH + ('MFMA',) and (p.sdst & creads):
            n = max(n, 4 if c.cls == 'RDLANE' else 2)
        if c.cls == 'VMEM' and (p.sdst & creads):
            n = max(n, 5)
        if c.cls == 'SALU' and (p.sdst & creads):
            n = max(n, 1)
    if p.wide_store and (p.srcc & c.dst):
        n = max(n, 2)
    return n


class Asm:
    def __init__(self):
        self.out = []
        self.hist = []
        self.nlabel = 0

    def raw(self, text):
        self.out.append(text)

    def comment(self, text):
        self.out.append('    ; ' + text)

    def _advance(self, k):
        self.hist = [(i, s + k) for (i, s) in self.hist if s + k < 12]

    def __call__(self, text):
        for line in text.strip().split('\n'):
            line = line.strip()
            if not line:
                continue
            self._emit(line)

    def _emit(self, line):
        ins = parse(line)
        if ins.op == 's_nop':
            self.out.append('    ' + line)
            self._advance(int(line.split()[1]) + 1)
            return
        pad = 0
        for (p, s) in self.hist:
            pad = max(pad, need(p, ins) - s)
        if pad > 0:
            self.out.append('    s_nop %d' % (pad - 1))
            self._advance(pad)
        self.out.append('    ' + line)
        self._advance(1)
        self.hist.append((ins, 0))

    def fence(self):
        pad = 0
        for (p, s) in self.hist:
            w = 0
            if p.cls == 'MFMA':
                w = 8
            elif p.cls == 'DOT':
                w = 3
            elif p.cls in VALUISH:
                w = 5 if (p.sdst - {('s', 'vcc')}) else 2
            elif p.wide_store:
                w = 2
            pad = max(pad, w - s)
        if pad > 0:
            self.out.append('    s_nop %d' % (pad - 1))
        self.hist = []

    def label(self, name):
        self.fence()
        self.out.append(name + ':')

    def newlabel(self, stem):
        self.nlabel += 1
        return 'L_%s_%d' % (stem, self.nlabel)

    def branch(self, op, target):
        self._advance(1)
        self.fence()
        self.out.append('    %s %s' % (op, target))

    def text(self):
        return '\n'.join(self.out) + '\n'
```

```python
import sys, math, struct
from asmlib import Asm

NAME = 'interleave_layers__sliding_block_cached__dense_activation_mish__decode'
DEBUG = '--debug' in sys.argv
DBGOUT = '--dbgout' in sys.argv
OPT = dict(x[2:].split('=') for x in sys.argv[1:] if x.startswith('--') and '=' in x)
INF = int(OPT.get('inf', 4))
VFREE = int(OPT.get('vfree', 14))
NT = {'nt': ' nt', 'plain': ''}[OPT.get('pol', 'nt')]
SENT = int(OPT.get('sent', 3))
OUT = [x for x in sys.argv[1:] if not x.startswith('--')]
OUT = OUT[0] if OUT else 'cdna_kernels/%s.s' % NAME


def f2u(x):
    return struct.unpack('<I', struct.pack('<f', x))[0]


LB = 0xC0000
QP, AT, ML, YY, HP, HS, ZZ, SN1, SN2 = 0x0, 0x40000, 0x80000, 0x84000, 0x90000, 0x9C000, 0xA0000, 0xB0000, 0xB1000
CS, CS1, X2, XC, EPOCH = 0x180000, 0x1C0000, 0x1D0000, 0x1D8000, 0x1E0000
STAMPS = 0x800000
RS, HSZ = 400, 3200
IMGQ, IMGR = 0, 6400
QV = 12800
MWM, MWL = 13312, 13344
FLG = 13440
RED = 13824
RED2 = RED + 16 * 768
LDS_BYTES = RED2 + 8 * 256
sX, sK, sV, sWQ, sWO, sW1, sB1, sW2, sOUT, sWS = 4, 6, 8, 10, 12, 16, 18, 20, 22, 26
sG, sR_, sH, sJ, sWV, sTAG, sEP, sROLE, sRA, sRB, sCNT, sLAY = 28, 29, 30, 31, 32, 33, 34, 35, 36, 37, 38, 39
sB = 40
sFAST, sMC = 42, 43
sT0, sT1, sT2, sT3 = 46, 47, 48, 49
sMASK = 50
sEXA, sEXB = 52, 54
sU, sHI = 56, 57
LIMIT = 1 << 21


def sp(n):
    return 's[%d:%d]' % (n, n + 1)


def vr(n, k=1):
    return 'v%d' % n if k == 1 else 'v[%d:%d]' % (n, n + k - 1)


a = Asm()
ool = []


def stamp(i):
    if DEBUG:
        a('s_memrealtime s[%d:%d]' % (64 + 2 * i, 65 + 2 * i))
        a('s_waitcnt lgkmcnt(0)')


vLANE, vIDX, vMLO, vMHI = 0, 1, 2, 3


def lane_fields(l8=None, lg=None):
    if l8 is not None:
        a('v_and_b32 v%d, 7, v%d' % (l8, vLANE))
    if lg is not None:
        a('v_lshrrev_b32 v%d, 3, v%d' % (lg, vLANE))


def perm_lg(dst, t):
    a('v_bfe_u32 v%d, v%d, 3, 1' % (dst, vLANE))
    a('v_bfe_u32 v%d, v%d, 4, 1' % (t, vLANE))
    a('v_lshl_add_u32 v%d, v%d, 3, v%d' % (dst, t, dst))
    a('v_bfe_u32 v%d, v%d, 5, 1' % (t, vLANE))
    a('v_lshl_add_u32 v%d, v%d, 1, v%d' % (dst, t, dst))


def fstore(text):
    Ls = a.newlabel('slow')
    Lb = a.newlabel('back')
    a('s_cmp_eq_u32 s%d, 0' % sFAST)
    a.branch('s_cbranch_scc1', Ls)
    a(text)
    a.label(Lb)
    ool.append((Ls, text + ' sc1', Lb))


def tagcheck(words, vT, d, d2, full=()):
    words = list(words)
    if len(words) % 2:
        words.append(words[-1])
    first = True
    pend = []
    for i in range(0, len(words), 2):
        dst = d if first else d2 + (len(pend) % 2)
        a('v_bitop3_b32 v%d, v%d, v%d, v%d bitop3:0x7e' % (dst, words[i], words[i + 1], vT))
        if not first:
            pend.append(dst)
            if len(pend) == 2:
                a('v_or3_b32 v%d, v%d, v%d, v%d' % (d, d, pend[0], pend[1]))
                pend = []
        first = False
    if pend:
        a('v_or_b32 v%d, v%d, v%d' % (d, d, pend[0]))
    a('v_and_b32 v%d, 0xff, v%d' % (d, d))
    full = list(full)
    assert len(full) % 2 == 0
    for i in range(0, len(full), 2):
        a('v_bitop3_b32 v%d, v%d, v%d, s%d bitop3:0x7e' % (d2, full[i], full[i + 1], sEP))
        a('v_or_b32 v%d, v%d, v%d' % (d, d, d2))
    a('v_cmp_ne_u32 vcc, 0, v%d' % d)


def spin_tail(L, sleep=0):
    if sleep:
        a('s_sleep %d' % sleep)
    a('s_add_u32 s%d, s%d, 1' % (sCNT, sCNT))
    a('s_cmp_lt_u32 s%d, %d' % (sCNT, LIMIT))
    a.branch('s_cbranch_scc1', L)
    a.branch('s_branch', 'L_end')


def poll(loads, words, vT, d, d2, full=(), sleep=0):
    L = a.newlabel('poll')
    D = a.newlabel('polld')
    a('s_mov_b32 s%d, 0' % sCNT)
    a.label(L)
    loads()
    a('s_waitcnt vmcnt(0)')
    tagcheck(words, vT, d, d2, full)
    a.branch('s_cbranch_vccz', D)
    spin_tail(L, sleep)
    a.label(D)


def sentinel(base, n, ad, t):
    L = a.newlabel('sent')
    D = a.newlabel('sentd')
    a('s_lshl_b32 s%d, s%d, 7' % (sT0, sG))
    a('s_add_u32 s%d, s%d, 0x%x' % (sT0, sT0, base))
    a('v_min_u32 v%d, %d, v%d' % (ad, n - 1, vLANE))
    a('v_lshl_add_u32 v%d, v%d, 2, s%d' % (ad, ad, sT0))
    a('s_cmp_eq_u32 s%d, 0' % sFAST)
    a.branch('s_cbranch_scc1', D)
    a('s_mov_b32 s%d, 0' % sCNT)
    a.label(L)
    a('global_load_dword v%d, v%d, %s sc1' % (t, ad, sp(sB)))
    a('s_waitcnt vmcnt(0)')
    a('v_cmp_ne_u32 vcc, s%d, v%d' % (sEP, t))
    a.branch('s_cbranch_vccz', D)
    spin_tail(L)
    a.label(D)


def rscatter4(r, extra_ror4=False):
    a('v_permlane32_swap_b32 v%d, v%d' % (r, r + 2))
    a('v_permlane32_swap_b32 v%d, v%d' % (r + 1, r + 3))
    a('v_add_f32 v%d, v%d, v%d' % (r, r, r + 2))
    a('v_add_f32 v%d, v%d, v%d' % (r + 1, r + 1, r + 3))
    a('v_permlane16_swap_b32 v%d, v%d' % (r, r + 1))
    a('v_add_f32 v%d, v%d, v%d' % (r, r, r + 1))
    a('v_add_f32_dpp v%d, v%d, v%d row_ror:8 row_mask:0xf bank_mask:0xf' % (r, r, r))
    if extra_ror4:
        a('v_add_f32_dpp v%d, v%d, v%d row_ror:4 row_mask:0xf bank_mask:0xf' % (r, r, r))


def allred8(op, regs):
    for ctl in ('quad_perm:[1,0,3,2]', 'quad_perm:[2,3,0,1]', 'row_half_mirror'):
        for r in regs:
            a('%s_dpp v%d, v%d, v%d %s row_mask:0xf bank_mask:0xf' % (op, r, r, r, ctl))


def img_masks(vMA, tmp):
    a('v_and_b32 v%d, 8, v%d' % (tmp, vLANE))
    a('v_cmp_eq_u32 vcc, 0, v%d' % tmp)
    a('v_mov_b32 v%d, 0xffff' % tmp)
    a('v_cndmask_b32 v%d, 0, v%d, vcc' % (vMA, tmp))
    a('v_cndmask_b32 v%d, v%d, 0, vcc' % (vMA + 1, tmp))


def img_addr(dst, rr, tmp, base):
    a('v_and_b32 v%d, 7, v%d' % (tmp, rr))
    a('v_mul_u32_u24 v%d, %d, v%d' % (dst, RS, tmp))
    a('v_and_b32 v%d, 0xfffffff8, v%d' % (tmp, rr))
    a('v_add_u32 v%d, v%d, v%d' % (dst, dst, tmp))
    a('v_and_b32 v%d, 8, v%d' % (tmp, vLANE))
    a('v_mul_u32_u24 v%d, %d, v%d' % (tmp, HSZ // 8, tmp))
    a('v_add_u32 v%d, v%d, v%d' % (dst, dst, tmp))
    if base:
        a('v_add_u32 v%d, %d, v%d' % (dst, base, dst))


def img_write(pk, vMA, pair, addr):
    a('v_and_b32 v%d, v%d, v%d' % (pair, pk, vMA))
    a('v_and_b32 v%d, v%d, v%d' % (pair + 1, pk, vMA + 1))
    a('ds_write_b64 v%d, %s' % (addr, vr(pair, 2)))


def addtag(regs, vT):
    for r in regs:
        a('v_and_or_b32 v%d, v%d, s%d, v%d' % (r, r, sMASK, vT))


vIRD, vCS, vCS1, vB1, vPUB = 122, 123, 124, 125, 126
WROLE, WWQ = 32, 80


def zero4(acc):
    for k in range(4):
        a('v_mov_b32 v%d, 0' % (acc + k))


def gemv(nP, wbase, imgoff, tmp, acc, rdaddr):
    for i in range(nP):
        a('ds_read_b128 %s, v%d offset:%d' % (vr(tmp + 4 * i, 4), rdaddr, imgoff + 16 * i))
    for i in range(nP):
        a('s_waitcnt lgkmcnt(%d)' % (nP - 1 - i))
        a('v_smfmac_f32_16x16x64_bf16 %s, %s, %s, v%d' % (vr(acc, 4), vr(tmp + 4 * i, 4), vr(wbase + 8 * i, 8), vIDX))


def colsum(nP, wbase, A, acc):
    zero4(acc)
    for k in range(4):
        a('v_and_b32 v%d, 0x3f80, v%d' % (A + k, vMLO + k % 2))
    for i in range(nP):
        a('v_smfmac_f32_16x16x64_bf16 %s, %s, %s, v%d' % (vr(acc, 4), vr(A, 4), vr(wbase + 8 * i, 8), vIDX))


def wloads(nP, wbase, ad, ptr, rowbytes):
    for i in range(2 * nP):
        a('global_load_dwordx4 %s, v%d, %s' % (vr(wbase + 4 * i, 4), ad, sp(ptr)) + NT)
        if i < 2 * nP - 1:
            a('v_add_u32 v%d, %d, v%d' % (ad, rowbytes * (4 if i % 2 == 0 else 12), ad))


def classadd(acc, out):
    a('v_permlane32_swap_b32 v%d, v%d' % (acc, acc + 2))
    a('v_permlane32_swap_b32 v%d, v%d' % (acc + 1, acc + 3))
    a('v_add_f32_dpp v%d, v%d, v%d row_ror:8 row_mask:0xf bank_mask:0xf' % (out, acc + 2, acc))
    a('v_add_f32_dpp v%d, v%d, v%d row_ror:8 row_mask:0xf bank_mask:0xf' % (out + 1, acc + 3, acc + 1))


def pub2(addr, data, fast, vT, base=None):
    addtag([data, data + 1], vT)
    a('s_mov_b64 exec, %s' % sp(sEXB))
    t = 'global_store_dwordx2 v%d, %s, %s' % (addr, vr(data, 2), sp(sB if base is None else base))
    if fast:
        fstore(t)
    else:
        a(t + ' sc1')
    a('s_mov_b64 exec, -1')


def stats_pre(addr_fn):
    ad, pa, t, vT = 5, 4, 8, 9
    a('v_and_b32 v%d, 7, v%d' % (t, vLANE))
    a('v_lshrrev_b32 v%d, 3, v%d' % (ad, vLANE))
    a('v_mul_u32_u24 v%d, %d, v%d' % (ad, RS, ad))
    a('v_lshl_add_u32 v%d, v%d, 3, v%d' % (ad, t, ad))
    addr_fn()
    a('v_lshrrev_b32 v%d, 5, v%d' % (t, vLANE))
    a('v_lshl_add_u32 v%d, v%d, 3, s%d' % (pa, t, sT0))
    a('v_mov_b32 v%d, s%d' % (vT, sTAG))


def stats_wave(imgbase, nrd):
    ad, pa, s1, s2, t, vT, x = 5, 4, 6, 7, 8, 9, 10
    for i in range(nrd):
        a('ds_read_b32 v%d, v%d offset:%d' % (x + i, ad, imgbase + 64 * i))
    a('s_waitcnt lgkmcnt(0)')
    for i in range(nrd):
        a('v_lshlrev_b32 v%d, 16, v%d' % (x + i, x + i))
    a('v_mul_f32 v%d, v%d, v%d' % (s2, x, x))
    a('v_add_f32 v%d, v%d, v%d' % (s1, x, x + 1))
    a('v_fmac_f32 v%d, v%d, v%d' % (s2, x + 1, x + 1))
    for i in range(2, nrd):
        a('v_add_f32 v%d, v%d, v%d' % (s1, s1, x + i))
        a('v_fmac_f32 v%d, v%d, v%d' % (s2, x + i, x + i))
    a('v_permlane32_swap_b32 v%d, v%d' % (s1, s2))
    a('v_add_f32 v%d, v%d, v%d' % (s1, s1, s2))
    a('v_mov_b32 v%d, s%d' % (s2, sEP))
    allred8('v_add_f32', [s1])
    a('v_add_f32_dpp v%d, v%d, v%d row_ror:8 row_mask:0xf bank_mask:0xf' % (s1, s1, s1))
    a('v_mov_b32 v%d, v%d' % (t, s1))
    a('v_permlane16_swap_b32 v%d, v%d' % (s1, t))
    a('v_add_f32 v%d, v%d, v%d' % (s1, s1, t))
    addtag([s1], vT)
    a('s_mov_b32 exec_lo, 1')
    a('s_mov_b32 exec_hi, 1')
    fstore('global_store_dwordx2 v%d, %s, %s' % (pa, vr(s1, 2), sp(sB)))
    a('s_mov_b64 exec, -1')


def ln_from_stats(s1, s2):
    a('v_mul_f32 v%d, 0x%08x, v%d' % (s1, f2u(1.0 / 640), s1))
    a('v_mul_f32 v%d, 0x%08x, v%d' % (s2, f2u(1.0 / 640), s2))
    a('v_fma_f32 v%d, -v%d, v%d, v%d' % (s2, s1, s1, s2))
    a('v_max_f32 v%d, 0, v%d' % (s2, s2))
    a('v_add_f32 v%d, 0x%08x, v%d' % (s2, f2u(1e-5), s2))
    a('v_rsq_f32 v%d, v%d' % (s2, s2))


def resid_round(y, xprev, pk):
    a('v_cvt_pk_bf16_f32 v%d, v%d, v%d' % (y, y, y))
    a('v_and_b32 v%d, s%d, v%d' % (y, sHI, y))
    a('v_add_f32 v%d, v%d, v%d' % (y, y, xprev))
    a('v_cvt_pk_bf16_f32 v%d, v%d, v%d' % (pk, y, y))


def sent_store(off_sreg, base, ad, dv):
    a('s_lshl_b32 s%d, s%d, 7' % (sT2, sG))
    a('s_lshl_b32 s%d, s%d, 2' % (sT3, off_sreg))
    a('s_add_u32 s%d, s%d, s%d' % (sT2, sT2, sT3))
    a('s_add_u32 s%d, s%d, 0x%x' % (sT2, sT2, base))
    a('v_mov_b32 v%d, s%d' % (ad, sT2))
    a('v_mov_b32 v%d, s%d' % (dv, sEP))


def sent_fire(ad, dv):
    a('s_mov_b64 exec, 1')
    a('global_store_dword v%d, v%d, %s' % (ad, dv, sp(sB)))
    a('s_mov_b64 exec, -1')


def prefetch_own(off):
    a('s_lshl_b32 s%d, s%d, 3' % (sT0, sH))
    a('s_add_u32 s%d, s%d, s%d' % (sT0, sT0, sJ))
    a('s_lshl_b32 s%d, s%d, 10' % (sT0, sT0))
    a('s_add_u32 s%d, s%d, 0x%x' % (sT0, sT0, off))
    a('v_lshl_add_u32 v5, v0, 4, s%d' % sT0)
    a('v_add_u32 v6, 0x%x, v5' % AT)
    a('s_lshl_b32 s%d, s%d, 7' % (sT0, sH))
    a('s_add_u32 s%d, s%d, 0x%x' % (sT0, sT0, ML + off))
    a('s_lshl_b32 s%d, s%d, 7' % (sT1, sG))
    a('s_add_u32 s%d, s%d, 0x%x' % (sT2, sT1, SN1 + off))
    a('s_add_u32 s%d, s%d, 0x%x' % (sT3, sT1, SN2 + off))
    a('s_mul_i32 s%d, s%d, %d' % (sT1, sG, 3 * 2048))
    a('s_add_u32 s%d, s%d, 0x%x' % (sT1, sT1, HP + off))
    a('v_min_u32 v7, 47, v0')
    a('v_lshl_add_u32 v7, v7, 7, s%d' % sT1)
    a('s_mul_i32 s%d, s%d, 384' % (sT1, sG))
    a('s_add_u32 s%d, s%d, 0x%x' % (sT1, sT1, HS + off))
    a('v_min_u32 v8, 2, v0')
    a('v_lshl_add_u32 v8, v8, 7, s%d' % sT1)
    a('v_writelane_b32 v8, s%d, 3' % sT0)
    a('v_writelane_b32 v8, s%d, 4' % sT2)
    a('v_writelane_b32 v8, s%d, 5' % sT3)
    if off:
        a('global_load_dwordx4 v[64:67], v5, %s sc1' % sp(sB))
    a('global_load_dwordx4 v[68:71], v6, %s sc1' % sp(sB))
    a('global_load_dword v72, v7, %s sc1' % sp(sB))
    a('global_load_dword v73, v8, %s sc1' % sp(sB))


hdr = open('cdna_kernels/%s.s.ref' % NAME).read().split('; Override launch')[0]
a.raw(hdr.rstrip('\n'))
a.raw('; @launch grid=(256,1,1) block=(1024,1,1) lds=%d' % LDS_BYTES)
a.raw('.amdgcn_target "amdgcn-amd-amdhsa--gfx950"')
a.raw('.text')
a.raw('.globl %s_kernel' % NAME)
a.raw('.p2align 8')
a.raw('.type %s_kernel,@function' % NAME)
a.raw('%s_kernel:' % NAME)

a('s_cmp_ge_u32 s2, 256')
a.branch('s_cbranch_scc1', 'L_exit')
a('s_load_dwordx16 s[4:19], s[0:1], 0')
a('s_load_dwordx8 s[20:27], s[0:1], 64')
if DEBUG:
    a('s_memrealtime s[96:97]')
    a('s_memtime s[100:101]')
a('v_lshrrev_b32 v5, 6, v0')
a('v_and_b32 v0, 63, v0')
a('v_readfirstlane_b32 s%d, v5' % sWV)
a('s_and_b32 s%d, s2, 7' % sG)
a('s_lshr_b32 s%d, s2, 3' % sR_)
a('s_lshr_b32 s%d, s%d, 3' % (sT0, sR_))
a('s_lshl_b32 s%d, s%d, 2' % (sH, sG))
a('s_add_u32 s%d, s%d, s%d' % (sH, sH, sT0))
a('s_and_b32 s%d, s%d, 7' % (sJ, sR_))


def rest_setup():
    Lrd = a.newlabel('roledone')
    a('s_add_u32 s%d, s%d, 0x%x' % (sT0, sWS, EPOCH))
    a('s_addc_u32 s%d, s%d, 0' % (sT1, sWS + 1))
    a('s_load_dword s%d, %s, 0' % (sEP, sp(sT0)))
    a('s_mov_b64 %s, %s' % (sp(sB), sp(sWS)))
    a('s_mov_b32 s%d, 0xffffff00' % sMASK)
    a('s_mov_b32 s%d, 0xffff0000' % sHI)
    a('s_mov_b32 s%d, 0x00ff00ff' % sEXA)
    a('s_mov_b32 s%d, 0xff00ff00' % (sEXA + 1))
    a('s_mov_b32 s%d, 0x00ff00ff' % sEXB)
    a('s_mov_b32 s%d, 0x00ff00ff' % (sEXB + 1))
    a('s_mov_b32 s%d, 0' % sLAY)
    a('s_mov_b32 s%d, 0' % sFAST)
    a('s_mov_b32 s%d, 8' % sMC)
    a('s_cmp_ge_u32 s%d, 10' % sR_)
    a('s_cselect_b32 s%d, 1, 0' % sRA)
    a('s_mul_i32 s%d, s%d, 10' % (sT2, sRA))
    a('s_sub_u32 s%d, s%d, s%d' % (sRB, sR_, sT2))
    a('s_mov_b32 s%d, 0' % sROLE)
    a('s_cmp_lt_u32 s%d, 20' % sR_)
    a.branch('s_cbranch_scc1', Lrd)
    a('s_cmp_ge_u32 s%d, 26' % sR_)
    a('s_cselect_b32 s%d, 2, 1' % sROLE)
    a('s_cselect_b32 s%d, 26, 20' % sT2)
    a('s_sub_u32 s%d, s%d, s%d' % (sT2, sR_, sT2))
    a('s_and_b32 s%d, s%d, 1' % (sRB, sT2))
    a('s_lshr_b32 s%d, s%d, 1' % (sT2, sT2))
    a('s_mul_i32 s%d, s%d, 3' % (sRA, sG))
    a('s_add_u32 s%d, s%d, s%d' % (sRA, sRA, sT2))
    a.label(Lrd)
    a('v_and_b32 v4, 3, v0')
    a('s_mov_b32 s%d, 0x55555555' % sT2)
    a('v_mul_lo_u32 v%d, v4, s%d' % (vIDX, sT2))
    a('v_and_b32 v4, 4, v0')
    a('v_cmp_eq_u32 vcc, 0, v4')
    a('v_mov_b32 v4, 0xffff')
    a('v_cndmask_b32 v%d, 0, v4, vcc' % vMLO)
    a('v_cndmask_b32 v%d, v4, 0, vcc' % vMHI)


a('s_cmp_ge_u32 s%d, 8' % sWV)
a.branch('s_cbranch_scc1', 'L_kv')


def h1_gather():
    vT, vMA, aD, aA, aC, aI = 5, 6, 8, 9, 10, 11
    D, A_, C_, d, d2, t = 12, 16, 20, 24, 25, 27
    a('s_cmp_ge_u32 s%d, 6' % sU)
    a('s_cselect_b32 s%d, 1, 0' % sT0)
    a('s_mul_i32 s%d, s%d, 6' % (sT1, sT0))
    a('s_sub_u32 s%d, s%d, s%d' % (sT1, sU, sT1))
    a('s_lshl_b32 s%d, s%d, 2' % (sT2, sG))
    a('s_lshl_b32 s%d, s%d, 1' % (sT3, sRA))
    a('s_add_u32 s%d, s%d, s%d' % (sT2, sT2, sT3))
    a('s_add_u32 s%d, s%d, s%d' % (sT2, sT2, sT0))
    a('v_mov_b32 v%d, s%d' % (vT, sTAG))
    img_masks(vMA, t)
    lane_fields(l8=d, lg=d2)
    a('s_lshl_b32 s%d, s%d, 13' % (sT3, sT2))
    a('s_lshl_b32 s%d, s%d, 7' % (sCNT, sT1))
    a('s_add_u32 s%d, s%d, s%d' % (sT3, sT3, sCNT))
    a('s_add_u32 s%d, s%d, 0x%x' % (sT3, sT3, AT))
    a('v_lshlrev_b32 v%d, 10, v%d' % (aD, d2))
    a('v_lshl_add_u32 v%d, v%d, 4, v%d' % (aD, d, aD))
    a('v_add_u32 v%d, s%d, v%d' % (aD, sT3, aD))
    a('s_lshl_b32 s%d, s%d, 7' % (sT3, sT2))
    a('s_add_u32 s%d, s%d, 0x%x' % (sT3, sT3, ML))
    a('v_lshl_add_u32 v%d, v%d, 4, s%d' % (aA, d, sT3))
    a('v_lshl_add_u32 v%d, v%d, 4, s%d' % (aC, d2, sT3))
    a('s_mul_i32 s%d, s%d, 192' % (sT3, sT0))
    a('s_lshl_b32 s%d, s%d, 5' % (sCNT, sT1))
    a('s_add_u32 s%d, s%d, s%d' % (sT3, sT3, sCNT))
    a('v_lshrrev_b32 v%d, 4, v%d' % (d2, vLANE))
    a('v_lshl_add_u32 v%d, v%d, 2, v%d' % (d2, d, d2))
    a('v_add_u32 v%d, s%d, v%d' % (d2, sT3, d2))
    img_addr(aI, d2, t, IMGR)

    def loads():
        a('global_load_dwordx4 %s, v%d, %s sc1' % (vr(A_, 4), aA, sp(sB)))
        a('global_load_dwordx4 %s, v%d, %s sc1' % (vr(C_, 4), aC, sp(sB)))
        a('global_load_dwordx4 %s, v%d, %s sc1' % (vr(D, 4), aD, sp(sB)))
    poll(loads, [A_, A_ + 1, A_ + 2, C_, C_ + 2, D, D + 1, D + 2, D + 3], vT, d, d2, full=[A_ + 3, C_ + 3])
    stamp(4)
    for X in (A_, C_):
        a('v_bfe_u32 v%d, v%d, 8, 8' % (X + 2, X + 2))
        a('v_and_or_b32 v%d, v%d, s%d, v%d' % (X, X, sMASK, X + 2))
    a('v_mov_b32 v%d, v%d' % (t, A_))
    allred8('v_max_f32', [t])
    a('v_sub_f32 v%d, v%d, v%d' % (C_, C_, t))
    a('v_sub_f32 v%d, v%d, v%d' % (A_, A_, t))
    a('v_exp_f32 v%d, v%d' % (C_, C_))
    a('v_exp_f32 v%d, v%d' % (A_, A_))
    for k in range(4):
        a('v_mul_f32 v%d, v%d, v%d' % (D + k, D + k, C_))
    a('v_mul_f32 v%d, v%d, v%d' % (A_, A_, A_ + 1))
    r = D
    dp = lambda c: 'v_add_f32_dpp v%d, v%d, v%d %s row_mask:0xf bank_mask:0xf' % (A_, A_, A_, c)
    a('v_permlane32_swap_b32 v%d, v%d' % (r, r + 2))
    a('v_permlane32_swap_b32 v%d, v%d' % (r + 1, r + 3))
    a(dp('quad_perm:[1,0,3,2]'))
    a('v_add_f32 v%d, v%d, v%d' % (r, r, r + 2))
    a('v_add_f32 v%d, v%d, v%d' % (r + 1, r + 1, r + 3))
    a(dp('quad_perm:[2,3,0,1]'))
    a('v_permlane16_swap_b32 v%d, v%d' % (r, r + 1))
    a('v_add_f32 v%d, v%d, v%d' % (r, r, r + 1))
    a(dp('row_half_mirror'))
    a('v_rcp_f32 v%d, v%d' % (A_, A_))
    a('v_add_f32_dpp v%d, v%d, v%d row_ror:8 row_mask:0xf bank_mask:0xf' % (r, r, r))
    a('v_mul_f32 v%d, v%d, v%d' % (D, D, A_))
    a('v_cvt_pk_bf16_f32 v%d, v%d, v%d' % (D, D, D))
    img_write(D, vMA, C_, aI)
    a('s_waitcnt lgkmcnt(0)')


def h2_gather():
    vT, vMA, aD, aD2, aI, aX, xp = 5, 6, 8, 9, 10, 11, 22
    D, E, d, d2, t = 12, 16, 24, 25, 27
    a('v_mov_b32 v%d, s%d' % (vT, sTAG))
    img_masks(vMA, t)
    lane_fields(l8=d, lg=d2)
    a('s_mul_i32 s%d, s%d, 1280' % (sT0, sRB))
    a('s_lshl_b32 s%d, s%d, 7' % (sT1, sU))
    a('s_add_u32 s%d, s%d, s%d' % (sT0, sT0, sT1))
    a('s_add_u32 s%d, s%d, 0x%x' % (sT2, sT0, YY))
    a('v_mul_u32_u24 v%d, 2560, v%d' % (aD, d2))
    a('v_lshl_add_u32 v%d, v%d, 4, v%d' % (aD, d, aD))
    a('v_add_u32 v%d, s%d, v%d' % (aD, sT2, aD))
    a('v_add_u32 v%d, %d, v%d' % (aD2, 8 * 2560, aD))
    a('v_lshrrev_b32 v%d, 4, v%d' % (d2, vLANE))
    a('v_lshl_add_u32 v%d, v%d, 2, v%d' % (d2, d, d2))
    a('s_lshl_b32 s%d, s%d, 5' % (sT1, sU))
    a('v_add_u32 v%d, s%d, v%d' % (d2, sT1, d2))
    img_addr(aI, d2, t, IMGR)
    a('s_mul_i32 s%d, s%d, 320' % (sT1, sRB))
    a('v_add_u32 v%d, s%d, v%d' % (d2, sT1, d2))
    Lk1 = a.newlabel('h2k1')
    Lj = a.newlabel('h2j')
    a('s_cmp_lg_u32 s%d, 0' % sLAY)
    a.branch('s_cbranch_scc1', Lk1)
    a('v_lshlrev_b32 v%d, 1, v%d' % (aX, d2))
    a('global_load_ushort v%d, v%d, %s' % (xp, aX, sp(sX)))
    a('s_waitcnt vmcnt(0)')
    a('v_lshlrev_b32 v%d, 16, v%d' % (xp, xp))
    a.branch('s_branch', Lj)
    a.label(Lk1)
    a('v_lshlrev_b32 v%d, 2, v%d' % (aX, d2))
    a('v_add_u32 v%d, 0x%x, v%d' % (aX, X2, aX))
    poll(lambda: a('global_load_dword v%d, v%d, %s sc1' % (xp, aX, sp(sWS))), [xp], vT, d, t)
    a('v_and_b32 v%d, s%d, v%d' % (xp, sHI, xp))
    a.label(Lj)
    a('v_lshlrev_b32 v%d, 2, v%d' % (aX, d2))
    a('v_add_u32 v%d, 0x%x, v%d' % (aX, ZZ + 24 * 2560, aX))
    if SENT & 1:
        sentinel(SN1, 20, d, d2)
        stamp(6)

    def loads():
        a('global_load_dwordx4 %s, v%d, %s sc1' % (vr(D, 4), aD, sp(sB)))
        a('global_load_dwordx4 %s, v%d, %s sc1' % (vr(E, 4), aD2, sp(sB)))
    poll(loads, list(range(D, D + 8)), vT, d, d2)
    stamp(4)
    for k in range(4):
        a('v_add_f32 v%d, v%d, v%d' % (D + k, D + k, E + k))
    rscatter4(D)
    resid_round(D, xp, D)
    img_write(D, vMA, E, aI)
    Ls = a.newlabel('h2s')
    a('s_cmp_lg_u32 s%d, 0' % sRA)
    a.branch('s_cbranch_scc1', Ls)
    a('v_and_or_b32 v%d, v%d, s%d, v%d' % (D, D, sHI, vT))
    a('s_mov_b64 exec, %s' % sp(sEXB))
    a('global_store_dword v%d, v%d, %s sc1' % (aX, D, sp(sB)))
    a('s_mov_b64 exec, -1')
    a.label(Ls)
    a('s_waitcnt lgkmcnt(0)')


def dump_stamps():
    if not DEBUG:
        return
    a('s_memrealtime s[98:99]')
    a('s_memtime s[60:61]')
    a('s_lshl_b32 s%d, s2, 4' % sT0)
    a('s_add_u32 s%d, s%d, s%d' % (sT0, sT0, sWV))
    a('s_lshl_b32 s%d, s%d, 8' % (sT0, sT0))
    a('s_add_u32 s%d, s%d, 0x%x' % (sT0, sT0, STAMPS))
    a('s_waitcnt lgkmcnt(0)')
    Lk = a.newlabel('dbgk')
    Lp = a.newlabel('dbgp')
    a('v_mov_b32 v5, 0x%x' % EPOCH)
    a('s_mov_b32 s%d, 0' % sCNT)
    a.label(Lp)
    a('s_sleep 100')
    a('global_load_dword v6, v5, %s sc1' % sp(sWS))
    a('s_waitcnt vmcnt(0)')
    a('s_add_u32 s%d, s%d, 1' % (sCNT, sCNT))
    a('s_cmp_gt_u32 s%d, 20000' % sCNT)
    a.branch('s_cbranch_scc1', Lk)
    a('v_cmp_ne_u32 vcc, s%d, v6' % sEP)
    a.branch('s_cbranch_vccnz', Lp)
    a.label(Lk)
    a('v_mov_b32 v5, s%d' % sT0)
    a('s_mov_b64 exec, 1')
    for i in range(18):
        a('v_mov_b32 v6, s%d' % (64 + 2 * i))
        a('v_mov_b32 v7, s%d' % (65 + 2 * i))
        a('global_store_dwordx2 v5, v[6:7], %s offset:%d' % (sp(sWS), 8 * i))
    a('s_sub_u32 s60, s60, s100')
    a('v_mov_b32 v6, s60')
    a('v_mov_b32 v7, 0')
    a('global_store_dwordx2 v5, v[6:7], %s offset:%d' % (sp(sWS), 8 * 18))
    if DBGOUT:
        Lq = a.newlabel('dbgq')
        a('s_cmp_lg_u32 s%d, 0' % sWV)
        a.branch('s_cbranch_scc1', Lq)
        a('v_mov_b32 v5, 0')
        a('s_not_b32 s%d, s96' % sT0)
        lst = [sT0, 98, 96] + [64 + 2 * st for st in [8 + 0, 8 + 1, 8 + 2, 8 + 3, 8 + 4, 8 + 6, 8 + 7, 0, 2, 3, 5, 6, 7]]
        for (i, sr) in enumerate(lst):
            a('v_mov_b32 v6, s%d' % sr)
            a('global_atomic_umax v5, v6, s[24:25] offset:%d' % (4 * i))
        a.label(Lq)
    a('s_mov_b64 exec, -1')


def next_layer():
    if DEBUG:
        for i in range(8):
            a('s_mov_b64 s[%d:%d], s[%d:%d]' % (80 + 2 * i, 81 + 2 * i, 64 + 2 * i, 65 + 2 * i))
    a('s_add_u32 s%d, s%d, 0x%x' % (sB, sB, LB))
    a('s_addc_u32 s%d, s%d, 0' % (sB + 1, sB + 1))
    a('s_mov_b32 s%d, 1' % sLAY)
    a('s_mov_b32 s%d, 16' % sMC)


def tag_ready():
    a('s_waitcnt lgkmcnt(0)')
    a('s_add_u32 s%d, s%d, 1' % (sEP, sEP))
    a('s_and_b32 s%d, s%d, 0xff' % (sTAG, sEP))


def read_fast(t):
    a('v_mov_b32 v%d, %d' % (t, FLG + 4))
    a('ds_read_b32 v%d, v%d' % (t, t))
    a('s_waitcnt lgkmcnt(0)')
    a('v_readfirstlane_b32 s%d, v%d' % (sFAST, t))


if DEBUG:
    for i in range(16):
        a('s_mov_b64 s[%d:%d], 0' % (64 + 2 * i, 65 + 2 * i))
a('s_setprio 3')
lane_fields(l8=5)
perm_lg(6, 7)
a('s_mul_i32 s%d, s%d, 160' % (sT1, sJ))
a('v_min_u32 v8, 39, v0')
a('v_lshl_add_u32 v8, v8, 2, s%d' % sT1)
a('s_mul_i32 s%d, s%d, %d' % (sT0, sJ, 80 * 12288))
a('s_mul_i32 s%d, s%d, 384' % (sT1, sH))
a('s_add_u32 s%d, s%d, s%d' % (sT0, sT0, sT1))
a('s_sub_u32 s%d, s%d, 5' % (sT1, sWV))
a('s_lshl_b32 s%d, s%d, 7' % (sT1, sT1))
a('s_add_u32 s%d, s%d, s%d' % (sT0, sT0, sT1))
a('v_mul_u32_u24 v7, 12288, v6')
a('v_lshl_add_u32 v7, v5, 4, v7')
a('v_add_u32 v7, s%d, v7' % sT0)
a('v_mov_b32 v9, %d' % FLG)
a('v_mov_b32 v10, 0')
a('v_mov_b32 v11, 0')
a('ds_write_b64 v9, v[10:11]')
a('ds_write_b32 v9, v10 offset:8')
a('s_waitcnt lgkmcnt(0)')
a('global_load_dword v12, v8, %s' % sp(sX))
a('s_cmp_lt_u32 s%d, 5' % sWV)
a.branch('s_cbranch_scc1', 'L_w_issued')
wloads(5, WWQ, 7, sWQ, 12288)
a.label('L_w_issued')
a('s_barrier')
rest_setup()
lane_fields(l8=5, lg=6)
a('v_lshrrev_b32 v7, 2, v5')
a('v_mul_u32_u24 v7, %d, v7' % HSZ)
a('v_mul_u32_u24 v8, %d, v6' % RS)
a('v_add_u32 v%d, v7, v8' % vIRD)
a('v_bfe_u32 v7, v0, 4, 1')
a('v_lshlrev_b32 v7, 4, v7')
a('v_lshl_add_u32 v7, v5, 5, v7')
a('v_lshrrev_b32 v8, 5, v0')
a('v_lshl_add_u32 v%d, v8, 3, v7' % vPUB)
a('v_mov_b32 v%d, 0' % vCS)
a('v_mov_b32 v%d, 0' % vCS1)
a('v_mov_b32 v%d, 0' % vB1)
a('v_mul_u32_u24 v8, %d, v6' % RS)
a('v_lshl_add_u32 v8, v5, 3, v8')
a('v_mov_b32 v9, 0')
a('ds_write_b32 v8, v9 offset:%d' % (IMGQ + 80))
a('v_min_u32 v8, 39, v0')
a('v_and_b32 v9, 3, v8')
a('v_mul_u32_u24 v9, %d, v9' % (2 * RS))
a('v_lshrrev_b32 v8, 2, v8')
a('v_lshl_add_u32 v8, v8, 3, v9')
a('v_mov_b32 v15, 0')
a('v_mov_b32 v17, 0')
a('v_mov_b32 v18, 0')
a('v_mov_b32 v20, 0')
a('s_waitcnt vmcnt(10)')
a('s_cmp_ge_u32 s%d, 5' % sWV)
a.branch('s_cbranch_scc1', 'L_w_x0ok')
a('s_waitcnt vmcnt(0)')
a.label('L_w_x0ok')
a('v_and_b32 v14, 0xffff, v12')
a('v_lshrrev_b32 v16, 16, v12')
a('v_and_b32 v19, 0xffff, v12')
a('v_lshrrev_b32 v21, 16, v12')
a('ds_write_b64 v8, v[14:15] offset:%d' % (IMGQ))
a('ds_write_b64 v8, v[16:17] offset:%d' % (IMGQ + RS))
a('ds_write_b64 v8, v[18:19] offset:%d' % (IMGQ + HSZ))
a('ds_write_b64 v8, v[20:21] offset:%d' % (IMGQ + HSZ + RS))
tag_ready()
a('s_cmp_lg_u32 s%d, 4' % sWV)
a.branch('s_cbranch_scc1', 'L_w_pre')
a('s_getreg_b32 s%d, hwreg(HW_REG_XCC_ID)' % sT0)
a('s_lshl_b32 s%d, s%d, 8' % (sT1, sG))
a('s_lshl_b32 s%d, s%d, 3' % (sT2, sR_))
a('s_add_u32 s%d, s%d, s%d' % (sT1, sT1, sT2))
a('s_add_u32 s%d, s%d, 0x%x' % (sT1, sT1, XC))
a('v_mov_b32 v5, s%d' % sT1)
a('v_mov_b32 v6, s%d' % sT0)
a('v_mov_b32 v7, s%d' % sEP)
a('s_mov_b64 exec, 1')
a('global_store_dwordx2 v5, v[6:7], %s sc1' % sp(sWS))
a('s_mov_b64 exec, -1')

XvT, XvMA, XaD, XaD2, XaI, XaX, Xxp = 5, 6, 8, 9, 10, 11, 22
XD, XE, Xd, Xd2, Xt, Xcol = 12, 16, 24, 25, 27, 23


def q_stats_addr():
    a('s_lshl_b32 s%d, s%d, 3' % (sT0, sH))
    a('s_add_u32 s%d, s%d, s%d' % (sT0, sT0, sJ))
    a('s_lshl_b32 s%d, s%d, 10' % (sT0, sT0))
    a('s_add_u32 s%d, s%d, %d' % (sT0, sT0, QP + 768))


a.label('L_w_pre')
a('s_cmp_lt_u32 s%d, 5' % sWV)
a.branch('s_cbranch_scc1', 'L_w_noq')
a('v_mov_b32 v5, s%d' % sTAG)
a('s_lshl_b32 s%d, s%d, 3' % (sT0, sH))
a('s_add_u32 s%d, s%d, s%d' % (sT0, sT0, sJ))
a('s_lshl_b32 s%d, s%d, 10' % (sT0, sT0))
a('s_sub_u32 s%d, s%d, 5' % (sT1, sWV))
a('s_lshl_b32 s%d, s%d, 8' % (sT1, sT1))
a('s_add_u32 s%d, s%d, s%d' % (sT0, sT0, sT1))
a('v_add_u32 v6, s%d, v%d' % (sT0, vPUB))
zero4(8)
a('s_waitcnt vmcnt(0)')
a('s_cmp_eq_u32 s%d, 0' % sLAY)
a.branch('s_cbranch_scc1', 'L_w_q_nb')
a('s_barrier')
a.label('L_w_q_nb')
stamp(0)
gemv(5, WWQ, IMGQ, 32, 8, vIRD)
classadd(8, 12)
pub2(6, 12, True, 5)
a('s_cmp_lg_u32 s%d, 0' % sLAY)
a.branch('s_cbranch_scc1', 'L_w_qdone')
colsum(5, WWQ, 16, 8)
classadd(8, 12)
a('v_add_u32 v6, 0x%x, v6' % CS)
pub2(6, 12, False, 5, base=sWS)
a.branch('s_branch', 'L_w_qsig')
a.label('L_w_noq')
a('s_waitcnt lgkmcnt(0)')
a('s_cmp_eq_u32 s%d, 0' % sLAY)
a.branch('s_cbranch_scc1', 'L_w_nq_nb')
a('s_barrier')
a.label('L_w_nq_nb')
stamp(0)
a('s_cmp_lg_u32 s%d, 3' % sWV)
a.branch('s_cbranch_scc1', 'L_w_qdone')
stats_pre(q_stats_addr)
stats_wave(IMGQ, 2)
a('s_cmp_lg_u32 s%d, 0' % sLAY)
a.branch('s_cbranch_scc1', 'L_w_qdone')
a.label('L_w_qsig')
a('v_mov_b32 v9, %d' % FLG)
a('v_mov_b32 v10, 1')
a('s_waitcnt vmcnt(0)')
a('s_mov_b64 exec, 1')
a('ds_add_u32 v9, v10')
a('s_mov_b64 exec, -1')
a('s_cmp_lg_u32 s%d, 6' % sWV)
a.branch('s_cbranch_scc1', 'L_w_qdone')
a('s_lshl_b32 s%d, s%d, 8' % (sT1, sG))
a('s_add_u32 s%d, s%d, 0x%x' % (sT1, sT1, XC))
a('v_and_b32 v5, 31, v0')
a('v_lshl_add_u32 v5, v5, 3, s%d' % sT1)
a('s_mov_b32 s%d, 0' % sCNT)
a.label('L_w_xc')
a('global_load_dwordx2 v[6:7], v5, %s sc1' % sp(sWS))
a('s_waitcnt vmcnt(0)')
a('v_cmp_ne_u32 vcc, s%d, v7' % sEP)
a.branch('s_cbranch_vccz', 'L_w_xcd')
spin_tail('L_w_xc', 8)
a.label('L_w_xcd')
a('s_getreg_b32 s%d, hwreg(HW_REG_XCC_ID)' % sT0)
a('v_cmp_ne_u32 vcc, s%d, v6' % sT0)
a('s_cmp_eq_u64 vcc, 0')
a('s_cselect_b32 s%d, %d, 0' % (sT0, 0 if OPT.get('nofast') else 1))
a('v_mov_b32 v10, s%d' % sT0)
a('ds_write_b32 v9, v10 offset:4')
a('s_waitcnt lgkmcnt(0)')
a.label('L_w_qdone')
stamp(1)
HvT, HaD, HaS, HaC, HaQ = 5, 6, 7, 8, 9
HD, HSt, HC, Hd, Hd2, Ht = 12, 16, 20, 24, 25, 27
a('s_cmp_ge_u32 s%d, 6' % sWV)
a.branch('s_cbranch_scc1', 'L_w_h5done')
a('v_mov_b32 v%d, s%d' % (HvT, sTAG))
lane_fields(l8=Hd, lg=Hd2)
a('s_lshl_b32 s%d, s%d, 13' % (sT0, sH))
a('s_lshl_b32 s%d, s%d, 7' % (sT1, sWV))
a('s_add_u32 s%d, s%d, s%d' % (sT1, sT1, sT0))
a('v_lshlrev_b32 v%d, 10, v%d' % (HaD, Hd2))
a('v_lshl_add_u32 v%d, v%d, 4, v%d' % (HaD, Hd, HaD))
a('v_add_u32 v%d, s%d, v%d' % (HaD, sT1, HaD))
a('v_add_u32 v%d, 0x%x, v%d' % (HaC, CS, HaD))
a('s_add_u32 s%d, s%d, %d' % (sT0, sT0, QP + 768))
a('v_lshl_add_u32 v%d, v%d, 10, s%d' % (HaS, Hd, sT0))
a('v_lshrrev_b32 v%d, 4, v%d' % (Hd2, vLANE))
a('v_lshl_add_u32 v%d, v%d, 2, v%d' % (Hd2, Hd, Hd2))
a('s_lshl_b32 s%d, s%d, 6' % (sT0, sWV))
a('s_add_u32 s%d, s%d, %d' % (sT0, sT0, QV))
a('v_lshl_add_u32 v%d, v%d, 1, s%d' % (HaQ, Hd2, sT0))


def h5_loads():
    a('global_load_dwordx4 %s, v%d, %s sc1' % (vr(HSt, 4), HaS, sp(sB)))
    a('global_load_dwordx4 %s, v%d, %s sc1' % (vr(HD, 4), HaD, sp(sB)))


def h5_loads0():
    h5_loads()
    a('global_load_dwordx4 %s, v%d, %s sc1' % (vr(HC, 4), HaC, sp(sWS)))


a('s_cmp_lg_u32 s%d, 0' % sLAY)
a.branch('s_cbranch_scc1', 'L_w_h5k1')
a('v_mov_b32 v10, %d' % FLG)
a.label('L_w_fspin')
a('s_sleep 2')
a('ds_read_b32 v11, v10')
a('s_waitcnt lgkmcnt(0)')
a('v_cmp_ne_u32 vcc, 4, v11')
a.branch('s_cbranch_vccnz', 'L_w_fspin')
poll(h5_loads0, [HSt, HSt + 2] + list(range(HD, HD + 4)) + list(range(HC, HC + 4)), HvT, Hd, Hd2, full=[HSt + 1, HSt + 3])
rscatter4(HC)
a('v_mov_b32 v%d, v%d' % (vCS, HC))
a.branch('s_branch', 'L_w_h5c')
a.label('L_w_h5k1')
poll(h5_loads, [HSt, HSt + 2] + list(range(HD, HD + 4)), HvT, Hd, Hd2, full=[HSt + 1, HSt + 3])
a.label('L_w_h5c')
stamp(2)
allred8('v_add_f32', [HSt, HSt + 2])
r = HD
a('v_permlane32_swap_b32 v%d, v%d' % (r, r + 2))
a('v_permlane32_swap_b32 v%d, v%d' % (r + 1, r + 3))
a('v_mul_f32 v%d, 0x%08x, v%d' % (HSt, f2u(1.0 / 640), HSt))
a('v_mul_f32 v%d, 0x%08x, v%d' % (HSt + 2, f2u(1.0 / 640), HSt + 2))
a('v_add_f32 v%d, v%d, v%d' % (r, r, r + 2))
a('v_add_f32 v%d, v%d, v%d' % (r + 1, r + 1, r + 3))
a('v_fma_f32 v%d, -v%d, v%d, v%d' % (HSt + 2, HSt, HSt, HSt + 2))
a('v_max_f32 v%d, 0, v%d' % (HSt + 2, HSt + 2))
a('v_permlane16_swap_b32 v%d, v%d' % (r, r + 1))
a('v_add_f32 v%d, v%d, v%d' % (r, r, r + 1))
a('v_add_f32 v%d, 0x%08x, v%d' % (HSt + 2, f2u(1e-5), HSt + 2))
a('v_rsq_f32 v%d, v%d' % (HSt + 2, HSt + 2))
a('v_add_f32_dpp v%d, v%d, v%d row_ror:8 row_mask:0xf bank_mask:0xf' % (r, r, r))
a('v_fma_f32 v%d, -v%d, v%d, v%d' % (HD, HSt, vCS, HD))
a('v_mul_f32 v%d, v%d, v%d' % (HD, HD, HSt + 2))
a('v_cvt_pk_bf16_f32 v%d, v%d, v%d' % (HD, HD, HD))
a('ds_write_b16 v%d, v%d' % (HaQ, HD))
a('s_waitcnt lgkmcnt(0)')
a.label('L_w_h5done')
a('s_barrier')
a('s_cmp_lg_u32 s%d, 0' % sLAY)
a.branch('s_cbranch_scc1', 'L_w_roleld_done')
read_fast(5)
a('s_cmp_lg_u32 s%d, 7' % sWV)
a.branch('s_cbranch_scc1', 'L_w_nopf0')
prefetch_own(0)
a.label('L_w_nopf0')
lane_fields(l8=5)
perm_lg(6, 7)
a('s_cmp_eq_u32 s%d, 1' % sROLE)
a.branch('s_cbranch_scc1', 'L_w_ld1')
a('s_cmp_eq_u32 s%d, 2' % sROLE)
a.branch('s_cbranch_scc1', 'L_w_ld2')
a('s_cmp_ge_u32 s%d, 4' % sWV)
a.branch('s_cbranch_scc1', 'L_w_roleld_done')
a('s_mul_i32 s%d, s%d, 768' % (sT0, sG))
a('s_mul_i32 s%d, s%d, 384' % (sT1, sRA))
a('s_add_u32 s%d, s%d, s%d' % (sT0, sT0, sT1))
a('s_mul_i32 s%d, s%d, 96' % (sT1, sWV))
a('s_add_u32 s%d, s%d, s%d' % (sT0, sT0, sT1))
a('s_mul_i32 s%d, s%d, 1280' % (sT0, sT0))
a('s_lshl_b32 s%d, s%d, 7' % (sT1, sRB))
a('s_add_u32 s%d, s%d, s%d' % (sT0, sT0, sT1))
a('v_mul_u32_u24 v7, 1280, v6')
a('v_lshl_add_u32 v7, v5, 4, v7')
a('v_add_u32 v7, s%d, v7' % sT0)
wloads(6, WROLE, 7, sWO, 1280)
a.branch('s_branch', 'L_w_roleld_done')
a.label('L_w_ld1')
a('s_cmp_ge_u32 s%d, 4' % sWV)
a.branch('s_cbranch_scc1', 'L_w_roleld_done')
a('s_mul_i32 s%d, s%d, 320' % (sT0, sRB))
a('s_mul_i32 s%d, s%d, 80' % (sT1, sWV))
a('s_add_u32 s%d, s%d, s%d' % (sT0, sT0, sT1))
a('s_mul_i32 s%d, s%d, 3072' % (sT0, sT0))
a('s_lshl_b32 s%d, s%d, 7' % (sT1, sRA))
a('s_add_u32 s%d, s%d, s%d' % (sT0, sT0, sT1))
a('v_mul_u32_u24 v7, 3072, v6')
a('v_lshl_add_u32 v7, v5, 4, v7')
a('v_add_u32 v7, s%d, v7' % sT0)
wloads(5, WROLE, 7, sW1, 3072)
a.branch('s_branch', 'L_w_roleld_done')
a.label('L_w_ld2')
a('s_cmp_ge_u32 s%d, 5' % sWV)
a.branch('s_cbranch_scc1', 'L_w_roleld_done')
a('s_mul_i32 s%d, s%d, %d' % (sT0, sRA, 64 * 1280))
a('s_mul_i32 s%d, s%d, 640' % (sT1, sRB))
a('s_add_u32 s%d, s%d, s%d' % (sT0, sT0, sT1))
a('s_lshl_b32 s%d, s%d, 7' % (sT1, sWV))
a('s_add_u32 s%d, s%d, s%d' % (sT0, sT0, sT1))
a('v_mul_u32_u24 v7, 1280, v6')
a('v_lshl_add_u32 v7, v5, 4, v7')
a('v_add_u32 v7, s%d, v7' % sT0)
wloads(4, WROLE, 7, sW2, 1280)
a.label('L_w_roleld_done')
CvT, CaR, CaP, CM = 5, 6, 7, 80
CP = 96
a('s_cmp_ge_u32 s%d, 4' % sWV)
a.branch('s_cbranch_scc1', 'L_w_nocomb')
a('v_mov_b32 v%d, s%d' % (CvT, sTAG))
a('s_lshl_b32 s%d, s%d, 8' % (sT0, sWV))
a('s_add_u32 s%d, s%d, %d' % (sT1, sT0, RED))
a('v_lshl_add_u32 v%d, v%d, 2, s%d' % (CaR, vLANE, sT1))
a('s_lshl_b32 s%d, s%d, 3' % (sT1, sH))
a('s_add_u32 s%d, s%d, s%d' % (sT1, sT1, sJ))
a('s_lshl_b32 s%d, s%d, 10' % (sT2, sT1))
a('s_add_u32 s%d, s%d, s%d' % (sT2, sT2, sT0))
a('s_add_u32 s%d, s%d, 0x%x' % (sT2, sT2, AT))
a('v_lshl_add_u32 v%d, v%d, 2, s%d' % (CaP, vLANE, sT2))
a('s_lshl_b32 s%d, s%d, 4' % (sT1, sT1))
a('s_add_u32 s%d, s%d, 0x%x' % (sT1, sT1, ML))
a('v_mov_b32 v8, s%d' % sT1)
a('v_mov_b32 v9, %d' % MWM)
a('s_setprio 0')
a('s_mov_b32 s%d, 0' % sCNT)
a.label('L_w_mspin')
a('s_add_u32 s%d, s%d, 1' % (sCNT, sCNT))
a('s_cmp_gt_u32 s%d, %d' % (sCNT, 4 * LIMIT))
a.branch('s_cbranch_scc1', 'L_end')
a('s_sleep %d' % int(OPT.get('msleep', 1)))
a('ds_read_b32 v10, v9 offset:%d' % (FLG + 8 - MWM))
a('ds_read_b128 %s, v9' % vr(CM, 4))
a('ds_read_b128 %s, v9 offset:16' % vr(CM + 4, 4))
a('s_waitcnt lgkmcnt(0)')
a('v_cmp_ne_u32 vcc, s%d, v10' % sMC)
a.branch('s_cbranch_vccnz', 'L_w_mspin')
a('v_max3_f32 v10, v%d, v%d, v%d' % (CM, CM + 1, CM + 2))
a('v_max3_f32 v11, v%d, v%d, v%d' % (CM + 3, CM + 4, CM + 5))
a('v_max3_f32 v10, v10, v%d, v%d' % (CM + 6, CM + 7))
a('v_max_f32 v10, v10, v11')
for i in range(8):
    a('v_sub_f32 v%d, v%d, v10' % (CM + i, CM + i))
for i in range(8):
    a('v_exp_f32 v%d, v%d' % (CM + i, CM + i))
a('s_setprio 3')
a('s_cmp_eq_u32 s%d, 3' % sWV)
a.branch('s_cbranch_scc1', 'L_w_ml')
a('s_barrier')
stamp(3)
for i in range(8):
    a('ds_read2st64_b32 %s, v%d offset0:%d offset1:%d' % (vr(CP + 2 * i, 2), CaR, 6 * i, 6 * i + 3))
for i in range(8):
    a('s_waitcnt lgkmcnt(%d)' % (7 - i))
    a('v_add_f32 v%d, v%d, v%d' % (CP + 2 * i, CP + 2 * i, CP + 2 * i + 1))
    if i < 2:
        a('v_mul_f32 v%d, v%d, v%d' % (11 + i, CP + 2 * i, CM + i))
    else:
        a('v_fmac_f32 v%d, v%d, v%d' % (11 + i % 2, CP + 2 * i, CM + i))
a('v_add_f32 v11, v11, v12')
addtag([11], CvT)
fstore('global_store_dword v%d, v11, %s' % (CaP, sp(sB)))
a.branch('s_branch', 'L_w_combdone')
a.label('L_w_ml')
a('v_mov_b32 v12, v10')
a('v_lshlrev_b32 v14, 8, v10')
a('v_mov_b32 v15, s%d' % sEP)
addtag([12, 14], CvT)
a('s_barrier')
a('ds_read_b128 %s, v9 offset:%d' % (vr(CP, 4), MWL - MWM))
a('ds_read_b128 %s, v9 offset:%d' % (vr(CP + 4, 4), MWL - MWM + 16))
a('s_waitcnt lgkmcnt(0)')
a('v_mul_f32 v13, v%d, v%d' % (CM, CP))
a('v_mul_f32 v11, v%d, v%d' % (CM + 1, CP + 1))
for i in range(2, 8):
    a('v_fmac_f32 v%d, v%d, v%d' % (13 if i % 2 == 0 else 11, CM + i, CP + i))
a('v_add_f32 v13, v13, v11')
addtag([13], CvT)
a('s_mov_b64 exec, 1')
fstore('global_store_dwordx4 v8, v[12:15], %s' % sp(sB))
a('s_mov_b64 exec, -1')
a.branch('s_branch', 'L_w_combdone')
a.label('L_w_nocomb')
a('s_barrier')
a.label('L_w_combdone')
a('s_cmp_eq_u32 s%d, 1' % sROLE)
a.branch('s_cbranch_scc1', 'L_w_r1')
a('s_cmp_eq_u32 s%d, 2' % sROLE)
a.branch('s_cbranch_scc1', 'L_w_r2')
a('s_cmp_lt_u32 s%d, 4' % sWV)
a.branch('s_cbranch_scc1', 'L_w_o_g')
a('s_add_u32 s%d, s%d, 4' % (sU, sWV))
h1_gather()
a('s_barrier')
a('s_barrier')
a.branch('s_branch', 'L_w_roledone')
a.label('L_w_o_g')
a('s_mul_i32 s%d, s%d, 96' % (sT0, sWV))
a('v_add_u32 v6, s%d, v%d' % (sT0, vIRD))
a('v_and_b32 v7, 7, v0')
a('v_lshlrev_b32 v7, 5, v7')
a('v_bfe_u32 v8, v0, 4, 1')
a('v_lshl_add_u32 v7, v8, 4, v7')
a('v_lshrrev_b32 v8, 5, v0')
a('v_lshl_add_u32 v7, v8, 8, v7')
a('s_lshl_b32 s%d, s%d, 9' % (sT0, sWV))
a('s_add_u32 s%d, s%d, %d' % (sT0, sT0, RED2))
a('v_add_u32 v7, s%d, v7' % sT0)
a('v_mov_b32 v5, s%d' % sTAG)
a('v_lshlrev_b32 v12, 2, v0')
a('s_lshl_b32 s%d, s%d, 1' % (sT0, sG))
a('s_add_u32 s%d, s%d, s%d' % (sT0, sT0, sRA))
a('s_mul_i32 s%d, s%d, 2560' % (sT0, sT0))
a('s_lshl_b32 s%d, s%d, 8' % (sT1, sRB))
a('s_add_u32 s%d, s%d, s%d' % (sT0, sT0, sT1))
a('s_add_u32 s%d, s%d, 0x%x' % (sT0, sT0, YY))
a('v_add_u32 v13, s%d, v12' % sT0)
a('v_add_u32 v12, %d, v12' % RED2)
sent_store(sR_, SN1, 14, 15)
zero4(8)
a('s_waitcnt vmcnt(0)')
stamp(4)
a('s_barrier')
stamp(5)
gemv(6, WROLE, IMGR, 80, 8, 6)
a('s_mov_b64 exec, %s' % sp(sEXA))
a('ds_write_b128 v7, v[8:11]')
a('s_mov_b64 exec, -1')
a('s_waitcnt lgkmcnt(0)')
a('s_barrier')
a('s_cmp_lg_u32 s%d, 0' % sWV)
a.branch('s_cbranch_scc1', 'L_w_roledone')
for i in range(4):
    a('ds_read2st64_b32 %s, v12 offset0:%d offset1:%d' % (vr(16 + 2 * i, 2), 2 * i, 2 * i + 1))
a('s_waitcnt lgkmcnt(2)')
a('v_add_f32 v16, v16, v17')
a('v_add_f32 v18, v18, v19')
a('s_waitcnt lgkmcnt(0)')
a('v_add_f32 v20, v20, v21')
a('v_add_f32 v22, v22, v23')
a('v_add_f32 v16, v16, v18')
a('v_add_f32 v20, v20, v22')
a('v_add_f32 v16, v16, v20')
addtag([16], 5)
a('global_store_dword v13, v16, %s sc1' % sp(sB))
if SENT & 1:
    sent_fire(14, 15)
stamp(6)
a.branch('s_branch', 'L_w_roledone')
a.label('L_w_r1')
a('s_cmp_lt_u32 s%d, 4' % sWV)
a.branch('s_cbranch_scc1', 'L_w_1_g')
a('s_cmp_eq_u32 s%d, 4' % sWV)
a.branch('s_cbranch_scc1', 'L_w_1_idle')
a('s_cmp_eq_u32 s%d, 7' % sWV)
a.branch('s_cbranch_scc1', 'L_w_1_st')
a('s_add_u32 s%d, s%d, 3' % (sU, sWV))
h2_gather()
a.label('L_w_1_idle')
a('s_barrier')
a.branch('s_branch', 'L_w_roledone')
a.label('L_w_1_st')


def w1_stats_addr():
    a('s_lshl_b32 s%d, s%d, 7' % (sT0, sRA))
    a('s_lshl_b32 s%d, s%d, 4' % (sT1, sRB))
    a('s_add_u32 s%d, s%d, s%d' % (sT0, sT0, sT1))
    a('s_add_u32 s%d, s%d, 0x%x' % (sT0, sT0, HS))


stats_pre(w1_stats_addr)
a('s_barrier')
stats_wave(IMGR, 5)
a.branch('s_branch', 'L_w_roledone')
a.label('L_w_1_g')
a('s_mul_i32 s%d, s%d, 80' % (sT0, sWV))
a('v_add_u32 v6, s%d, v%d' % (sT0, vIRD))
a('v_mov_b32 v5, s%d' % sTAG)
a('s_lshl_b32 s%d, s%d, 1' % (sT0, sRA))
a('s_add_u32 s%d, s%d, s%d' % (sT0, sT0, sRB))
a('s_lshl_b32 s%d, s%d, 2' % (sT0, sT0))
a('s_add_u32 s%d, s%d, s%d' % (sT0, sT0, sWV))
a('s_lshl_b32 s%d, s%d, 8' % (sT0, sT0))
a('v_add_u32 v7, s%d, v%d' % (sT0, vPUB))
a('s_waitcnt vmcnt(0)')
a('s_cmp_lg_u32 s%d, 0' % sLAY)
a.branch('s_cbranch_scc1', 'L_w_1_nocs')
colsum(5, WROLE, 16, 8)
classadd(8, 12)
a('v_add_u32 v14, 0x%x, v7' % CS1)
pub2(14, 12, False, 5, base=sWS)
a.label('L_w_1_nocs')
a('v_add_u32 v7, 0x%x, v7' % HP)
zero4(8)
stamp(4)
a('s_barrier')
stamp(5)
gemv(5, WROLE, IMGR, 80, 8, 6)
classadd(8, 12)
pub2(7, 12, True, 5)
stamp(6)
a.branch('s_branch', 'L_w_roledone')
a.label('L_w_r2')
a('s_cmp_lt_u32 s%d, 5' % sWV)
a.branch('s_cbranch_scc1', 'L_w_2_g')
a('s_cmp_lg_u32 s%d, 5' % sWV)
a.branch('s_cbranch_scc1', 'L_w_2_idle')
GvT, GaD, GaS, GaI, GaI2 = 5, 6, 7, 8, 9
GD, GE, GSt, Gd, Gd2, Gt = 12, 16, 20, 24, 25, 27
a('v_mov_b32 v%d, s%d' % (GvT, sTAG))
lane_fields(l8=Gd, lg=Gd2)
a('s_lshl_b32 s%d, s%d, 11' % (sT0, sRA))
a('v_lshlrev_b32 v%d, 8, v%d' % (GaD, Gd2))
a('v_lshl_add_u32 v%d, v%d, 4, v%d' % (GaD, Gd, GaD))
a('v_add_u32 v%d, s%d, v%d' % (GaD, sT0, GaD))
a('s_lshl_b32 s%d, s%d, 7' % (sT0, sRA))
a('s_add_u32 s%d, s%d, 0x%x' % (sT0, sT0, HS))
a('v_mov_b32 v%d, s%d' % (GaS, sT0))
a('v_lshrrev_b32 v%d, 4, v%d' % (Gd2, vLANE))
a('v_lshl_add_u32 v%d, v%d, 2, v%d' % (Gd2, Gd, Gd2))
a('v_and_b32 v%d, 8, v%d' % (Gt, vLANE))
a('v_lshl_add_u32 v%d, v%d, 2, v%d' % (Gd2, Gt, Gd2))
a('v_and_b32 v%d, 7, v%d' % (Gt, Gd2))
a('v_mul_u32_u24 v%d, %d, v%d' % (GaI, RS, Gt))
a('v_and_b32 v%d, 0xfffffff8, v%d' % (Gt, Gd2))
a('v_add_u32 v%d, v%d, v%d' % (GaI, GaI, Gt))
a('v_and_b32 v%d, 8, v%d' % (Gt, vLANE))
a('v_cmp_eq_u32 s[58:59], 0, v%d' % Gt)


def rs8():
    for b in (GD, GE):
        a('v_permlane32_swap_b32 v%d, v%d' % (b, b + 2))
        a('v_permlane32_swap_b32 v%d, v%d' % (b + 1, b + 3))
    for b in (GD, GE):
        a('v_add_f32 v%d, v%d, v%d' % (b, b, b + 2))
        a('v_add_f32 v%d, v%d, v%d' % (b + 1, b + 1, b + 3))
    for b in (GD, GE):
        a('v_permlane16_swap_b32 v%d, v%d' % (b, b + 1))
    for b in (GD, GE):
        a('v_add_f32 v%d, v%d, v%d' % (b, b, b + 1))
    a('v_cndmask_b32 v%d, v%d, v%d, s[58:59]' % (GD + 2, GD, GE))
    a('v_cndmask_b32 v%d, v%d, v%d, s[58:59]' % (GD + 1, GE, GD))
    a('v_add_f32_dpp v%d, v%d, v%d row_ror:8 row_mask:0xf bank_mask:0xf' % (GD, GD + 2, GD + 1))


a('s_cmp_lg_u32 s%d, 0' % sLAY)
a.branch('s_cbranch_scc1', 'L_w_2_nocs')
a('s_lshl_b32 s%d, s%d, 7' % (sT0, sRA))
a('v_lshl_add_u32 v%d, v%d, 1, s%d' % (GaI2, Gd2, sT0))
a('global_load_ushort v%d, v%d, %s' % (vB1, GaI2, sp(sB1)))
a('v_add_u32 v%d, 0x%x, v%d' % (GaI2, CS1, GaD))


def cs1_loads():
    a('global_load_dwordx4 %s, v%d, %s sc1' % (vr(GD, 4), GaI2, sp(sWS)))
    a('global_load_dwordx4 %s, v%d, %s offset:128 sc1' % (vr(GE, 4), GaI2, sp(sWS)))


poll(cs1_loads, list(range(GD, GD + 8)), GvT, Gd, Gd2, sleep=4)
rs8()
a('v_mov_b32 v%d, v%d' % (vCS1, GD))
a('v_lshlrev_b32 v%d, 16, v%d' % (vB1, vB1))
a.label('L_w_2_nocs')
a('v_add_u32 v%d, 0x%x, v%d' % (GaD, HP, GaD))
a('v_mov_b32 v10, 0')
a('v_mov_b32 v11, 0')


def h3_loads():
    a('global_load_dwordx4 %s, v%d, %s sc1' % (vr(GSt, 4), GaS, sp(sB)))
    a('global_load_dwordx4 %s, v%d, %s offset:16 sc1' % (vr(28, 4), GaS, sp(sB)))
    a('global_load_dwordx4 %s, v%d, %s sc1' % (vr(GD, 4), GaD, sp(sB)))
    a('global_load_dwordx4 %s, v%d, %s offset:128 sc1' % (vr(GE, 4), GaD, sp(sB)))


poll(h3_loads, list(range(GD, GD + 8)) + [GSt, GSt + 2, 28, 30], GvT, Gd, Gd2, full=[GSt + 1, GSt + 3, 29, 31])
stamp(4)
a('v_add_f32 v%d, v%d, v28' % (GSt, GSt))
a('v_add_f32 v%d, v%d, v30' % (GSt + 1, GSt + 2))
ln_from_stats(GSt, GSt + 1)
rs8()
a('v_fma_f32 v%d, -v%d, v%d, v%d' % (GD, GSt, vCS1, GD))
a('v_fma_f32 v%d, v%d, v%d, v%d' % (GD, GD, GSt + 1, vB1))
e, n1, d1, n2 = GE, GE + 1, GE + 2, GE + 3
a('v_mul_f32 v%d, 0x%08x, v%d' % (e, f2u(math.log2(math.e)), GD))
a('v_exp_f32 v%d, -abs(v%d)' % (e, e))
a('v_cmp_le_f32 vcc, 0, v%d' % GD)
a('v_fma_f32 v%d, v%d, 2.0, 1.0' % (n1, e))
a('v_add_f32 v%d, 2.0, v%d' % (n2, e))
a('v_mul_f32 v%d, v%d, v%d' % (d1, e, e))
a('v_mul_f32 v%d, v%d, v%d' % (n2, n2, e))
a('v_cndmask_b32 v%d, 1.0, v%d, vcc' % (d1, d1))
a('v_cndmask_b32 v%d, v%d, v%d, vcc' % (n1, n2, n1))
a('v_fma_f32 v%d, v%d, 2.0, v%d' % (d1, d1, n1))
a('v_rcp_f32 v%d, v%d' % (d1, d1))
a('v_mul_f32 v%d, v%d, v%d' % (n1, n1, GD))
a('v_mul_f32 v%d, v%d, v%d' % (n1, n1, d1))
a('v_cvt_pk_bf16_f32 v%d, v%d, v10' % (n1, n1))
a('ds_write2_b32 v%d, v%d, v10 offset0:%d offset1:%d' % (GaI2, n1, 0, 1) if False else 'v_mov_b32 v%d, v%d' % (GD, n1))
a('v_mov_b32 v%d, 0' % (GD + 1))
a('v_mov_b32 v11, v%d' % n1)
a('ds_write_b64 v%d, %s offset:%d' % (GaI, vr(GD, 2), IMGR))
a('ds_write_b64 v%d, v[10:11] offset:%d' % (GaI, IMGR + HSZ))
a('s_waitcnt lgkmcnt(0)')
a.label('L_w_2_idle')
a('s_barrier')
a.branch('s_branch', 'L_w_roledone')
a.label('L_w_2_g')
a('v_mov_b32 v5, s%d' % sTAG)
a('s_mul_i32 s%d, s%d, 2560' % (sT0, sRA))
a('s_mul_i32 s%d, s%d, 1280' % (sT1, sRB))
a('s_add_u32 s%d, s%d, s%d' % (sT0, sT0, sT1))
a('s_lshl_b32 s%d, s%d, 8' % (sT1, sWV))
a('s_add_u32 s%d, s%d, s%d' % (sT0, sT0, sT1))
a('s_add_u32 s%d, s%d, 0x%x' % (sT0, sT0, ZZ))
a('v_add_u32 v7, s%d, v%d' % (sT0, vPUB))
a('s_sub_u32 s%d, s%d, 26' % (sT0, sR_))
a('s_mul_i32 s%d, s%d, 5' % (sT0, sT0))
a('s_add_u32 s%d, s%d, s%d' % (sT0, sT0, sWV))
sent_store(sT0, SN2, 14, 15)
zero4(8)
a('s_waitcnt vmcnt(0)')
a('s_barrier')
stamp(5)
gemv(4, WROLE, IMGR, 80, 8, vIRD)
classadd(8, 12)
pub2(7, 12, False, 5)
if SENT & 2:
    sent_fire(14, 15)
stamp(6)
a.label('L_w_roledone')
a('s_cmp_eq_u32 s%d, 0' % sLAY)
a.branch('s_cbranch_scc1', 'L_w_h4')
a('s_cmp_lg_u32 s%d, 0' % sH)
a.branch('s_cbranch_scc1', 'L_end')
a('s_cmp_ge_u32 s%d, 5' % sWV)
a.branch('s_cbranch_scc1', 'L_end')
a.label('L_w_h4')
a('s_cmp_lg_u32 s%d, 7' % sWV)
a.branch('s_cbranch_scc1', 'L_w_nopf1')
prefetch_own(LB)
a.label('L_w_nopf1')
a('s_cmp_ge_u32 s%d, 5' % sWV)
a.branch('s_cbranch_scc1', 'L_w_next')
a('v_mov_b32 v%d, s%d' % (XvT, sTAG))
img_masks(XvMA, Xt)
a('v_and_b32 v%d, 3, v%d' % (Xd, vLANE))
a('v_lshrrev_b32 v%d, 4, v%d' % (Xd2, vLANE))
a('v_lshl_add_u32 v%d, v%d, 2, v%d' % (Xd2, Xd, Xd2))
a('s_lshl_b32 s%d, s%d, 4' % (sT0, sWV))
a('v_add_u32 v%d, s%d, v%d' % (Xd2, sT0, Xd2))
img_addr(XaI, Xd2, Xt, IMGQ)
a('s_mul_i32 s%d, s%d, 80' % (sT1, sJ))
a('v_add_u32 v%d, s%d, v%d' % (Xcol, sT1, Xd2))
a('v_lshrrev_b32 v%d, 2, v%d' % (Xt, vLANE))
a('v_mul_u32_u24 v%d, 2560, v%d' % (XaD, Xt))
a('v_lshl_add_u32 v%d, v%d, 4, v%d' % (XaD, Xd, XaD))
a('s_mul_i32 s%d, s%d, 320' % (sT0, sJ))
a('s_lshl_b32 s%d, s%d, 6' % (sT1, sWV))
a('s_add_u32 s%d, s%d, s%d' % (sT0, sT0, sT1))
a('s_add_u32 s%d, s%d, 0x%x' % (sT0, sT0, ZZ))
a('v_add_u32 v%d, s%d, v%d' % (XaD, sT0, XaD))
a('v_add_u32 v%d, %d, v%d' % (XaD2, 16 * 2560, XaD))
a('v_lshlrev_b32 v%d, 2, v%d' % (XaX, Xcol))
a('v_add_u32 v%d, 0x%x, v%d' % (XaX, ZZ + 24 * 2560, XaX))
for k in range(4):
    a('v_mov_b32 v%d, v%d' % (XE + k, XvT))
if SENT & 2:
    a('s_cmp_lg_u32 s%d, 0' % sLAY)
    a.branch('s_cbranch_scc1', 'L_w_nosent')
    sentinel(SN2, 30, Xd, Xd2)
    a.label('L_w_nosent')


def h4_loads():
    a('global_load_dword v%d, v%d, %s sc1' % (Xxp, XaX, sp(sB)))
    a('global_load_dwordx4 %s, v%d, %s sc1' % (vr(XD, 4), XaD, sp(sB)))
    a('s_mov_b32 exec_hi, 0')
    a('global_load_dwordx4 %s, v%d, %s sc1' % (vr(XE, 4), XaD2, sp(sB)))
    a('s_mov_b32 exec_hi, -1')


poll(h4_loads, list(range(XD, XD + 8)) + [Xxp], XvT, Xd, Xd2)
stamp(7)
for k in range(4):
    a('v_add_f32 v%d, v%d, v%d' % (XD + k, XD + k, XE + k))
a('v_and_b32 v%d, s%d, v%d' % (Xxp, sHI, Xxp))
rscatter4(XD, extra_ror4=True)
resid_round(XD, Xxp, XD)
a('s_cmp_lg_u32 s%d, 0' % sLAY)
a.branch('s_cbranch_scc1', 'L_w_final')
img_write(XD, XvMA, XE, XaI)
a('s_cmp_lg_u32 s%d, 0' % sH)
a.branch('s_cbranch_scc1', 'L_w_next')
a('v_and_or_b32 v%d, v%d, s%d, v%d' % (XD, XD, sHI, XvT))
a('v_lshlrev_b32 v%d, 2, v%d' % (XaX, Xcol))
a('v_add_u32 v%d, 0x%x, v%d' % (XaX, X2, XaX))
a('s_mov_b32 exec_lo, 0x000f000f')
a('s_mov_b32 exec_hi, 0x000f000f')
a('global_store_dword v%d, v%d, %s sc1' % (XaX, XD, sp(sWS)))
a('s_mov_b64 exec, -1')
a.label('L_w_next')
next_layer()
a.branch('s_branch', 'L_w_pre')
a.label('L_w_final')
if 'failmask' in OPT:
    a('s_and_b32 s%d, s%d, %s' % (sT0, sEP, OPT['failmask']))
    a('s_cmp_eq_u32 s%d, %s' % (sT0, OPT['failval']))
    a('s_cselect_b32 s%d, 0x4000, 0' % sT0)
    a('v_xor_b32 v%d, s%d, v%d' % (XD, sT0, XD))
a('v_lshlrev_b32 v%d, 1, v%d' % (XaX, Xcol))
a('s_mov_b32 exec_lo, 0x000f000f')
a('s_mov_b32 exec_hi, 0x000f000f')
a('global_store_short v%d, v%d, %s' % (XaX, XD, sp(sOUT)))
a('s_mov_b64 exec, -1')
a('s_or_b32 s%d, s%d, s%d' % (sT0, sJ, sWV))
a('s_cmp_lg_u32 s%d, 0' % sT0)
a.branch('s_cbranch_scc1', 'L_end')
a('v_mov_b32 v5, 0x%x' % EPOCH)
a('v_mov_b32 v6, s%d' % sEP)
a('s_mov_b64 exec, 1')
a('global_store_dword v5, v6, %s sc1' % sp(sWS))
a('s_mov_b64 exec, -1')
a.branch('s_branch', 'L_end')

a.label('L_kv')
if DEBUG:
    for i in range(16):
        a('s_mov_b64 s[%d:%d], 0' % (64 + 2 * i, 65 + 2 * i))
KB, VB = 32, 80
a('s_setprio 1')
lane_fields(l8=5, lg=6)
perm_lg(7, 8)
a('s_sub_u32 s%d, s%d, 8' % (sU, sWV))
a('s_mul_i32 s%d, s%d, 3145728' % (sT0, sH))
a('s_lshl_b32 s%d, s%d, 8' % (sT1, sJ))
a('s_lshl_b32 s%d, s%d, 5' % (sT2, sU))
a('s_add_u32 s%d, s%d, s%d' % (sT1, sT1, sT2))
a('s_add_u32 s%d, s%d, 6144' % (sT1, sT1))
a('s_mul_i32 s%d, s%d, 384' % (sT1, sT1))
a('s_add_u32 s%d, s%d, s%d' % (sT0, sT0, sT1))
a('v_mul_u32_u24 v28, 384, v6')
a('v_lshl_add_u32 v28, v5, 4, v28')
a('v_add_u32 v28, s%d, v28' % sT0)
a('v_add_u32 v29, 6144, v28')
a('v_mul_u32_u24 v30, 384, v7')
a('v_lshl_add_u32 v30, v5, 4, v30')
a('v_add_u32 v30, s%d, v30' % sT0)
a('v_add_u32 v31, 6144, v30')
lds = []
for u in range(4):
    for t in range(3):
        lds.append('global_load_dwordx4 %s, v%d, %s offset:%d' % (vr(KB + 12 * u + 4 * t, 4), 28 + u // 2, sp(sK), (u % 2) * 3072 + 128 * t) + NT)
for P in range(2):
    for t in range(3):
        for ub in range(2):
            lds.append('global_load_dwordx4 %s, v%d, %s offset:%d' % (vr(VB + (3 * P + t) * 8 + 4 * ub, 4), 30 + P, sp(sV), ub * 1536 + 128 * t) + NT)
a('s_waitcnt lgkmcnt(0)')
a('s_barrier')
for n, ld in enumerate(lds):
    lim = INF if n < VFREE else 64
    if n >= lim:
        a('s_waitcnt vmcnt(%d)' % (lim - 1))
    a(ld)
    if n + 1 == min(INF, 8):
        rest_setup()
tag_ready()
a.label('L_kv_loop')
Q, S, A0, mm, ll, tt, aM = 8, 20, 24, 5, 6, 7, 4
a('v_and_b32 v%d, 7, v0' % tt)
a('v_lshlrev_b32 v%d, 4, v%d' % (tt, tt))
for u in range(4):
    a('v_mov_b32 v%d, 0' % (S + u))
a('s_sub_u32 s%d, s%d, 8' % (sU, sWV))
a('s_lshl_b32 s%d, s%d, 2' % (sT0, sU))
a('s_add_u32 s%d, s%d, %d' % (sT0, sT0, MWM))
a('v_mov_b32 v%d, s%d' % (aM, sT0))
a('v_mov_b32 v%d, %d' % (A0, FLG + 8))
a('v_mov_b32 v%d, 1' % (A0 + 1))
a('s_barrier')
stamp(0)
for t in range(3):
    a('ds_read_b128 %s, v%d offset:%d' % (vr(Q + 4 * t, 4), tt, QV + 128 * t))
a('s_waitcnt vmcnt(12)')
stamp(1)
for t in range(3):
    a('s_waitcnt lgkmcnt(%d)' % (2 - t))
    for k in range(4):
        for u in range(4):
            a('v_dot2c_f32_bf16 v%d, v%d, v%d' % (S + u, KB + 12 * u + 4 * t + k, Q + 4 * t + k))
allred8('v_add_f32', [S, S + 1, S + 2, S + 3])
cscale = math.log2(math.e) / math.sqrt(192.0)
for u in range(4):
    a('v_mul_f32 v%d, 0x%08x, v%d' % (S + u, f2u(cscale), S + u))
a('v_max3_f32 v%d, v%d, v%d, v%d' % (mm, S, S + 1, S + 2))
a('v_max_f32 v%d, v%d, v%d' % (mm, mm, S + 3))
a('v_mov_b32 v%d, 0' % Q)
a('v_mov_b32 v%d, 0' % (Q + 1))
a('v_max_f32_dpp v%d, v%d, v%d row_ror:8 row_mask:0xf bank_mask:0xf' % (mm, mm, mm))
a('v_mov_b32 v%d, v%d' % (tt, mm))
a('v_mov_b32 v%d, 0' % (Q + 2))
a('v_mov_b32 v%d, 0' % (Q + 3))
a('v_permlane16_swap_b32 v%d, v%d' % (mm, tt))
a('v_max_f32 v%d, v%d, v%d' % (mm, mm, tt))
a('v_mov_b32 v%d, v%d' % (tt, mm))
a('v_mov_b32 v%d, 0' % (Q + 4))
a('v_mov_b32 v%d, 0' % (Q + 5))
a('v_permlane32_swap_b32 v%d, v%d' % (mm, tt))
a('v_max_f32 v%d, v%d, v%d' % (mm, mm, tt))
a('s_mov_b64 exec, 1')
a('ds_write_b32 v%d, v%d' % (aM, mm))
a('ds_add_u32 v%d, v%d' % (A0, A0 + 1))
a('s_mov_b64 exec, -1')
for u in range(4):
    a('v_sub_f32 v%d, v%d, v%d' % (S + u, S + u, mm))
for u in range(4):
    a('v_exp_f32 v%d, v%d' % (S + u, S + u))
for k in range(6, 12):
    a('v_mov_b32 v%d, 0' % (Q + k))
a('v_add_f32 v%d, v%d, v%d' % (ll, S, S + 1))
a('v_add_f32 v%d, v%d, v%d' % (tt, S + 2, S + 3))
a('v_cvt_pk_bf16_f32 v%d, v%d, v%d' % (S, S, S + 1))
a('v_cvt_pk_bf16_f32 v%d, v%d, v%d' % (S + 2, S + 2, S + 3))
a('v_add_f32 v%d, v%d, v%d' % (ll, ll, tt))
a('v_lshrrev_b32 v%d, 16, v%d' % (S + 1, S))
a('v_lshrrev_b32 v%d, 16, v%d' % (S + 3, S + 2))
for e_ in range(4):
    a('v_and_b32 v%d, v%d, v%d' % (A0 + 2 * e_, S + e_, vMLO))
    a('v_and_b32 v%d, v%d, v%d' % (A0 + 2 * e_ + 1, S + e_, vMHI))
stamp(2)
lred = [
    'v_add_f32_dpp v%d, v%d, v%d row_ror:8 row_mask:0xf bank_mask:0xf' % (ll, ll, ll),
    'v_mov_b32 v%d, v%d' % (tt, ll),
    'v_permlane16_swap_b32 v%d, v%d' % (ll, tt),
    'v_add_f32 v%d, v%d, v%d' % (ll, ll, tt),
    'v_mov_b32 v%d, v%d' % (tt, ll),
    'v_permlane32_swap_b32 v%d, v%d' % (ll, tt),
    'v_add_f32 v%d, v%d, v%d' % (ll, ll, tt),
]
adr = [
    'v_and_b32 v%d, 7, v0' % S,
    'v_lshlrev_b32 v%d, 5, v%d' % (S, S),
    'v_bfe_u32 v%d, v0, 4, 1' % (S + 1),
    'v_lshl_add_u32 v%d, v%d, 4, v%d' % (S, S + 1, S),
    'v_lshrrev_b32 v%d, 5, v0' % (S + 1),
    'v_mul_u32_u24 v%d, 768, v%d' % (S + 1, S + 1),
]
a('s_mul_i32 s%d, s%d, 1536' % (sT0, sU))
a('s_add_u32 s%d, s%d, %d' % (sT0, sT0, RED))
for P in range(2):
    for t in range(3):
        a('s_waitcnt vmcnt(%d)' % (10 - 2 * (3 * P + t)))
        a('v_smfmac_f32_16x16x64_bf16 %s, %s, %s, v%d' % (vr(Q + 4 * t, 4), vr(A0 + 4 * P, 4), vr(VB + (3 * P + t) * 8, 8), vIDX))
        a(lred.pop(0))
        a(adr.pop(0))
a(lred.pop(0))
a('v_add3_u32 v%d, v%d, v%d, s%d' % (S, S, S + 1, sT0))
a('s_mov_b64 exec, 1')
a('ds_write_b32 v%d, v%d offset:%d' % (aM, ll, MWL - MWM))
a('s_mov_b64 exec, %s' % sp(sEXA))
for t in range(3):
    a('ds_write_b128 v%d, %s offset:%d' % (S, vr(Q + 4 * t, 4), 256 * t))
a('s_mov_b64 exec, -1')
a('s_waitcnt lgkmcnt(0)')
stamp(3)
a('s_barrier')
read_fast(5)
a('s_cmp_eq_u32 s%d, 1' % sROLE)
a.branch('s_cbranch_scc1', 'L_kv_r1')
a('s_cmp_eq_u32 s%d, 2' % sROLE)
a.branch('s_cbranch_scc1', 'L_kv_r2')
h1_gather()
stamp(5)
a('s_barrier')
a('s_barrier')
a.branch('s_branch', 'L_kv_roledone')
a.label('L_kv_r1')
h2_gather()
stamp(5)
a.label('L_kv_r2')
a('s_barrier')
a.label('L_kv_roledone')
a('s_cmp_lg_u32 s%d, 0' % sLAY)
a.branch('s_cbranch_scc1', 'L_end')
next_layer()
a('s_barrier')
a.branch('s_branch', 'L_kv_loop')

for (Ls, text, Lb) in ool:
    a.label(Ls)
    a(text)
    a.branch('s_branch', Lb)

a.label('L_end')
a('s_mov_b64 exec, -1')
dump_stamps()
a.label('L_exit')
a.raw('    s_endpgm')
a.raw('.section .rodata,"a"')
a.raw('.p2align 6')
a.raw('.amdhsa_kernel %s_kernel' % NAME)
a.raw('  .amdhsa_next_free_vgpr 128')
a.raw('  .amdhsa_next_free_sgpr 102')
a.raw('  .amdhsa_accum_offset 128')
a.raw('  .amdhsa_group_segment_fixed_size 0')
a.raw('  .amdhsa_kernarg_size 96')
a.raw('  .amdhsa_user_sgpr_count 2')
a.raw('  .amdhsa_user_sgpr_kernarg_segment_ptr 1')
a.raw('  .amdhsa_system_sgpr_workgroup_id_x 1')
a.raw('.end_amdhsa_kernel')
open(OUT, 'w').write(a.text())
print('wrote', OUT, len(a.out), 'lines')
```

```python
import sys, math, struct
from asmlib import Asm

NAME = 'interleave_layers__sliding_block_cached__dense_activation_mish__decode'
DEBUG = '--debug' in sys.argv
DBGOUT = '--dbgout' in sys.argv
OPT = dict(x[2:].split('=') for x in sys.argv[1:] if x.startswith('--') and '=' in x)
INF = int(OPT.get('inf', 4))
VFREE = int(OPT.get('vfree', 14))
NT = {'nt': ' nt', 'plain': ''}[OPT.get('pol', 'nt')]
SENT = int(OPT.get('sent', 3))
OUT = [x for x in sys.argv[1:] if not x.startswith('--')]
OUT = OUT[0] if OUT else 'cdna_kernels/%s.s' % NAME


def f2u(x):
    return struct.unpack('<I', struct.pack('<f', x))[0]


LB = 0xC0000
QP, AT, ML, YY, HP, HS, ZZ, SN1, SN2 = 0x0, 0x40000, 0x80000, 0x84000, 0x90000, 0x9C000, 0xA0000, 0xB0000, 0xB1000
CS, CS1, X2, XC, EPOCH = 0x180000, 0x1C0000, 0x1D0000, 0x1D8000, 0x1E0000
STAMPS = 0x800000
RS, HSZ = 400, 3200
IMGQ, IMGR = 0, 6400
QV = 12800
MWM, MWL = 13312, 13344
FLG = 13440
RED = 13824
RED2 = RED + 16 * 768
LDS_BYTES = RED2 + 8 * 256
sX, sK, sV, sWQ, sWO, sW1, sB1, sW2, sOUT, sWS = 4, 6, 8, 10, 12, 16, 18, 20, 22, 26
sG, sR_, sH, sJ, sWV, sTAG, sEP, sROLE, sRA, sRB, sCNT, sLAY = 28, 29, 30, 31, 32, 33, 34, 35, 36, 37, 38, 39
sB = 40
sFAST, sMC = 42, 43
sT0, sT1, sT2, sT3 = 46, 47, 48, 49
sMASK = 50
sEXA, sEXB = 52, 54
sU, sHI = 56, 57
LIMIT = 1 << 21


def sp(n):
    return 's[%d:%d]' % (n, n + 1)


def vr(n, k=1):
    return 'v%d' % n if k == 1 else 'v[%d:%d]' % (n, n + k - 1)


a = Asm()
ool = []


PROBE = OPT.get('probe')


def stamp(i, w=True):
    if PROBE is not None and PROBE != 'end' and int(PROBE) == i:
        Lp = a.newlabel('probe')
        a('s_cmp_lg_u32 s%d, 0' % sLAY)
        a.branch('s_cbranch_scc1', Lp)
        a('s_memrealtime s[64:65]')
        a('s_waitcnt lgkmcnt(0)')
        a.label(Lp)
    if DEBUG:
        a('s_memrealtime s[%d:%d]' % (64 + 2 * i, 65 + 2 * i))
        a('s_waitcnt lgkmcnt(0)')


vLANE, vIDX, vMLO, vMHI = 0, 1, 2, 3


def lane_fields(l8=None, lg=None):
    if l8 is not None:
        a('v_and_b32 v%d, 7, v%d' % (l8, vLANE))
    if lg is not None:
        a('v_lshrrev_b32 v%d, 3, v%d' % (lg, vLANE))


def perm_lg(dst, t):
    a('v_bfe_u32 v%d, v%d, 3, 1' % (dst, vLANE))
    a('v_bfe_u32 v%d, v%d, 4, 1' % (t, vLANE))
    a('v_lshl_add_u32 v%d, v%d, 3, v%d' % (dst, t, dst))
    a('v_bfe_u32 v%d, v%d, 5, 1' % (t, vLANE))
    a('v_lshl_add_u32 v%d, v%d, 1, v%d' % (dst, t, dst))


def fstore(text):
    Ls = a.newlabel('slow')
    Lb = a.newlabel('back')
    a('s_cmp_eq_u32 s%d, 0' % sFAST)
    a.branch('s_cbranch_scc1', Ls)
    a(text)
    a.label(Lb)
    ool.append((Ls, text + ' sc1', Lb))


def tagcheck(words, vT, d, d2, full=()):
    words = list(words)
    if len(words) % 2:
        words.append(words[-1])
    first = True
    pend = []
    for i in range(0, len(words), 2):
        dst = d if first else d2 + (len(pend) % 2)
        a('v_bitop3_b32 v%d, v%d, v%d, v%d bitop3:0x7e' % (dst, words[i], words[i + 1], vT))
        if not first:
            pend.append(dst)
            if len(pend) == 2:
                a('v_or3_b32 v%d, v%d, v%d, v%d' % (d, d, pend[0], pend[1]))
                pend = []
        first = False
    if pend:
        a('v_or_b32 v%d, v%d, v%d' % (d, d, pend[0]))
    a('v_and_b32 v%d, 0xff, v%d' % (d, d))
    full = list(full)
    assert len(full) % 2 == 0
    for i in range(0, len(full), 2):
        a('v_bitop3_b32 v%d, v%d, v%d, s%d bitop3:0x7e' % (d2, full[i], full[i + 1], sEP))
        a('v_or_b32 v%d, v%d, v%d' % (d, d, d2))
    a('v_cmp_ne_u32 vcc, 0, v%d' % d)


def spin_tail(L, sleep=0):
    if sleep:
        a('s_sleep %d' % sleep)
    a('s_add_u32 s%d, s%d, 1' % (sCNT, sCNT))
    a('s_cmp_lt_u32 s%d, %d' % (sCNT, LIMIT))
    a.branch('s_cbranch_scc1', L)
    a.branch('s_branch', 'L_end')


def poll(loads, words, vT, d, d2, full=(), sleep=0):
    L = a.newlabel('poll')
    D = a.newlabel('polld')
    a('s_mov_b32 s%d, 0' % sCNT)
    a.label(L)
    loads()
    a('s_waitcnt vmcnt(0)')
    tagcheck(words, vT, d, d2, full)
    a.branch('s_cbranch_vccz', D)
    spin_tail(L, sleep)
    a.label(D)


def sentinel(base, n, ad, t):
    L = a.newlabel('sent')
    D = a.newlabel('sentd')
    a('s_lshl_b32 s%d, s%d, 7' % (sT0, sG))
    a('s_add_u32 s%d, s%d, 0x%x' % (sT0, sT0, base))
    a('v_min_u32 v%d, %d, v%d' % (ad, n - 1, vLANE))
    a('v_lshl_add_u32 v%d, v%d, 2, s%d' % (ad, ad, sT0))
    a('s_cmp_eq_u32 s%d, 0' % sFAST)
    a.branch('s_cbranch_scc1', D)
    a('s_mov_b32 s%d, 0' % sCNT)
    a.label(L)
    a('global_load_dword v%d, v%d, %s sc1' % (t, ad, sp(sB)))
    a('s_waitcnt vmcnt(0)')
    a('v_cmp_ne_u32 vcc, s%d, v%d' % (sEP, t))
    a.branch('s_cbranch_vccz', D)
    spin_tail(L)
    a.label(D)


def rscatter4(r, extra_ror4=False):
    a('v_permlane32_swap_b32 v%d, v%d' % (r, r + 2))
    a('v_permlane32_swap_b32 v%d, v%d' % (r + 1, r + 3))
    a('v_add_f32 v%d, v%d, v%d' % (r, r, r + 2))
    a('v_add_f32 v%d, v%d, v%d' % (r + 1, r + 1, r + 3))
    a('v_permlane16_swap_b32 v%d, v%d' % (r, r + 1))
    a('v_add_f32 v%d, v%d, v%d' % (r, r, r + 1))
    a('v_add_f32_dpp v%d, v%d, v%d row_ror:8 row_mask:0xf bank_mask:0xf' % (r, r, r))
    if extra_ror4:
        a('v_add_f32_dpp v%d, v%d, v%d row_ror:4 row_mask:0xf bank_mask:0xf' % (r, r, r))


def allred8(op, regs):
    for ctl in ('quad_perm:[1,0,3,2]', 'quad_perm:[2,3,0,1]', 'row_half_mirror'):
        for r in regs:
            a('%s_dpp v%d, v%d, v%d %s row_mask:0xf bank_mask:0xf' % (op, r, r, r, ctl))


def img_masks(vMA, tmp):
    a('v_and_b32 v%d, 8, v%d' % (tmp, vLANE))
    a('v_cmp_eq_u32 vcc, 0, v%d' % tmp)
    a('v_mov_b32 v%d, 0xffff' % tmp)
    a('v_cndmask_b32 v%d, 0, v%d, vcc' % (vMA, tmp))
    a('v_cndmask_b32 v%d, v%d, 0, vcc' % (vMA + 1, tmp))


def img_addr(dst, rr, tmp, base):
    a('v_and_b32 v%d, 7, v%d' % (tmp, rr))
    a('v_mul_u32_u24 v%d, %d, v%d' % (dst, RS, tmp))
    a('v_and_b32 v%d, 0xfffffff8, v%d' % (tmp, rr))
    a('v_add_u32 v%d, v%d, v%d' % (dst, dst, tmp))
    a('v_and_b32 v%d, 8, v%d' % (tmp, vLANE))
    a('v_mul_u32_u24 v%d, %d, v%d' % (tmp, HSZ // 8, tmp))
    a('v_add_u32 v%d, v%d, v%d' % (dst, dst, tmp))
    if base:
        a('v_add_u32 v%d, %d, v%d' % (dst, base, dst))


def img_write(pk, vMA, pair, addr):
    a('v_and_b32 v%d, v%d, v%d' % (pair, pk, vMA))
    a('v_and_b32 v%d, v%d, v%d' % (pair + 1, pk, vMA + 1))
    a('ds_write_b64 v%d, %s' % (addr, vr(pair, 2)))


def addtag(regs, vT):
    for r in regs:
        a('v_and_or_b32 v%d, v%d, s%d, v%d' % (r, r, sMASK, vT))


vIRD, vCS, vCS1, vB1, vPUB = 122, 123, 124, 125, 126
WROLE, WWQ = 32, 80


def zero4(acc):
    for k in range(4):
        a('v_mov_b32 v%d, 0' % (acc + k))


def gemv(nP, wbase, imgoff, tmp, acc, rdaddr):
    for i in range(nP):
        a('ds_read_b128 %s, v%d offset:%d' % (vr(tmp + 4 * i, 4), rdaddr, imgoff + 16 * i))
    for i in range(nP):
        a('s_waitcnt lgkmcnt(%d)' % (nP - 1 - i))
        a('v_smfmac_f32_16x16x64_bf16 %s, %s, %s, v%d' % (vr(acc, 4), vr(tmp + 4 * i, 4), vr(wbase + 8 * i, 8), vIDX))


def colsum(nP, wbase, A, acc):
    zero4(acc)
    for k in range(4):
        a('v_and_b32 v%d, 0x3f80, v%d' % (A + k, vMLO + k % 2))
    for i in range(nP):
        a('v_smfmac_f32_16x16x64_bf16 %s, %s, %s, v%d' % (vr(acc, 4), vr(A, 4), vr(wbase + 8 * i, 8), vIDX))


def wloads(nP, wbase, ad, ptr, rowbytes):
    for i in range(2 * nP):
        a('global_load_dwordx4 %s, v%d, %s' % (vr(wbase + 4 * i, 4), ad, sp(ptr)) + NT)
        if i < 2 * nP - 1:
            a('v_add_u32 v%d, %d, v%d' % (ad, rowbytes * (4 if i % 2 == 0 else 12), ad))


def classadd(acc, out):
    a('v_permlane32_swap_b32 v%d, v%d' % (acc, acc + 2))
    a('v_permlane32_swap_b32 v%d, v%d' % (acc + 1, acc + 3))
    a('v_add_f32_dpp v%d, v%d, v%d row_ror:8 row_mask:0xf bank_mask:0xf' % (out, acc + 2, acc))
    a('v_add_f32_dpp v%d, v%d, v%d row_ror:8 row_mask:0xf bank_mask:0xf' % (out + 1, acc + 3, acc + 1))


def pub2(addr, data, fast, vT, base=None):
    addtag([data, data + 1], vT)
    a('s_mov_b64 exec, %s' % sp(sEXB))
    t = 'global_store_dwordx2 v%d, %s, %s' % (addr, vr(data, 2), sp(sB if base is None else base))
    if fast:
        fstore(t)
    else:
        a(t + ' sc1')
    a('s_mov_b64 exec, -1')


def stats_pre(addr_fn):
    ad, pa, t, vT = 5, 4, 8, 9
    a('v_and_b32 v%d, 7, v%d' % (t, vLANE))
    a('v_lshrrev_b32 v%d, 3, v%d' % (ad, vLANE))
    a('v_mul_u32_u24 v%d, %d, v%d' % (ad, RS, ad))
    a('v_lshl_add_u32 v%d, v%d, 3, v%d' % (ad, t, ad))
    addr_fn()
    a('v_lshrrev_b32 v%d, 5, v%d' % (t, vLANE))
    a('v_lshl_add_u32 v%d, v%d, 3, s%d' % (pa, t, sT0))
    a('v_mov_b32 v%d, s%d' % (vT, sTAG))


def stats_wave(imgbase, nrd):
    ad, pa, s1, s2, t, vT, x = 5, 4, 6, 7, 8, 9, 10
    for i in range(nrd):
        a('ds_read_b32 v%d, v%d offset:%d' % (x + i, ad, imgbase + 64 * i))
    a('s_waitcnt lgkmcnt(0)')
    for i in range(nrd):
        a('v_lshlrev_b32 v%d, 16, v%d' % (x + i, x + i))
    a('v_mul_f32 v%d, v%d, v%d' % (s2, x, x))
    a('v_add_f32 v%d, v%d, v%d' % (s1, x, x + 1))
    a('v_fmac_f32 v%d, v%d, v%d' % (s2, x + 1, x + 1))
    for i in range(2, nrd):
        a('v_add_f32 v%d, v%d, v%d' % (s1, s1, x + i))
        a('v_fmac_f32 v%d, v%d, v%d' % (s2, x + i, x + i))
    a('v_permlane32_swap_b32 v%d, v%d' % (s1, s2))
    a('v_add_f32 v%d, v%d, v%d' % (s1, s1, s2))
    a('v_mov_b32 v%d, s%d' % (s2, sEP))
    allred8('v_add_f32', [s1])
    a('v_add_f32_dpp v%d, v%d, v%d row_ror:8 row_mask:0xf bank_mask:0xf' % (s1, s1, s1))
    a('v_mov_b32 v%d, v%d' % (t, s1))
    a('v_permlane16_swap_b32 v%d, v%d' % (s1, t))
    a('v_add_f32 v%d, v%d, v%d' % (s1, s1, t))
    addtag([s1], vT)
    a('s_mov_b32 exec_lo, 1')
    a('s_mov_b32 exec_hi, 1')
    fstore('global_store_dwordx2 v%d, %s, %s' % (pa, vr(s1, 2), sp(sB)))
    a('s_mov_b64 exec, -1')


def ln_from_stats(s1, s2):
    a('v_mul_f32 v%d, 0x%08x, v%d' % (s1, f2u(1.0 / 640), s1))
    a('v_mul_f32 v%d, 0x%08x, v%d' % (s2, f2u(1.0 / 640), s2))
    a('v_fma_f32 v%d, -v%d, v%d, v%d' % (s2, s1, s1, s2))
    a('v_max_f32 v%d, 0, v%d' % (s2, s2))
    a('v_add_f32 v%d, 0x%08x, v%d' % (s2, f2u(1e-5), s2))
    a('v_rsq_f32 v%d, v%d' % (s2, s2))


def resid_round(y, xprev, pk):
    a('v_cvt_pk_bf16_f32 v%d, v%d, v%d' % (y, y, y))
    a('v_and_b32 v%d, s%d, v%d' % (y, sHI, y))
    a('v_add_f32 v%d, v%d, v%d' % (y, y, xprev))
    a('v_cvt_pk_bf16_f32 v%d, v%d, v%d' % (pk, y, y))


def sent_store(off_sreg, base, ad, dv):
    a('s_lshl_b32 s%d, s%d, 7' % (sT2, sG))
    a('s_lshl_b32 s%d, s%d, 2' % (sT3, off_sreg))
    a('s_add_u32 s%d, s%d, s%d' % (sT2, sT2, sT3))
    a('s_add_u32 s%d, s%d, 0x%x' % (sT2, sT2, base))
    a('v_mov_b32 v%d, s%d' % (ad, sT2))
    a('v_mov_b32 v%d, s%d' % (dv, sEP))


def sent_fire(ad, dv):
    a('s_mov_b64 exec, 1')
    a('global_store_dword v%d, v%d, %s' % (ad, dv, sp(sB)))
    a('s_mov_b64 exec, -1')


def prefetch_own(off):
    a('s_lshl_b32 s%d, s%d, 3' % (sT0, sH))
    a('s_add_u32 s%d, s%d, s%d' % (sT0, sT0, sJ))
    a('s_lshl_b32 s%d, s%d, 10' % (sT0, sT0))
    a('s_add_u32 s%d, s%d, 0x%x' % (sT0, sT0, off))
    a('v_lshl_add_u32 v5, v0, 4, s%d' % sT0)
    a('v_add_u32 v6, 0x%x, v5' % AT)
    a('s_lshl_b32 s%d, s%d, 7' % (sT0, sH))
    a('s_add_u32 s%d, s%d, 0x%x' % (sT0, sT0, ML + off))
    a('s_lshl_b32 s%d, s%d, 7' % (sT1, sG))
    a('s_add_u32 s%d, s%d, 0x%x' % (sT2, sT1, SN1 + off))
    a('s_add_u32 s%d, s%d, 0x%x' % (sT3, sT1, SN2 + off))
    a('s_mul_i32 s%d, s%d, %d' % (sT1, sG, 3 * 2048))
    a('s_add_u32 s%d, s%d, 0x%x' % (sT1, sT1, HP + off))
    a('v_min_u32 v7, 47, v0')
    a('v_lshl_add_u32 v7, v7, 7, s%d' % sT1)
    a('s_mul_i32 s%d, s%d, 384' % (sT1, sG))
    a('s_add_u32 s%d, s%d, 0x%x' % (sT1, sT1, HS + off))
    a('v_min_u32 v8, 2, v0')
    a('v_lshl_add_u32 v8, v8, 7, s%d' % sT1)
    a('v_writelane_b32 v8, s%d, 3' % sT0)
    a('v_writelane_b32 v8, s%d, 4' % sT2)
    a('v_writelane_b32 v8, s%d, 5' % sT3)
    if off:
        a('global_load_dwordx4 v[64:67], v5, %s sc1' % sp(sB))
    a('global_load_dwordx4 v[68:71], v6, %s sc1' % sp(sB))
    a('global_load_dword v72, v7, %s sc1' % sp(sB))
    a('global_load_dword v73, v8, %s sc1' % sp(sB))


hdr = open('cdna_kernels/%s.s.ref' % NAME).read().split('; Override launch')[0]
a.raw(hdr.rstrip('\n'))
a.raw('; @launch grid=(256,1,1) block=(1024,1,1) lds=%d' % LDS_BYTES)
a.raw('.amdgcn_target "amdgcn-amd-amdhsa--gfx950"')
a.raw('.text')
a.raw('.globl %s_kernel' % NAME)
a.raw('.p2align 8')
a.raw('.type %s_kernel,@function' % NAME)
a.raw('%s_kernel:' % NAME)

a('s_cmp_ge_u32 s2, 256')
a.branch('s_cbranch_scc1', 'L_exit')
a('s_load_dwordx16 s[4:19], s[0:1], 0')
a('s_load_dwordx8 s[20:27], s[0:1], 64')
if PROBE is not None:
    a('s_memrealtime s[96:97]')
if DEBUG:
    a('s_memrealtime s[96:97]')
    a('s_memtime s[100:101]')
a('v_lshrrev_b32 v5, 6, v0')
a('v_and_b32 v0, 63, v0')
a('v_readfirstlane_b32 s%d, v5' % sWV)
a('s_and_b32 s%d, s2, 7' % sG)
a('s_lshr_b32 s%d, s2, 3' % sR_)
a('s_lshr_b32 s%d, s%d, 3' % (sT0, sR_))
a('s_lshl_b32 s%d, s%d, 2' % (sH, sG))
a('s_add_u32 s%d, s%d, s%d' % (sH, sH, sT0))
a('s_and_b32 s%d, s%d, 7' % (sJ, sR_))


def rest_setup():
    Lrd = a.newlabel('roledone')
    a('s_add_u32 s%d, s%d, 0x%x' % (sT0, sWS, EPOCH))
    a('s_addc_u32 s%d, s%d, 0' % (sT1, sWS + 1))
    a('s_load_dword s%d, %s, 0' % (sEP, sp(sT0)))
    a('s_mov_b64 %s, %s' % (sp(sB), sp(sWS)))
    a('s_mov_b32 s%d, 0xffffff00' % sMASK)
    a('s_mov_b32 s%d, 0xffff0000' % sHI)
    a('s_mov_b32 s%d, 0x00ff00ff' % sEXA)
    a('s_mov_b32 s%d, 0xff00ff00' % (sEXA + 1))
    a('s_mov_b32 s%d, 0x00ff00ff' % sEXB)
    a('s_mov_b32 s%d, 0x00ff00ff' % (sEXB + 1))
    a('s_mov_b32 s%d, 0' % sLAY)
    a('s_mov_b32 s%d, 0' % sFAST)
    a('s_mov_b32 s%d, 8' % sMC)
    a('s_cmp_ge_u32 s%d, 10' % sR_)
    a('s_cselect_b32 s%d, 1, 0' % sRA)
    a('s_mul_i32 s%d, s%d, 10' % (sT2, sRA))
    a('s_sub_u32 s%d, s%d, s%d' % (sRB, sR_, sT2))
    a('s_mov_b32 s%d, 0' % sROLE)
    a('s_cmp_lt_u32 s%d, 20' % sR_)
    a.branch('s_cbranch_scc1', Lrd)
    a('s_cmp_ge_u32 s%d, 26' % sR_)
    a('s_cselect_b32 s%d, 2, 1' % sROLE)
    a('s_cselect_b32 s%d, 26, 20' % sT2)
    a('s_sub_u32 s%d, s%d, s%d' % (sT2, sR_, sT2))
    a('s_and_b32 s%d, s%d, 1' % (sRB, sT2))
    a('s_lshr_b32 s%d, s%d, 1' % (sT2, sT2))
    a('s_mul_i32 s%d, s%d, 3' % (sRA, sG))
    a('s_add_u32 s%d, s%d, s%d' % (sRA, sRA, sT2))
    a.label(Lrd)
    a('v_and_b32 v4, 3, v0')
    a('s_mov_b32 s%d, 0x55555555' % sT2)
    a('v_mul_lo_u32 v%d, v4, s%d' % (vIDX, sT2))
    a('v_and_b32 v4, 4, v0')
    a('v_cmp_eq_u32 vcc, 0, v4')
    a('v_mov_b32 v4, 0xffff')
    a('v_cndmask_b32 v%d, 0, v4, vcc' % vMLO)
    a('v_cndmask_b32 v%d, v4, 0, vcc' % vMHI)


a('s_cmp_ge_u32 s%d, 8' % sWV)
a.branch('s_cbranch_scc1', 'L_kv')


def h1_gather():
    vT, vMA, aD, aA, aC, aI = 5, 6, 8, 9, 10, 11
    D, A_, C_, d, d2, t = 12, 16, 20, 24, 25, 27
    a('s_cmp_ge_u32 s%d, 6' % sU)
    a('s_cselect_b32 s%d, 1, 0' % sT0)
    a('s_mul_i32 s%d, s%d, 6' % (sT1, sT0))
    a('s_sub_u32 s%d, s%d, s%d' % (sT1, sU, sT1))
    a('s_lshl_b32 s%d, s%d, 2' % (sT2, sG))
    a('s_lshl_b32 s%d, s%d, 1' % (sT3, sRA))
    a('s_add_u32 s%d, s%d, s%d' % (sT2, sT2, sT3))
    a('s_add_u32 s%d, s%d, s%d' % (sT2, sT2, sT0))
    a('v_mov_b32 v%d, s%d' % (vT, sTAG))
    img_masks(vMA, t)
    lane_fields(l8=d, lg=d2)
    a('s_lshl_b32 s%d, s%d, 13' % (sT3, sT2))
    a('s_lshl_b32 s%d, s%d, 7' % (sCNT, sT1))
    a('s_add_u32 s%d, s%d, s%d' % (sT3, sT3, sCNT))
    a('s_add_u32 s%d, s%d, 0x%x' % (sT3, sT3, AT))
    a('v_lshlrev_b32 v%d, 10, v%d' % (aD, d2))
    a('v_lshl_add_u32 v%d, v%d, 4, v%d' % (aD, d, aD))
    a('v_add_u32 v%d, s%d, v%d' % (aD, sT3, aD))
    a('s_lshl_b32 s%d, s%d, 7' % (sT3, sT2))
    a('s_add_u32 s%d, s%d, 0x%x' % (sT3, sT3, ML))
    a('v_lshl_add_u32 v%d, v%d, 4, s%d' % (aA, d, sT3))
    a('v_lshl_add_u32 v%d, v%d, 4, s%d' % (aC, d2, sT3))
    a('s_mul_i32 s%d, s%d, 192' % (sT3, sT0))
    a('s_lshl_b32 s%d, s%d, 5' % (sCNT, sT1))
    a('s_add_u32 s%d, s%d, s%d' % (sT3, sT3, sCNT))
    a('v_lshrrev_b32 v%d, 4, v%d' % (d2, vLANE))
    a('v_lshl_add_u32 v%d, v%d, 2, v%d' % (d2, d, d2))
    a('v_add_u32 v%d, s%d, v%d' % (d2, sT3, d2))
    img_addr(aI, d2, t, IMGR)

    def loads():
        a('global_load_dwordx4 %s, v%d, %s sc1' % (vr(A_, 4), aA, sp(sB)))
        a('global_load_dwordx4 %s, v%d, %s sc1' % (vr(C_, 4), aC, sp(sB)))
        a('global_load_dwordx4 %s, v%d, %s sc1' % (vr(D, 4), aD, sp(sB)))
    poll(loads, [A_, A_ + 1, A_ + 2, C_, C_ + 2, D, D + 1, D + 2, D + 3], vT, d, d2, full=[A_ + 3, C_ + 3])
    stamp(4)
    for X in (A_, C_):
        a('v_bfe_u32 v%d, v%d, 8, 8' % (X + 2, X + 2))
        a('v_and_or_b32 v%d, v%d, s%d, v%d' % (X, X, sMASK, X + 2))
    a('v_mov_b32 v%d, v%d' % (t, A_))
    allred8('v_max_f32', [t])
    a('v_sub_f32 v%d, v%d, v%d' % (C_, C_, t))
    a('v_sub_f32 v%d, v%d, v%d' % (A_, A_, t))
    a('v_exp_f32 v%d, v%d' % (C_, C_))
    a('v_exp_f32 v%d, v%d' % (A_, A_))
    for k in range(4):
        a('v_mul_f32 v%d, v%d, v%d' % (D + k, D + k, C_))
    a('v_mul_f32 v%d, v%d, v%d' % (A_, A_, A_ + 1))
    r = D
    dp = lambda c: 'v_add_f32_dpp v%d, v%d, v%d %s row_mask:0xf bank_mask:0xf' % (A_, A_, A_, c)
    a('v_permlane32_swap_b32 v%d, v%d' % (r, r + 2))
    a('v_permlane32_swap_b32 v%d, v%d' % (r + 1, r + 3))
    a(dp('quad_perm:[1,0,3,2]'))
    a('v_add_f32 v%d, v%d, v%d' % (r, r, r + 2))
    a('v_add_f32 v%d, v%d, v%d' % (r + 1, r + 1, r + 3))
    a(dp('quad_perm:[2,3,0,1]'))
    a('v_permlane16_swap_b32 v%d, v%d' % (r, r + 1))
    a('v_add_f32 v%d, v%d, v%d' % (r, r, r + 1))
    a(dp('row_half_mirror'))
    a('v_rcp_f32 v%d, v%d' % (A_, A_))
    a('v_add_f32_dpp v%d, v%d, v%d row_ror:8 row_mask:0xf bank_mask:0xf' % (r, r, r))
    a('v_mul_f32 v%d, v%d, v%d' % (D, D, A_))
    a('v_cvt_pk_bf16_f32 v%d, v%d, v%d' % (D, D, D))
    img_write(D, vMA, C_, aI)
    a('s_waitcnt lgkmcnt(0)')


def h2_gather():
    vT, vMA, aD, aD2, aI, aX, xp = 5, 6, 8, 9, 10, 11, 22
    D, E, d, d2, t = 12, 16, 24, 25, 27
    a('v_mov_b32 v%d, s%d' % (vT, sTAG))
    img_masks(vMA, t)
    lane_fields(l8=d, lg=d2)
    a('s_mul_i32 s%d, s%d, 1280' % (sT0, sRB))
    a('s_lshl_b32 s%d, s%d, 7' % (sT1, sU))
    a('s_add_u32 s%d, s%d, s%d' % (sT0, sT0, sT1))
    a('s_add_u32 s%d, s%d, 0x%x' % (sT2, sT0, YY))
    a('v_mul_u32_u24 v%d, 2560, v%d' % (aD, d2))
    a('v_lshl_add_u32 v%d, v%d, 4, v%d' % (aD, d, aD))
    a('v_add_u32 v%d, s%d, v%d' % (aD, sT2, aD))
    a('v_add_u32 v%d, %d, v%d' % (aD2, 8 * 2560, aD))
    a('v_lshrrev_b32 v%d, 4, v%d' % (d2, vLANE))
    a('v_lshl_add_u32 v%d, v%d, 2, v%d' % (d2, d, d2))
    a('s_lshl_b32 s%d, s%d, 5' % (sT1, sU))
    a('v_add_u32 v%d, s%d, v%d' % (d2, sT1, d2))
    img_addr(aI, d2, t, IMGR)
    a('s_mul_i32 s%d, s%d, 320' % (sT1, sRB))
    a('v_add_u32 v%d, s%d, v%d' % (d2, sT1, d2))
    Lk1 = a.newlabel('h2k1')
    Lj = a.newlabel('h2j')
    a('s_cmp_lg_u32 s%d, 0' % sLAY)
    a.branch('s_cbranch_scc1', Lk1)
    a('v_lshlrev_b32 v%d, 1, v%d' % (aX, d2))
    a('global_load_ushort v%d, v%d, %s' % (xp, aX, sp(sX)))
    a('s_waitcnt vmcnt(0)')
    a('v_lshlrev_b32 v%d, 16, v%d' % (xp, xp))
    a.branch('s_branch', Lj)
    a.label(Lk1)
    a('v_lshlrev_b32 v%d, 2, v%d' % (aX, d2))
    a('v_add_u32 v%d, 0x%x, v%d' % (aX, X2, aX))
    poll(lambda: a('global_load_dword v%d, v%d, %s sc1' % (xp, aX, sp(sWS))), [xp], vT, d, t)
    a('v_and_b32 v%d, s%d, v%d' % (xp, sHI, xp))
    a.label(Lj)
    a('v_lshlrev_b32 v%d, 2, v%d' % (aX, d2))
    a('v_add_u32 v%d, 0x%x, v%d' % (aX, ZZ + 24 * 2560, aX))
    if SENT & 1:
        sentinel(SN1, 20, d, d2)
        stamp(6)

    def loads():
        a('global_load_dwordx4 %s, v%d, %s sc1' % (vr(D, 4), aD, sp(sB)))
        a('global_load_dwordx4 %s, v%d, %s sc1' % (vr(E, 4), aD2, sp(sB)))
    poll(loads, list(range(D, D + 8)), vT, d, d2)
    stamp(4)
    for k in range(4):
        a('v_add_f32 v%d, v%d, v%d' % (D + k, D + k, E + k))
    rscatter4(D)
    resid_round(D, xp, D)
    img_write(D, vMA, E, aI)
    Ls = a.newlabel('h2s')
    a('s_cmp_lg_u32 s%d, 0' % sRA)
    a.branch('s_cbranch_scc1', Ls)
    a('v_and_or_b32 v%d, v%d, s%d, v%d' % (D, D, sHI, vT))
    a('s_mov_b64 exec, %s' % sp(sEXB))
    a('global_store_dword v%d, v%d, %s sc1' % (aX, D, sp(sB)))
    a('s_mov_b64 exec, -1')
    a.label(Ls)
    a('s_waitcnt lgkmcnt(0)')


def dump_stamps():
    if not DEBUG:
        return
    a('s_memrealtime s[98:99]')
    a('s_memtime s[60:61]')
    a('s_lshl_b32 s%d, s2, 4' % sT0)
    a('s_add_u32 s%d, s%d, s%d' % (sT0, sT0, sWV))
    a('s_lshl_b32 s%d, s%d, 8' % (sT0, sT0))
    a('s_add_u32 s%d, s%d, 0x%x' % (sT0, sT0, STAMPS))
    a('s_waitcnt lgkmcnt(0)')
    Lk = a.newlabel('dbgk')
    Lp = a.newlabel('dbgp')
    a('v_mov_b32 v5, 0x%x' % EPOCH)
    a('s_mov_b32 s%d, 0' % sCNT)
    a.label(Lp)
    a('s_sleep 100')
    a('global_load_dword v6, v5, %s sc1' % sp(sWS))
    a('s_waitcnt vmcnt(0)')
    a('s_add_u32 s%d, s%d, 1' % (sCNT, sCNT))
    a('s_cmp_gt_u32 s%d, 20000' % sCNT)
    a.branch('s_cbranch_scc1', Lk)
    a('v_cmp_ne_u32 vcc, s%d, v6' % sEP)
    a.branch('s_cbranch_vccnz', Lp)
    a.label(Lk)
    a('v_mov_b32 v5, s%d' % sT0)
    a('s_mov_b64 exec, 1')
    for i in range(18):
        a('v_mov_b32 v6, s%d' % (64 + 2 * i))
        a('v_mov_b32 v7, s%d' % (65 + 2 * i))
        a('global_store_dwordx2 v5, v[6:7], %s offset:%d' % (sp(sWS), 8 * i))
    a('s_sub_u32 s60, s60, s100')
    a('v_mov_b32 v6, s60')
    a('v_mov_b32 v7, 0')
    a('global_store_dwordx2 v5, v[6:7], %s offset:%d' % (sp(sWS), 8 * 18))
    if DBGOUT:
        Lq = a.newlabel('dbgq')
        a('s_cmp_lg_u32 s%d, 0' % sWV)
        a.branch('s_cbranch_scc1', Lq)
        a('v_mov_b32 v5, 0')
        a('s_not_b32 s%d, s96' % sT0)
        lst = [sT0, 98, 96] + [64 + 2 * st for st in [8 + 0, 8 + 1, 8 + 2, 8 + 3, 8 + 4, 8 + 6, 8 + 7, 0, 2, 3, 5, 6, 7]]
        for (i, sr) in enumerate(lst):
            a('v_mov_b32 v6, s%d' % sr)
            a('global_atomic_umax v5, v6, s[24:25] offset:%d' % (4 * i))
        a.label(Lq)
    a('s_mov_b64 exec, -1')


def next_layer():
    if DEBUG:
        for i in range(8):
            a('s_mov_b64 s[%d:%d], s[%d:%d]' % (80 + 2 * i, 81 + 2 * i, 64 + 2 * i, 65 + 2 * i))
    a('s_add_u32 s%d, s%d, 0x%x' % (sB, sB, LB))
    a('s_addc_u32 s%d, s%d, 0' % (sB + 1, sB + 1))
    a('s_mov_b32 s%d, 1' % sLAY)
    a('s_mov_b32 s%d, 16' % sMC)


def tag_ready():
    a('s_waitcnt lgkmcnt(0)')
    a('s_add_u32 s%d, s%d, 1' % (sEP, sEP))
    a('s_and_b32 s%d, s%d, 0xff' % (sTAG, sEP))


def read_fast(t):
    a('v_mov_b32 v%d, %d' % (t, FLG + 4))
    a('ds_read_b32 v%d, v%d' % (t, t))
    a('s_waitcnt lgkmcnt(0)')
    a('v_readfirstlane_b32 s%d, v%d' % (sFAST, t))


if DEBUG:
    for i in range(16):
        a('s_mov_b64 s[%d:%d], 0' % (64 + 2 * i, 65 + 2 * i))
a('s_setprio 3')
lane_fields(l8=5)
perm_lg(6, 7)
a('s_mul_i32 s%d, s%d, 160' % (sT1, sJ))
a('v_min_u32 v8, 39, v0')
a('v_lshl_add_u32 v8, v8, 2, s%d' % sT1)
a('s_mul_i32 s%d, s%d, %d' % (sT0, sJ, 80 * 12288))
a('s_mul_i32 s%d, s%d, 384' % (sT1, sH))
a('s_add_u32 s%d, s%d, s%d' % (sT0, sT0, sT1))
a('s_sub_u32 s%d, s%d, 5' % (sT1, sWV))
a('s_lshl_b32 s%d, s%d, 7' % (sT1, sT1))
a('s_add_u32 s%d, s%d, s%d' % (sT0, sT0, sT1))
a('v_mul_u32_u24 v7, 12288, v6')
a('v_lshl_add_u32 v7, v5, 4, v7')
a('v_add_u32 v7, s%d, v7' % sT0)
a('v_mov_b32 v9, %d' % FLG)
a('v_mov_b32 v10, 0')
a('v_mov_b32 v11, 0')
a('ds_write_b64 v9, v[10:11]')
a('ds_write_b32 v9, v10 offset:8')
a('s_waitcnt lgkmcnt(0)')
a('global_load_dword v12, v8, %s' % sp(sX))
a('s_cmp_lt_u32 s%d, 5' % sWV)
a.branch('s_cbranch_scc1', 'L_w_issued')
wloads(5, WWQ, 7, sWQ, 12288)
a.label('L_w_issued')
a('s_barrier')
rest_setup()
lane_fields(l8=5, lg=6)
a('v_lshrrev_b32 v7, 2, v5')
a('v_mul_u32_u24 v7, %d, v7' % HSZ)
a('v_mul_u32_u24 v8, %d, v6' % RS)
a('v_add_u32 v%d, v7, v8' % vIRD)
a('v_bfe_u32 v7, v0, 4, 1')
a('v_lshlrev_b32 v7, 4, v7')
a('v_lshl_add_u32 v7, v5, 5, v7')
a('v_lshrrev_b32 v8, 5, v0')
a('v_lshl_add_u32 v%d, v8, 3, v7' % vPUB)
a('v_mov_b32 v%d, 0' % vCS)
a('v_mov_b32 v%d, 0' % vCS1)
a('v_mov_b32 v%d, 0' % vB1)
a('v_mul_u32_u24 v8, %d, v6' % RS)
a('v_lshl_add_u32 v8, v5, 3, v8')
a('v_mov_b32 v9, 0')
a('ds_write_b32 v8, v9 offset:%d' % (IMGQ + 80))
a('v_min_u32 v8, 39, v0')
a('v_and_b32 v9, 3, v8')
a('v_mul_u32_u24 v9, %d, v9' % (2 * RS))
a('v_lshrrev_b32 v8, 2, v8')
a('v_lshl_add_u32 v8, v8, 3, v9')
a('v_mov_b32 v15, 0')
a('v_mov_b32 v17, 0')
a('v_mov_b32 v18, 0')
a('v_mov_b32 v20, 0')
a('s_waitcnt vmcnt(10)')
a('s_cmp_ge_u32 s%d, 5' % sWV)
a.branch('s_cbranch_scc1', 'L_w_x0ok')
a('s_waitcnt vmcnt(0)')
a.label('L_w_x0ok')
a('v_and_b32 v14, 0xffff, v12')
a('v_lshrrev_b32 v16, 16, v12')
a('v_and_b32 v19, 0xffff, v12')
a('v_lshrrev_b32 v21, 16, v12')
a('ds_write_b64 v8, v[14:15] offset:%d' % (IMGQ))
a('ds_write_b64 v8, v[16:17] offset:%d' % (IMGQ + RS))
a('ds_write_b64 v8, v[18:19] offset:%d' % (IMGQ + HSZ))
a('ds_write_b64 v8, v[20:21] offset:%d' % (IMGQ + HSZ + RS))
tag_ready()
a('s_cmp_lg_u32 s%d, 4' % sWV)
a.branch('s_cbranch_scc1', 'L_w_pre')
a('s_getreg_b32 s%d, hwreg(HW_REG_XCC_ID)' % sT0)
a('s_lshl_b32 s%d, s%d, 8' % (sT1, sG))
a('s_lshl_b32 s%d, s%d, 3' % (sT2, sR_))
a('s_add_u32 s%d, s%d, s%d' % (sT1, sT1, sT2))
a('s_add_u32 s%d, s%d, 0x%x' % (sT1, sT1, XC))
a('v_mov_b32 v5, s%d' % sT1)
a('v_mov_b32 v6, s%d' % sT0)
a('v_mov_b32 v7, s%d' % sEP)
a('s_mov_b64 exec, 1')
a('global_store_dwordx2 v5, v[6:7], %s sc1' % sp(sWS))
a('s_mov_b64 exec, -1')

XvT, XvMA, XaD, XaD2, XaI, XaX, Xxp = 5, 6, 8, 9, 10, 11, 22
XD, XE, Xd, Xd2, Xt, Xcol = 12, 16, 24, 25, 27, 23


def q_stats_addr():
    a('s_lshl_b32 s%d, s%d, 3' % (sT0, sH))
    a('s_add_u32 s%d, s%d, s%d' % (sT0, sT0, sJ))
    a('s_lshl_b32 s%d, s%d, 10' % (sT0, sT0))
    a('s_add_u32 s%d, s%d, %d' % (sT0, sT0, QP + 768))


a.label('L_w_pre')
a('s_cmp_lt_u32 s%d, 5' % sWV)
a.branch('s_cbranch_scc1', 'L_w_noq')
a('v_mov_b32 v5, s%d' % sTAG)
a('s_lshl_b32 s%d, s%d, 3' % (sT0, sH))
a('s_add_u32 s%d, s%d, s%d' % (sT0, sT0, sJ))
a('s_lshl_b32 s%d, s%d, 10' % (sT0, sT0))
a('s_sub_u32 s%d, s%d, 5' % (sT1, sWV))
a('s_lshl_b32 s%d, s%d, 8' % (sT1, sT1))
a('s_add_u32 s%d, s%d, s%d' % (sT0, sT0, sT1))
a('v_add_u32 v6, s%d, v%d' % (sT0, vPUB))
zero4(8)
a('s_waitcnt vmcnt(0)')
a('s_cmp_eq_u32 s%d, 0' % sLAY)
a.branch('s_cbranch_scc1', 'L_w_q_nb')
a('s_barrier')
a.label('L_w_q_nb')
stamp(0)
gemv(5, WWQ, IMGQ, 32, 8, vIRD)
classadd(8, 12)
pub2(6, 12, True, 5)
a('s_cmp_lg_u32 s%d, 0' % sLAY)
a.branch('s_cbranch_scc1', 'L_w_qdone')
colsum(5, WWQ, 16, 8)
classadd(8, 12)
a('v_add_u32 v6, 0x%x, v6' % CS)
pub2(6, 12, False, 5, base=sWS)
a.branch('s_branch', 'L_w_qsig')
a.label('L_w_noq')
a('s_waitcnt lgkmcnt(0)')
a('s_cmp_eq_u32 s%d, 0' % sLAY)
a.branch('s_cbranch_scc1', 'L_w_nq_nb')
a('s_barrier')
a.label('L_w_nq_nb')
stamp(0)
a('s_cmp_lg_u32 s%d, 3' % sWV)
a.branch('s_cbranch_scc1', 'L_w_qdone')
stats_pre(q_stats_addr)
stats_wave(IMGQ, 2)
a('s_cmp_lg_u32 s%d, 0' % sLAY)
a.branch('s_cbranch_scc1', 'L_w_qdone')
a.label('L_w_qsig')
a('v_mov_b32 v9, %d' % FLG)
a('v_mov_b32 v10, 1')
a('s_waitcnt vmcnt(0)')
a('s_mov_b64 exec, 1')
a('ds_add_u32 v9, v10')
a('s_mov_b64 exec, -1')
a('s_cmp_lg_u32 s%d, 6' % sWV)
a.branch('s_cbranch_scc1', 'L_w_qdone')
a('s_lshl_b32 s%d, s%d, 8' % (sT1, sG))
a('s_add_u32 s%d, s%d, 0x%x' % (sT1, sT1, XC))
a('v_and_b32 v5, 31, v0')
a('v_lshl_add_u32 v5, v5, 3, s%d' % sT1)
a('s_mov_b32 s%d, 0' % sCNT)
a.label('L_w_xc')
a('global_load_dwordx2 v[6:7], v5, %s sc1' % sp(sWS))
a('s_waitcnt vmcnt(0)')
a('v_cmp_ne_u32 vcc, s%d, v7' % sEP)
a.branch('s_cbranch_vccz', 'L_w_xcd')
spin_tail('L_w_xc', 8)
a.label('L_w_xcd')
a('s_getreg_b32 s%d, hwreg(HW_REG_XCC_ID)' % sT0)
a('v_cmp_ne_u32 vcc, s%d, v6' % sT0)
a('s_cmp_eq_u64 vcc, 0')
a('s_cselect_b32 s%d, %d, 0' % (sT0, 0 if OPT.get('nofast') else 1))
a('v_mov_b32 v10, s%d' % sT0)
a('ds_write_b32 v9, v10 offset:4')
a('s_waitcnt lgkmcnt(0)')
a.label('L_w_qdone')
stamp(1)
HvT, HaD, HaS, HaC, HaQ = 5, 6, 7, 8, 9
HD, HSt, HC, Hd, Hd2, Ht = 12, 16, 20, 24, 25, 27
a('s_cmp_ge_u32 s%d, 6' % sWV)
a.branch('s_cbranch_scc1', 'L_w_h5done')
a('v_mov_b32 v%d, s%d' % (HvT, sTAG))
lane_fields(l8=Hd, lg=Hd2)
a('s_lshl_b32 s%d, s%d, 13' % (sT0, sH))
a('s_lshl_b32 s%d, s%d, 7' % (sT1, sWV))
a('s_add_u32 s%d, s%d, s%d' % (sT1, sT1, sT0))
a('v_lshlrev_b32 v%d, 10, v%d' % (HaD, Hd2))
a('v_lshl_add_u32 v%d, v%d, 4, v%d' % (HaD, Hd, HaD))
a('v_add_u32 v%d, s%d, v%d' % (HaD, sT1, HaD))
a('v_add_u32 v%d, 0x%x, v%d' % (HaC, CS, HaD))
a('s_add_u32 s%d, s%d, %d' % (sT0, sT0, QP + 768))
a('v_lshl_add_u32 v%d, v%d, 10, s%d' % (HaS, Hd, sT0))
a('v_lshrrev_b32 v%d, 4, v%d' % (Hd2, vLANE))
a('v_lshl_add_u32 v%d, v%d, 2, v%d' % (Hd2, Hd, Hd2))
a('s_lshl_b32 s%d, s%d, 6' % (sT0, sWV))
a('s_add_u32 s%d, s%d, %d' % (sT0, sT0, QV))
a('v_lshl_add_u32 v%d, v%d, 1, s%d' % (HaQ, Hd2, sT0))


def h5_loads():
    a('global_load_dwordx4 %s, v%d, %s sc1' % (vr(HSt, 4), HaS, sp(sB)))
    a('global_load_dwordx4 %s, v%d, %s sc1' % (vr(HD, 4), HaD, sp(sB)))


def h5_loads0():
    h5_loads()
    a('global_load_dwordx4 %s, v%d, %s sc1' % (vr(HC, 4), HaC, sp(sWS)))


a('s_cmp_lg_u32 s%d, 0' % sLAY)
a.branch('s_cbranch_scc1', 'L_w_h5k1')
a('v_mov_b32 v10, %d' % FLG)
a.label('L_w_fspin')
a('s_sleep 2')
a('ds_read_b32 v11, v10')
a('s_waitcnt lgkmcnt(0)')
a('v_cmp_ne_u32 vcc, 4, v11')
a.branch('s_cbranch_vccnz', 'L_w_fspin')
poll(h5_loads0, [HSt, HSt + 2] + list(range(HD, HD + 4)) + list(range(HC, HC + 4)), HvT, Hd, Hd2, full=[HSt + 1, HSt + 3])
rscatter4(HC)
a('v_mov_b32 v%d, v%d' % (vCS, HC))
a.branch('s_branch', 'L_w_h5c')
a.label('L_w_h5k1')
poll(h5_loads, [HSt, HSt + 2] + list(range(HD, HD + 4)), HvT, Hd, Hd2, full=[HSt + 1, HSt + 3])
a.label('L_w_h5c')
stamp(2)
allred8('v_add_f32', [HSt, HSt + 2])
r = HD
a('v_permlane32_swap_b32 v%d, v%d' % (r, r + 2))
a('v_permlane32_swap_b32 v%d, v%d' % (r + 1, r + 3))
a('v_mul_f32 v%d, 0x%08x, v%d' % (HSt, f2u(1.0 / 640), HSt))
a('v_mul_f32 v%d, 0x%08x, v%d' % (HSt + 2, f2u(1.0 / 640), HSt + 2))
a('v_add_f32 v%d, v%d, v%d' % (r, r, r + 2))
a('v_add_f32 v%d, v%d, v%d' % (r + 1, r + 1, r + 3))
a('v_fma_f32 v%d, -v%d, v%d, v%d' % (HSt + 2, HSt, HSt, HSt + 2))
a('v_max_f32 v%d, 0, v%d' % (HSt + 2, HSt + 2))
a('v_permlane16_swap_b32 v%d, v%d' % (r, r + 1))
a('v_add_f32 v%d, v%d, v%d' % (r, r, r + 1))
a('v_add_f32 v%d, 0x%08x, v%d' % (HSt + 2, f2u(1e-5), HSt + 2))
a('v_rsq_f32 v%d, v%d' % (HSt + 2, HSt + 2))
a('v_add_f32_dpp v%d, v%d, v%d row_ror:8 row_mask:0xf bank_mask:0xf' % (r, r, r))
a('v_fma_f32 v%d, -v%d, v%d, v%d' % (HD, HSt, vCS, HD))
a('v_mul_f32 v%d, v%d, v%d' % (HD, HD, HSt + 2))
a('v_cvt_pk_bf16_f32 v%d, v%d, v%d' % (HD, HD, HD))
a('ds_write_b16 v%d, v%d' % (HaQ, HD))
a('s_waitcnt lgkmcnt(0)')
a.label('L_w_h5done')
a('s_barrier')
a('s_cmp_lg_u32 s%d, 0' % sLAY)
a.branch('s_cbranch_scc1', 'L_w_roleld_done')
read_fast(5)
a('s_cmp_lg_u32 s%d, 7' % sWV)
a.branch('s_cbranch_scc1', 'L_w_nopf0')
prefetch_own(0)
a.label('L_w_nopf0')
lane_fields(l8=5)
perm_lg(6, 7)
a('s_cmp_eq_u32 s%d, 1' % sROLE)
a.branch('s_cbranch_scc1', 'L_w_ld1')
a('s_cmp_eq_u32 s%d, 2' % sROLE)
a.branch('s_cbranch_scc1', 'L_w_ld2')
a('s_cmp_ge_u32 s%d, 4' % sWV)
a.branch('s_cbranch_scc1', 'L_w_roleld_done')
a('s_mul_i32 s%d, s%d, 768' % (sT0, sG))
a('s_mul_i32 s%d, s%d, 384' % (sT1, sRA))
a('s_add_u32 s%d, s%d, s%d' % (sT0, sT0, sT1))
a('s_mul_i32 s%d, s%d, 96' % (sT1, sWV))
a('s_add_u32 s%d, s%d, s%d' % (sT0, sT0, sT1))
a('s_mul_i32 s%d, s%d, 1280' % (sT0, sT0))
a('s_lshl_b32 s%d, s%d, 7' % (sT1, sRB))
a('s_add_u32 s%d, s%d, s%d' % (sT0, sT0, sT1))
a('v_mul_u32_u24 v7, 1280, v6')
a('v_lshl_add_u32 v7, v5, 4, v7')
a('v_add_u32 v7, s%d, v7' % sT0)
wloads(6, WROLE, 7, sWO, 1280)
a.branch('s_branch', 'L_w_roleld_done')
a.label('L_w_ld1')
a('s_cmp_ge_u32 s%d, 4' % sWV)
a.branch('s_cbranch_scc1', 'L_w_roleld_done')
a('s_mul_i32 s%d, s%d, 320' % (sT0, sRB))
a('s_mul_i32 s%d, s%d, 80' % (sT1, sWV))
a('s_add_u32 s%d, s%d, s%d' % (sT0, sT0, sT1))
a('s_mul_i32 s%d, s%d, 3072' % (sT0, sT0))
a('s_lshl_b32 s%d, s%d, 7' % (sT1, sRA))
a('s_add_u32 s%d, s%d, s%d' % (sT0, sT0, sT1))
a('v_mul_u32_u24 v7, 3072, v6')
a('v_lshl_add_u32 v7, v5, 4, v7')
a('v_add_u32 v7, s%d, v7' % sT0)
wloads(5, WROLE, 7, sW1, 3072)
a.branch('s_branch', 'L_w_roleld_done')
a.label('L_w_ld2')
a('s_cmp_ge_u32 s%d, 5' % sWV)
a.branch('s_cbranch_scc1', 'L_w_roleld_done')
a('s_mul_i32 s%d, s%d, %d' % (sT0, sRA, 64 * 1280))
a('s_mul_i32 s%d, s%d, 640' % (sT1, sRB))
a('s_add_u32 s%d, s%d, s%d' % (sT0, sT0, sT1))
a('s_lshl_b32 s%d, s%d, 7' % (sT1, sWV))
a('s_add_u32 s%d, s%d, s%d' % (sT0, sT0, sT1))
a('v_mul_u32_u24 v7, 1280, v6')
a('v_lshl_add_u32 v7, v5, 4, v7')
a('v_add_u32 v7, s%d, v7' % sT0)
wloads(4, WROLE, 7, sW2, 1280)
a.label('L_w_roleld_done')
CvT, CaR, CaP, CM = 5, 6, 7, 80
CP = 96
a('s_cmp_ge_u32 s%d, 4' % sWV)
a.branch('s_cbranch_scc1', 'L_w_nocomb')
a('v_mov_b32 v%d, s%d' % (CvT, sTAG))
a('s_lshl_b32 s%d, s%d, 8' % (sT0, sWV))
a('s_add_u32 s%d, s%d, %d' % (sT1, sT0, RED))
a('v_lshl_add_u32 v%d, v%d, 2, s%d' % (CaR, vLANE, sT1))
a('s_lshl_b32 s%d, s%d, 3' % (sT1, sH))
a('s_add_u32 s%d, s%d, s%d' % (sT1, sT1, sJ))
a('s_lshl_b32 s%d, s%d, 10' % (sT2, sT1))
a('s_add_u32 s%d, s%d, s%d' % (sT2, sT2, sT0))
a('s_add_u32 s%d, s%d, 0x%x' % (sT2, sT2, AT))
a('v_lshl_add_u32 v%d, v%d, 2, s%d' % (CaP, vLANE, sT2))
a('s_lshl_b32 s%d, s%d, 4' % (sT1, sT1))
a('s_add_u32 s%d, s%d, 0x%x' % (sT1, sT1, ML))
a('v_mov_b32 v8, s%d' % sT1)
a('v_mov_b32 v9, %d' % MWM)
a('s_setprio 0')
a('s_mov_b32 s%d, 0' % sCNT)
a.label('L_w_mspin')
a('s_add_u32 s%d, s%d, 1' % (sCNT, sCNT))
a('s_cmp_gt_u32 s%d, %d' % (sCNT, 4 * LIMIT))
a.branch('s_cbranch_scc1', 'L_end')
a('s_sleep %d' % int(OPT.get('msleep', 1)))
a('ds_read_b32 v10, v9 offset:%d' % (FLG + 8 - MWM))
a('ds_read_b128 %s, v9' % vr(CM, 4))
a('ds_read_b128 %s, v9 offset:16' % vr(CM + 4, 4))
a('s_waitcnt lgkmcnt(0)')
a('v_cmp_ne_u32 vcc, s%d, v10' % sMC)
a.branch('s_cbranch_vccnz', 'L_w_mspin')
a('v_max3_f32 v10, v%d, v%d, v%d' % (CM, CM + 1, CM + 2))
a('v_max3_f32 v11, v%d, v%d, v%d' % (CM + 3, CM + 4, CM + 5))
a('v_max3_f32 v10, v10, v%d, v%d' % (CM + 6, CM + 7))
a('v_max_f32 v10, v10, v11')
for i in range(8):
    a('v_sub_f32 v%d, v%d, v10' % (CM + i, CM + i))
for i in range(8):
    a('v_exp_f32 v%d, v%d' % (CM + i, CM + i))
a('s_setprio 3')
a('s_cmp_eq_u32 s%d, 3' % sWV)
a.branch('s_cbranch_scc1', 'L_w_ml')
a('s_barrier')
stamp(3)
for i in range(8):
    a('ds_read2st64_b32 %s, v%d offset0:%d offset1:%d' % (vr(CP + 2 * i, 2), CaR, 6 * i, 6 * i + 3))
for i in range(8):
    a('s_waitcnt lgkmcnt(%d)' % (7 - i))
    a('v_add_f32 v%d, v%d, v%d' % (CP + 2 * i, CP + 2 * i, CP + 2 * i + 1))
    if i < 2:
        a('v_mul_f32 v%d, v%d, v%d' % (11 + i, CP + 2 * i, CM + i))
    else:
        a('v_fmac_f32 v%d, v%d, v%d' % (11 + i % 2, CP + 2 * i, CM + i))
a('v_add_f32 v11, v11, v12')
addtag([11], CvT)
fstore('global_store_dword v%d, v11, %s' % (CaP, sp(sB)))
a.branch('s_branch', 'L_w_combdone')
a.label('L_w_ml')
a('v_mov_b32 v12, v10')
a('v_lshlrev_b32 v14, 8, v10')
a('v_mov_b32 v15, s%d' % sEP)
addtag([12, 14], CvT)
a('s_barrier')
a('ds_read_b128 %s, v9 offset:%d' % (vr(CP, 4), MWL - MWM))
a('ds_read_b128 %s, v9 offset:%d' % (vr(CP + 4, 4), MWL - MWM + 16))
a('s_waitcnt lgkmcnt(0)')
a('v_mul_f32 v13, v%d, v%d' % (CM, CP))
a('v_mul_f32 v11, v%d, v%d' % (CM + 1, CP + 1))
for i in range(2, 8):
    a('v_fmac_f32 v%d, v%d, v%d' % (13 if i % 2 == 0 else 11, CM + i, CP + i))
a('v_add_f32 v13, v13, v11')
addtag([13], CvT)
a('s_mov_b64 exec, 1')
fstore('global_store_dwordx4 v8, v[12:15], %s' % sp(sB))
a('s_mov_b64 exec, -1')
a.branch('s_branch', 'L_w_combdone')
a.label('L_w_nocomb')
a('s_barrier')
a.label('L_w_combdone')
a('s_cmp_eq_u32 s%d, 1' % sROLE)
a.branch('s_cbranch_scc1', 'L_w_r1')
a('s_cmp_eq_u32 s%d, 2' % sROLE)
a.branch('s_cbranch_scc1', 'L_w_r2')
a('s_cmp_lt_u32 s%d, 4' % sWV)
a.branch('s_cbranch_scc1', 'L_w_o_g')
a('s_add_u32 s%d, s%d, 4' % (sU, sWV))
h1_gather()
a('s_barrier')
a('s_barrier')
a.branch('s_branch', 'L_w_roledone')
a.label('L_w_o_g')
a('s_mul_i32 s%d, s%d, 96' % (sT0, sWV))
a('v_add_u32 v6, s%d, v%d' % (sT0, vIRD))
a('v_and_b32 v7, 7, v0')
a('v_lshlrev_b32 v7, 5, v7')
a('v_bfe_u32 v8, v0, 4, 1')
a('v_lshl_add_u32 v7, v8, 4, v7')
a('v_lshrrev_b32 v8, 5, v0')
a('v_lshl_add_u32 v7, v8, 8, v7')
a('s_lshl_b32 s%d, s%d, 9' % (sT0, sWV))
a('s_add_u32 s%d, s%d, %d' % (sT0, sT0, RED2))
a('v_add_u32 v7, s%d, v7' % sT0)
a('v_mov_b32 v5, s%d' % sTAG)
a('v_lshlrev_b32 v12, 2, v0')
a('s_lshl_b32 s%d, s%d, 1' % (sT0, sG))
a('s_add_u32 s%d, s%d, s%d' % (sT0, sT0, sRA))
a('s_mul_i32 s%d, s%d, 2560' % (sT0, sT0))
a('s_lshl_b32 s%d, s%d, 8' % (sT1, sRB))
a('s_add_u32 s%d, s%d, s%d' % (sT0, sT0, sT1))
a('s_add_u32 s%d, s%d, 0x%x' % (sT0, sT0, YY))
a('v_add_u32 v13, s%d, v12' % sT0)
a('v_add_u32 v12, %d, v12' % RED2)
sent_store(sR_, SN1, 14, 15)
zero4(8)
a('s_waitcnt vmcnt(0)')
stamp(4)
a('s_barrier')
stamp(5)
gemv(6, WROLE, IMGR, 80, 8, 6)
a('s_mov_b64 exec, %s' % sp(sEXA))
a('ds_write_b128 v7, v[8:11]')
a('s_mov_b64 exec, -1')
a('s_waitcnt lgkmcnt(0)')
a('s_barrier')
a('s_cmp_lg_u32 s%d, 0' % sWV)
a.branch('s_cbranch_scc1', 'L_w_roledone')
for i in range(4):
    a('ds_read2st64_b32 %s, v12 offset0:%d offset1:%d' % (vr(16 + 2 * i, 2), 2 * i, 2 * i + 1))
a('s_waitcnt lgkmcnt(2)')
a('v_add_f32 v16, v16, v17')
a('v_add_f32 v18, v18, v19')
a('s_waitcnt lgkmcnt(0)')
a('v_add_f32 v20, v20, v21')
a('v_add_f32 v22, v22, v23')
a('v_add_f32 v16, v16, v18')
a('v_add_f32 v20, v20, v22')
a('v_add_f32 v16, v16, v20')
addtag([16], 5)
a('global_store_dword v13, v16, %s sc1' % sp(sB))
if SENT & 1:
    sent_fire(14, 15)
stamp(6)
a.branch('s_branch', 'L_w_roledone')
a.label('L_w_r1')
a('s_cmp_lt_u32 s%d, 4' % sWV)
a.branch('s_cbranch_scc1', 'L_w_1_g')
a('s_cmp_eq_u32 s%d, 4' % sWV)
a.branch('s_cbranch_scc1', 'L_w_1_idle')
a('s_cmp_eq_u32 s%d, 7' % sWV)
a.branch('s_cbranch_scc1', 'L_w_1_st')
a('s_add_u32 s%d, s%d, 3' % (sU, sWV))
h2_gather()
a.label('L_w_1_idle')
a('s_barrier')
a.branch('s_branch', 'L_w_roledone')
a.label('L_w_1_st')


def w1_stats_addr():
    a('s_lshl_b32 s%d, s%d, 7' % (sT0, sRA))
    a('s_lshl_b32 s%d, s%d, 4' % (sT1, sRB))
    a('s_add_u32 s%d, s%d, s%d' % (sT0, sT0, sT1))
    a('s_add_u32 s%d, s%d, 0x%x' % (sT0, sT0, HS))


stats_pre(w1_stats_addr)
a('s_barrier')
stats_wave(IMGR, 5)
a.branch('s_branch', 'L_w_roledone')
a.label('L_w_1_g')
a('s_mul_i32 s%d, s%d, 80' % (sT0, sWV))
a('v_add_u32 v6, s%d, v%d' % (sT0, vIRD))
a('v_mov_b32 v5, s%d' % sTAG)
a('s_lshl_b32 s%d, s%d, 1' % (sT0, sRA))
a('s_add_u32 s%d, s%d, s%d' % (sT0, sT0, sRB))
a('s_lshl_b32 s%d, s%d, 2' % (sT0, sT0))
a('s_add_u32 s%d, s%d, s%d' % (sT0, sT0, sWV))
a('s_lshl_b32 s%d, s%d, 8' % (sT0, sT0))
a('v_add_u32 v7, s%d, v%d' % (sT0, vPUB))
a('s_waitcnt vmcnt(0)')
a('s_cmp_lg_u32 s%d, 0' % sLAY)
a.branch('s_cbranch_scc1', 'L_w_1_nocs')
colsum(5, WROLE, 16, 8)
classadd(8, 12)
a('v_add_u32 v14, 0x%x, v7' % CS1)
pub2(14, 12, False, 5, base=sWS)
a.label('L_w_1_nocs')
a('v_add_u32 v7, 0x%x, v7' % HP)
zero4(8)
stamp(4)
a('s_barrier')
stamp(5)
gemv(5, WROLE, IMGR, 80, 8, 6)
classadd(8, 12)
pub2(7, 12, True, 5)
stamp(6)
a.branch('s_branch', 'L_w_roledone')
a.label('L_w_r2')
a('s_cmp_lt_u32 s%d, 5' % sWV)
a.branch('s_cbranch_scc1', 'L_w_2_g')
a('s_cmp_lg_u32 s%d, 5' % sWV)
a.branch('s_cbranch_scc1', 'L_w_2_idle')
GvT, GaD, GaS, GaI, GaI2 = 5, 6, 7, 8, 9
GD, GE, GSt, Gd, Gd2, Gt = 12, 16, 20, 24, 25, 27
a('v_mov_b32 v%d, s%d' % (GvT, sTAG))
lane_fields(l8=Gd, lg=Gd2)
a('s_lshl_b32 s%d, s%d, 11' % (sT0, sRA))
a('v_lshlrev_b32 v%d, 8, v%d' % (GaD, Gd2))
a('v_lshl_add_u32 v%d, v%d, 4, v%d' % (GaD, Gd, GaD))
a('v_add_u32 v%d, s%d, v%d' % (GaD, sT0, GaD))
a('s_lshl_b32 s%d, s%d, 7' % (sT0, sRA))
a('s_add_u32 s%d, s%d, 0x%x' % (sT0, sT0, HS))
a('v_mov_b32 v%d, s%d' % (GaS, sT0))
a('v_lshrrev_b32 v%d, 4, v%d' % (Gd2, vLANE))
a('v_lshl_add_u32 v%d, v%d, 2, v%d' % (Gd2, Gd, Gd2))
a('v_and_b32 v%d, 8, v%d' % (Gt, vLANE))
a('v_lshl_add_u32 v%d, v%d, 2, v%d' % (Gd2, Gt, Gd2))
a('v_and_b32 v%d, 7, v%d' % (Gt, Gd2))
a('v_mul_u32_u24 v%d, %d, v%d' % (GaI, RS, Gt))
a('v_and_b32 v%d, 0xfffffff8, v%d' % (Gt, Gd2))
a('v_add_u32 v%d, v%d, v%d' % (GaI, GaI, Gt))
a('v_and_b32 v%d, 8, v%d' % (Gt, vLANE))
a('v_cmp_eq_u32 s[58:59], 0, v%d' % Gt)


def rs8():
    for b in (GD, GE):
        a('v_permlane32_swap_b32 v%d, v%d' % (b, b + 2))
        a('v_permlane32_swap_b32 v%d, v%d' % (b + 1, b + 3))
    for b in (GD, GE):
        a('v_add_f32 v%d, v%d, v%d' % (b, b, b + 2))
        a('v_add_f32 v%d, v%d, v%d' % (b + 1, b + 1, b + 3))
    for b in (GD, GE):
        a('v_permlane16_swap_b32 v%d, v%d' % (b, b + 1))
    for b in (GD, GE):
        a('v_add_f32 v%d, v%d, v%d' % (b, b, b + 1))
    a('v_cndmask_b32 v%d, v%d, v%d, s[58:59]' % (GD + 2, GD, GE))
    a('v_cndmask_b32 v%d, v%d, v%d, s[58:59]' % (GD + 1, GE, GD))
    a('v_add_f32_dpp v%d, v%d, v%d row_ror:8 row_mask:0xf bank_mask:0xf' % (GD, GD + 2, GD + 1))


a('s_cmp_lg_u32 s%d, 0' % sLAY)
a.branch('s_cbranch_scc1', 'L_w_2_nocs')
a('s_lshl_b32 s%d, s%d, 7' % (sT0, sRA))
a('v_lshl_add_u32 v%d, v%d, 1, s%d' % (GaI2, Gd2, sT0))
a('global_load_ushort v%d, v%d, %s' % (vB1, GaI2, sp(sB1)))
a('v_add_u32 v%d, 0x%x, v%d' % (GaI2, CS1, GaD))


def cs1_loads():
    a('global_load_dwordx4 %s, v%d, %s sc1' % (vr(GD, 4), GaI2, sp(sWS)))
    a('global_load_dwordx4 %s, v%d, %s offset:128 sc1' % (vr(GE, 4), GaI2, sp(sWS)))


poll(cs1_loads, list(range(GD, GD + 8)), GvT, Gd, Gd2, sleep=4)
rs8()
a('v_mov_b32 v%d, v%d' % (vCS1, GD))
a('v_lshlrev_b32 v%d, 16, v%d' % (vB1, vB1))
a.label('L_w_2_nocs')
a('v_add_u32 v%d, 0x%x, v%d' % (GaD, HP, GaD))
a('v_mov_b32 v10, 0')
a('v_mov_b32 v11, 0')


def h3_loads():
    a('global_load_dwordx4 %s, v%d, %s sc1' % (vr(GSt, 4), GaS, sp(sB)))
    a('global_load_dwordx4 %s, v%d, %s offset:16 sc1' % (vr(28, 4), GaS, sp(sB)))
    a('global_load_dwordx4 %s, v%d, %s sc1' % (vr(GD, 4), GaD, sp(sB)))
    a('global_load_dwordx4 %s, v%d, %s offset:128 sc1' % (vr(GE, 4), GaD, sp(sB)))


poll(h3_loads, list(range(GD, GD + 8)) + [GSt, GSt + 2, 28, 30], GvT, Gd, Gd2, full=[GSt + 1, GSt + 3, 29, 31])
stamp(4)
a('v_add_f32 v%d, v%d, v28' % (GSt, GSt))
a('v_add_f32 v%d, v%d, v30' % (GSt + 1, GSt + 2))
ln_from_stats(GSt, GSt + 1)
rs8()
a('v_fma_f32 v%d, -v%d, v%d, v%d' % (GD, GSt, vCS1, GD))
a('v_fma_f32 v%d, v%d, v%d, v%d' % (GD, GD, GSt + 1, vB1))
e, n1, d1, n2 = GE, GE + 1, GE + 2, GE + 3
a('v_mul_f32 v%d, 0x%08x, v%d' % (e, f2u(math.log2(math.e)), GD))
a('v_exp_f32 v%d, -abs(v%d)' % (e, e))
a('v_cmp_le_f32 vcc, 0, v%d' % GD)
a('v_fma_f32 v%d, v%d, 2.0, 1.0' % (n1, e))
a('v_add_f32 v%d, 2.0, v%d' % (n2, e))
a('v_mul_f32 v%d, v%d, v%d' % (d1, e, e))
a('v_mul_f32 v%d, v%d, v%d' % (n2, n2, e))
a('v_cndmask_b32 v%d, 1.0, v%d, vcc' % (d1, d1))
a('v_cndmask_b32 v%d, v%d, v%d, vcc' % (n1, n2, n1))
a('v_fma_f32 v%d, v%d, 2.0, v%d' % (d1, d1, n1))
a('v_rcp_f32 v%d, v%d' % (d1, d1))
a('v_mul_f32 v%d, v%d, v%d' % (n1, n1, GD))
a('v_mul_f32 v%d, v%d, v%d' % (n1, n1, d1))
a('v_cvt_pk_bf16_f32 v%d, v%d, v10' % (n1, n1))
a('ds_write2_b32 v%d, v%d, v10 offset0:%d offset1:%d' % (GaI2, n1, 0, 1) if False else 'v_mov_b32 v%d, v%d' % (GD, n1))
a('v_mov_b32 v%d, 0' % (GD + 1))
a('v_mov_b32 v11, v%d' % n1)
a('ds_write_b64 v%d, %s offset:%d' % (GaI, vr(GD, 2), IMGR))
a('ds_write_b64 v%d, v[10:11] offset:%d' % (GaI, IMGR + HSZ))
a('s_waitcnt lgkmcnt(0)')
a.label('L_w_2_idle')
a('s_barrier')
a.branch('s_branch', 'L_w_roledone')
a.label('L_w_2_g')
a('v_mov_b32 v5, s%d' % sTAG)
a('s_mul_i32 s%d, s%d, 2560' % (sT0, sRA))
a('s_mul_i32 s%d, s%d, 1280' % (sT1, sRB))
a('s_add_u32 s%d, s%d, s%d' % (sT0, sT0, sT1))
a('s_lshl_b32 s%d, s%d, 8' % (sT1, sWV))
a('s_add_u32 s%d, s%d, s%d' % (sT0, sT0, sT1))
a('s_add_u32 s%d, s%d, 0x%x' % (sT0, sT0, ZZ))
a('v_add_u32 v7, s%d, v%d' % (sT0, vPUB))
a('s_sub_u32 s%d, s%d, 26' % (sT0, sR_))
a('s_mul_i32 s%d, s%d, 5' % (sT0, sT0))
a('s_add_u32 s%d, s%d, s%d' % (sT0, sT0, sWV))
sent_store(sT0, SN2, 14, 15)
zero4(8)
a('s_waitcnt vmcnt(0)')
a('s_barrier')
stamp(5)
gemv(4, WROLE, IMGR, 80, 8, vIRD)
classadd(8, 12)
pub2(7, 12, False, 5)
if SENT & 2:
    sent_fire(14, 15)
stamp(6)
a.label('L_w_roledone')
a('s_cmp_eq_u32 s%d, 0' % sLAY)
a.branch('s_cbranch_scc1', 'L_w_h4')
a('s_cmp_lg_u32 s%d, 0' % sH)
a.branch('s_cbranch_scc1', 'L_end')
a('s_cmp_ge_u32 s%d, 5' % sWV)
a.branch('s_cbranch_scc1', 'L_end')
a.label('L_w_h4')
a('s_cmp_lg_u32 s%d, 7' % sWV)
a.branch('s_cbranch_scc1', 'L_w_nopf1')
prefetch_own(LB)
a.label('L_w_nopf1')
a('s_cmp_ge_u32 s%d, 5' % sWV)
a.branch('s_cbranch_scc1', 'L_w_next')
a('v_mov_b32 v%d, s%d' % (XvT, sTAG))
img_masks(XvMA, Xt)
a('v_and_b32 v%d, 3, v%d' % (Xd, vLANE))
a('v_lshrrev_b32 v%d, 4, v%d' % (Xd2, vLANE))
a('v_lshl_add_u32 v%d, v%d, 2, v%d' % (Xd2, Xd, Xd2))
a('s_lshl_b32 s%d, s%d, 4' % (sT0, sWV))
a('v_add_u32 v%d, s%d, v%d' % (Xd2, sT0, Xd2))
img_addr(XaI, Xd2, Xt, IMGQ)
a('s_mul_i32 s%d, s%d, 80' % (sT1, sJ))
a('v_add_u32 v%d, s%d, v%d' % (Xcol, sT1, Xd2))
a('v_lshrrev_b32 v%d, 2, v%d' % (Xt, vLANE))
a('v_mul_u32_u24 v%d, 2560, v%d' % (XaD, Xt))
a('v_lshl_add_u32 v%d, v%d, 4, v%d' % (XaD, Xd, XaD))
a('s_mul_i32 s%d, s%d, 320' % (sT0, sJ))
a('s_lshl_b32 s%d, s%d, 6' % (sT1, sWV))
a('s_add_u32 s%d, s%d, s%d' % (sT0, sT0, sT1))
a('s_add_u32 s%d, s%d, 0x%x' % (sT0, sT0, ZZ))
a('v_add_u32 v%d, s%d, v%d' % (XaD, sT0, XaD))
a('v_add_u32 v%d, %d, v%d' % (XaD2, 16 * 2560, XaD))
a('v_lshlrev_b32 v%d, 2, v%d' % (XaX, Xcol))
a('v_add_u32 v%d, 0x%x, v%d' % (XaX, ZZ + 24 * 2560, XaX))
for k in range(4):
    a('v_mov_b32 v%d, v%d' % (XE + k, XvT))
if SENT & 2:
    a('s_cmp_lg_u32 s%d, 0' % sLAY)
    a.branch('s_cbranch_scc1', 'L_w_nosent')
    sentinel(SN2, 30, Xd, Xd2)
    a.label('L_w_nosent')


def h4_loads():
    a('global_load_dword v%d, v%d, %s sc1' % (Xxp, XaX, sp(sB)))
    a('global_load_dwordx4 %s, v%d, %s sc1' % (vr(XD, 4), XaD, sp(sB)))
    a('s_mov_b32 exec_hi, 0')
    a('global_load_dwordx4 %s, v%d, %s sc1' % (vr(XE, 4), XaD2, sp(sB)))
    a('s_mov_b32 exec_hi, -1')


poll(h4_loads, list(range(XD, XD + 8)) + [Xxp], XvT, Xd, Xd2)
stamp(7)
for k in range(4):
    a('v_add_f32 v%d, v%d, v%d' % (XD + k, XD + k, XE + k))
a('v_and_b32 v%d, s%d, v%d' % (Xxp, sHI, Xxp))
rscatter4(XD, extra_ror4=True)
resid_round(XD, Xxp, XD)
a('s_cmp_lg_u32 s%d, 0' % sLAY)
a.branch('s_cbranch_scc1', 'L_w_final')
img_write(XD, XvMA, XE, XaI)
a('s_cmp_lg_u32 s%d, 0' % sH)
a.branch('s_cbranch_scc1', 'L_w_next')
a('v_and_or_b32 v%d, v%d, s%d, v%d' % (XD, XD, sHI, XvT))
a('v_lshlrev_b32 v%d, 2, v%d' % (XaX, Xcol))
a('v_add_u32 v%d, 0x%x, v%d' % (XaX, X2, XaX))
a('s_mov_b32 exec_lo, 0x000f000f')
a('s_mov_b32 exec_hi, 0x000f000f')
a('global_store_dword v%d, v%d, %s sc1' % (XaX, XD, sp(sWS)))
a('s_mov_b64 exec, -1')
a.label('L_w_next')
next_layer()
a.branch('s_branch', 'L_w_pre')
a.label('L_w_final')
if 'failmask' in OPT:
    a('s_and_b32 s%d, s%d, %s' % (sT0, sEP, OPT['failmask']))
    a('s_cmp_eq_u32 s%d, %s' % (sT0, OPT['failval']))
    a('s_cselect_b32 s%d, 0x4000, 0' % sT0)
    a('v_xor_b32 v%d, s%d, v%d' % (XD, sT0, XD))
a('v_lshlrev_b32 v%d, 1, v%d' % (XaX, Xcol))
a('s_mov_b32 exec_lo, 0x000f000f')
a('s_mov_b32 exec_hi, 0x000f000f')
a('global_store_short v%d, v%d, %s' % (XaX, XD, sp(sOUT)))
a('s_mov_b64 exec, -1')
a('s_or_b32 s%d, s%d, s%d' % (sT0, sJ, sWV))
a('s_cmp_lg_u32 s%d, 0' % sT0)
a.branch('s_cbranch_scc1', 'L_end')
a('v_mov_b32 v5, 0x%x' % EPOCH)
a('v_mov_b32 v6, s%d' % sEP)
a('s_mov_b64 exec, 1')
a('global_store_dword v5, v6, %s sc1' % sp(sWS))
a('s_mov_b64 exec, -1')
if PROBE is not None:
    a('s_memrealtime s[66:67]')
    a('s_waitcnt lgkmcnt(0)')
    if PROBE == 'end':
        a('s_mov_b32 s64, s66')
    a('s_sub_u32 s64, s64, s96')
    a('s_add_u32 s64, s64, s66')
    a.label('L_probe_spin')
    a('s_memrealtime s[66:67]')
    a('s_waitcnt lgkmcnt(0)')
    a('s_sub_u32 s68, s66, s64')
    a('s_cmp_lt_i32 s68, 0')
    a.branch('s_cbranch_scc1', 'L_probe_spin')
a.branch('s_branch', 'L_end')

a.label('L_kv')
if DEBUG:
    for i in range(16):
        a('s_mov_b64 s[%d:%d], 0' % (64 + 2 * i, 65 + 2 * i))
KB, VB = 32, 80
a('s_setprio 1')
lane_fields(l8=5, lg=6)
perm_lg(7, 8)
a('s_sub_u32 s%d, s%d, 8' % (sU, sWV))
a('s_mul_i32 s%d, s%d, 3145728' % (sT0, sH))
a('s_lshl_b32 s%d, s%d, 8' % (sT1, sJ))
a('s_lshl_b32 s%d, s%d, 5' % (sT2, sU))
a('s_add_u32 s%d, s%d, s%d' % (sT1, sT1, sT2))
a('s_add_u32 s%d, s%d, 6144' % (sT1, sT1))
a('s_mul_i32 s%d, s%d, 384' % (sT1, sT1))
a('s_add_u32 s%d, s%d, s%d' % (sT0, sT0, sT1))
a('v_mul_u32_u24 v28, 384, v6')
a('v_lshl_add_u32 v28, v5, 4, v28')
a('v_add_u32 v28, s%d, v28' % sT0)
a('v_add_u32 v29, 6144, v28')
a('v_mul_u32_u24 v30, 384, v7')
a('v_lshl_add_u32 v30, v5, 4, v30')
a('v_add_u32 v30, s%d, v30' % sT0)
a('v_add_u32 v31, 6144, v30')
lds = []
for u in range(4):
    for t in range(3):
        lds.append('global_load_dwordx4 %s, v%d, %s offset:%d' % (vr(KB + 12 * u + 4 * t, 4), 28 + u // 2, sp(sK), (u % 2) * 3072 + 128 * t) + NT)
for P in range(2):
    for t in range(3):
        for ub in range(2):
            lds.append('global_load_dwordx4 %s, v%d, %s offset:%d' % (vr(VB + (3 * P + t) * 8 + 4 * ub, 4), 30 + P, sp(sV), ub * 1536 + 128 * t) + NT)
a('s_waitcnt lgkmcnt(0)')
a('s_barrier')
for n, ld in enumerate(lds):
    lim = INF if n < VFREE else 64
    if n >= lim:
        a('s_waitcnt vmcnt(%d)' % (lim - 1))
    a(ld)
    if n + 1 == min(INF, 8):
        rest_setup()
tag_ready()
a.label('L_kv_loop')
Q, S, A0, mm, ll, tt, aM = 8, 20, 24, 5, 6, 7, 4
a('v_and_b32 v%d, 7, v0' % tt)
a('v_lshlrev_b32 v%d, 4, v%d' % (tt, tt))
for u in range(4):
    a('v_mov_b32 v%d, 0' % (S + u))
a('s_sub_u32 s%d, s%d, 8' % (sU, sWV))
a('s_lshl_b32 s%d, s%d, 2' % (sT0, sU))
a('s_add_u32 s%d, s%d, %d' % (sT0, sT0, MWM))
a('v_mov_b32 v%d, s%d' % (aM, sT0))
a('v_mov_b32 v%d, %d' % (A0, FLG + 8))
a('v_mov_b32 v%d, 1' % (A0 + 1))
a('s_barrier')
stamp(0)
for t in range(3):
    a('ds_read_b128 %s, v%d offset:%d' % (vr(Q + 4 * t, 4), tt, QV + 128 * t))
a('s_waitcnt vmcnt(12)')
stamp(1)
for t in range(3):
    a('s_waitcnt lgkmcnt(%d)' % (2 - t))
    for k in range(4):
        for u in range(4):
            a('v_dot2c_f32_bf16 v%d, v%d, v%d' % (S + u, KB + 12 * u + 4 * t + k, Q + 4 * t + k))
allred8('v_add_f32', [S, S + 1, S + 2, S + 3])
cscale = math.log2(math.e) / math.sqrt(192.0)
for u in range(4):
    a('v_mul_f32 v%d, 0x%08x, v%d' % (S + u, f2u(cscale), S + u))
a('v_max3_f32 v%d, v%d, v%d, v%d' % (mm, S, S + 1, S + 2))
a('v_max_f32 v%d, v%d, v%d' % (mm, mm, S + 3))
a('v_mov_b32 v%d, 0' % Q)
a('v_mov_b32 v%d, 0' % (Q + 1))
a('v_max_f32_dpp v%d, v%d, v%d row_ror:8 row_mask:0xf bank_mask:0xf' % (mm, mm, mm))
a('v_mov_b32 v%d, v%d' % (tt, mm))
a('v_mov_b32 v%d, 0' % (Q + 2))
a('v_mov_b32 v%d, 0' % (Q + 3))
a('v_permlane16_swap_b32 v%d, v%d' % (mm, tt))
a('v_max_f32 v%d, v%d, v%d' % (mm, mm, tt))
a('v_mov_b32 v%d, v%d' % (tt, mm))
a('v_mov_b32 v%d, 0' % (Q + 4))
a('v_mov_b32 v%d, 0' % (Q + 5))
a('v_permlane32_swap_b32 v%d, v%d' % (mm, tt))
a('v_max_f32 v%d, v%d, v%d' % (mm, mm, tt))
a('s_mov_b64 exec, 1')
a('ds_write_b32 v%d, v%d' % (aM, mm))
a('ds_add_u32 v%d, v%d' % (A0, A0 + 1))
a('s_mov_b64 exec, -1')
for u in range(4):
    a('v_sub_f32 v%d, v%d, v%d' % (S + u, S + u, mm))
for u in range(4):
    a('v_exp_f32 v%d, v%d' % (S + u, S + u))
for k in range(6, 12):
    a('v_mov_b32 v%d, 0' % (Q + k))
a('v_add_f32 v%d, v%d, v%d' % (ll, S, S + 1))
a('v_add_f32 v%d, v%d, v%d' % (tt, S + 2, S + 3))
a('v_cvt_pk_bf16_f32 v%d, v%d, v%d' % (S, S, S + 1))
a('v_cvt_pk_bf16_f32 v%d, v%d, v%d' % (S + 2, S + 2, S + 3))
a('v_add_f32 v%d, v%d, v%d' % (ll, ll, tt))
a('v_lshrrev_b32 v%d, 16, v%d' % (S + 1, S))
a('v_lshrrev_b32 v%d, 16, v%d' % (S + 3, S + 2))
for e_ in range(4):
    a('v_and_b32 v%d, v%d, v%d' % (A0 + 2 * e_, S + e_, vMLO))
    a('v_and_b32 v%d, v%d, v%d' % (A0 + 2 * e_ + 1, S + e_, vMHI))
stamp(2)
lred = [
    'v_add_f32_dpp v%d, v%d, v%d row_ror:8 row_mask:0xf bank_mask:0xf' % (ll, ll, ll),
    'v_mov_b32 v%d, v%d' % (tt, ll),
    'v_permlane16_swap_b32 v%d, v%d' % (ll, tt),
    'v_add_f32 v%d, v%d, v%d' % (ll, ll, tt),
    'v_mov_b32 v%d, v%d' % (tt, ll),
    'v_permlane32_swap_b32 v%d, v%d' % (ll, tt),
    'v_add_f32 v%d, v%d, v%d' % (ll, ll, tt),
]
adr = [
    'v_and_b32 v%d, 7, v0' % S,
    'v_lshlrev_b32 v%d, 5, v%d' % (S, S),
    'v_bfe_u32 v%d, v0, 4, 1' % (S + 1),
    'v_lshl_add_u32 v%d, v%d, 4, v%d' % (S, S + 1, S),
    'v_lshrrev_b32 v%d, 5, v0' % (S + 1),
    'v_mul_u32_u24 v%d, 768, v%d' % (S + 1, S + 1),
]
a('s_mul_i32 s%d, s%d, 1536' % (sT0, sU))
a('s_add_u32 s%d, s%d, %d' % (sT0, sT0, RED))
for P in range(2):
    for t in range(3):
        a('s_waitcnt vmcnt(%d)' % (10 - 2 * (3 * P + t)))
        a('v_smfmac_f32_16x16x64_bf16 %s, %s, %s, v%d' % (vr(Q + 4 * t, 4), vr(A0 + 4 * P, 4), vr(VB + (3 * P + t) * 8, 8), vIDX))
        a(lred.pop(0))
        a(adr.pop(0))
a(lred.pop(0))
a('v_add3_u32 v%d, v%d, v%d, s%d' % (S, S, S + 1, sT0))
a('s_mov_b64 exec, 1')
a('ds_write_b32 v%d, v%d offset:%d' % (aM, ll, MWL - MWM))
a('s_mov_b64 exec, %s' % sp(sEXA))
for t in range(3):
    a('ds_write_b128 v%d, %s offset:%d' % (S, vr(Q + 4 * t, 4), 256 * t))
a('s_mov_b64 exec, -1')
a('s_waitcnt lgkmcnt(0)')
stamp(3)
a('s_barrier')
read_fast(5)
a('s_cmp_eq_u32 s%d, 1' % sROLE)
a.branch('s_cbranch_scc1', 'L_kv_r1')
a('s_cmp_eq_u32 s%d, 2' % sROLE)
a.branch('s_cbranch_scc1', 'L_kv_r2')
h1_gather()
stamp(5)
a('s_barrier')
a('s_barrier')
a.branch('s_branch', 'L_kv_roledone')
a.label('L_kv_r1')
h2_gather()
stamp(5)
a.label('L_kv_r2')
a('s_barrier')
a.label('L_kv_roledone')
a('s_cmp_lg_u32 s%d, 0' % sLAY)
a.branch('s_cbranch_scc1', 'L_end')
next_layer()
a('s_barrier')
a.branch('s_branch', 'L_kv_loop')

for (Ls, text, Lb) in ool:
    a.label(Ls)
    a(text)
    a.branch('s_branch', Lb)

a.label('L_end')
a('s_mov_b64 exec, -1')
dump_stamps()
a.label('L_exit')
a.raw('    s_endpgm')
a.raw('.section .rodata,"a"')
a.raw('.p2align 6')
a.raw('.amdhsa_kernel %s_kernel' % NAME)
a.raw('  .amdhsa_next_free_vgpr 128')
a.raw('  .amdhsa_next_free_sgpr 102')
a.raw('  .amdhsa_accum_offset 128')
a.raw('  .amdhsa_group_segment_fixed_size 0')
a.raw('  .amdhsa_kernarg_size 96')
a.raw('  .amdhsa_user_sgpr_count 2')
a.raw('  .amdhsa_user_sgpr_kernarg_segment_ptr 1')
a.raw('  .amdhsa_system_sgpr_workgroup_id_x 1')
a.raw('.end_amdhsa_kernel')
open(OUT, 'w').write(a.text())
print('wrote', OUT, len(a.out), 'lines')
```

```python
import sys, math, struct
from asmlib import Asm

NAME = 'interleave_layers__sliding_block_cached__dense_activation_mish__decode'
DEBUG = '--debug' in sys.argv
DBGOUT = '--dbgout' in sys.argv
OPT = dict(x[2:].split('=') for x in sys.argv[1:] if x.startswith('--') and '=' in x)
INF = int(OPT.get('inf', 4))
VFREE = int(OPT.get('vfree', 14))
NT = {'nt': ' nt', 'plain': ''}[OPT.get('pol', 'nt')]
LATE = int(OPT.get('late', 3))
B0 = int(OPT.get('b0', 0))
SN1P = OPT.get('sn1', 'after')
SN2P = OPT.get('sn2', 'after')
SENT = int(OPT.get('sent', 3))
OUT = [x for x in sys.argv[1:] if not x.startswith('--')]
OUT = OUT[0] if OUT else 'cdna_kernels/%s.s' % NAME


def f2u(x):
    return struct.unpack('<I', struct.pack('<f', x))[0]


LB = 0xC0000
RECS, ROWS = int(OPT.get('recs', 896)), int(OPT.get('rows', 2688))
QP, AT, ML, QS, YY, HP, HS, ZZ, SN1, SN2 = 0x0, 0x40000, 0x80000, 0x82000, 0x84000, 0x90000, 0x9C000, 0xA0000, 0xB2000, 0xB3000
CS, CS1, X2, XC, EPOCH = 0x180000, 0x1C0000, 0x1D0000, 0x1D8000, 0x1E0000
STAMPS = 0x800000
RS, HSZ = 400, 3200
IMGQ, IMGR = 0, 6400
QV = 12800
FLG = 13440
RED = 13824
RED2 = RED + 2 * 16384
LDS_BYTES = RED2 + 8 * 256
sX, sK, sV, sWQ, sWO, sW1, sB1, sW2, sOUT, sWS = 4, 6, 8, 10, 12, 16, 18, 20, 22, 26
sG, sR_, sH, sJ, sWV, sTAG, sEP, sROLE, sRA, sRB, sCNT, sLAY = 28, 29, 30, 31, 32, 33, 34, 35, 36, 37, 38, 39
sB = 40
sFAST, sRED = 42, 43
sT0, sT1, sT2, sT3 = 46, 47, 48, 49
sMASK = 50
sEXA, sEXB = 52, 54
sU, sHI = 56, 57
LIMIT = 1 << 21


def sp(n):
    return 's[%d:%d]' % (n, n + 1)


def vr(n, k=1):
    return 'v%d' % n if k == 1 else 'v[%d:%d]' % (n, n + k - 1)


a = Asm()
ool = []


PROBE = OPT.get('probe')
ONLY = OPT['only'].split(',') if 'only' in OPT else None
CUR = ['W']


def stamp(i, w=True):
    if PROBE is not None and PROBE != 'end' and int(PROBE) == i:
        Lp = a.newlabel('probe')
        a('s_cmp_lg_u32 s%d, 0' % sLAY)
        a.branch('s_cbranch_scc1', Lp)
        a('s_memrealtime s[64:65]')
        a('s_waitcnt lgkmcnt(0)')
        a.label(Lp)
    if DEBUG and (ONLY is None or (CUR[0] + str(i)) in ONLY):
        a('s_memrealtime s[%d:%d]' % (64 + 2 * i, 65 + 2 * i))
        a('s_waitcnt lgkmcnt(0)')


vLANE, vIDX, vMLO, vMHI = 0, 1, 2, 3


def lane_fields(l8=None, lg=None):
    if l8 is not None:
        a('v_and_b32 v%d, 7, v%d' % (l8, vLANE))
    if lg is not None:
        a('v_lshrrev_b32 v%d, 3, v%d' % (lg, vLANE))


def perm_lg(dst, t):
    a('v_bfe_u32 v%d, v%d, 3, 1' % (dst, vLANE))
    a('v_bfe_u32 v%d, v%d, 4, 1' % (t, vLANE))
    a('v_lshl_add_u32 v%d, v%d, 3, v%d' % (dst, t, dst))
    a('v_bfe_u32 v%d, v%d, 5, 1' % (t, vLANE))
    a('v_lshl_add_u32 v%d, v%d, 1, v%d' % (dst, t, dst))


def fstore(text):
    Ls = a.newlabel('slow')
    Lb = a.newlabel('back')
    a('s_cmp_eq_u32 s%d, 0' % sFAST)
    a.branch('s_cbranch_scc1', Ls)
    a(text)
    a.label(Lb)
    ool.append((Ls, text + ' sc1', Lb))


def tagcheck(words, vT, d, d2, full=()):
    words = list(words)
    if len(words) % 2:
        words.append(words[-1])
    first = True
    pend = []
    for i in range(0, len(words), 2):
        dst = d if first else d2 + (len(pend) % 2)
        a('v_bitop3_b32 v%d, v%d, v%d, v%d bitop3:0x7e' % (dst, words[i], words[i + 1], vT))
        if not first:
            pend.append(dst)
            if len(pend) == 2:
                a('v_or3_b32 v%d, v%d, v%d, v%d' % (d, d, pend[0], pend[1]))
                pend = []
        first = False
    if pend:
        a('v_or_b32 v%d, v%d, v%d' % (d, d, pend[0]))
    a('v_and_b32 v%d, 0xff, v%d' % (d, d))
    full = list(full)
    assert len(full) % 2 == 0
    for i in range(0, len(full), 2):
        a('v_bitop3_b32 v%d, v%d, v%d, s%d bitop3:0x7e' % (d2, full[i], full[i + 1], sEP))
        a('v_or_b32 v%d, v%d, v%d' % (d, d, d2))
    a('v_cmp_ne_u32 vcc, 0, v%d' % d)


def spin_tail(L, sleep=0):
    if sleep:
        a('s_sleep %d' % sleep)
    a('s_add_u32 s%d, s%d, 1' % (sCNT, sCNT))
    a('s_cmp_lt_u32 s%d, %d' % (sCNT, LIMIT))
    a.branch('s_cbranch_scc1', L)
    a.branch('s_branch', 'L_end')


def poll(loads, words, vT, d, d2, full=(), sleep=0):
    L = a.newlabel('poll')
    D = a.newlabel('polld')
    a('s_mov_b32 s%d, 0' % sCNT)
    a.label(L)
    loads()
    a('s_waitcnt vmcnt(0)')
    tagcheck(words, vT, d, d2, full)
    a.branch('s_cbranch_vccz', D)
    spin_tail(L, sleep)
    a.label(D)


PIPE = int(OPT.get('pipe', 0))


def poll2(loads, check, n, first):
    L = a.newlabel('pp')
    D = a.newlabel('ppd')
    D0 = a.newlabel('ppd0')
    a('s_mov_b32 s%d, 0' % sCNT)
    if not PIPE:
        a.label(L)
        loads(0)
        a('s_waitcnt vmcnt(0)')
        check(0)
        a.branch('s_cbranch_vccz', D0)
        spin_tail(L)
        a.label(D0)
        first(0)
        return
    a('s_waitcnt vmcnt(0)')
    loads(0)
    a.label(L)
    loads(1)
    a('s_waitcnt vmcnt(%d)' % n)
    check(0)
    a.branch('s_cbranch_vccz', D0)
    a('s_add_u32 s%d, s%d, 1' % (sCNT, sCNT))
    a('s_cmp_ge_u32 s%d, %d' % (sCNT, LIMIT))
    a.branch('s_cbranch_scc1', 'L_end')
    loads(0)
    a('s_waitcnt vmcnt(%d)' % n)
    check(1)
    a.branch('s_cbranch_vccnz', L)
    first(1)
    a.branch('s_branch', D)
    a.label(D0)
    first(0)
    a.label(D)


def sentinel(base, n, ad, t):
    L = a.newlabel('sent')
    D = a.newlabel('sentd')
    a('s_lshl_b32 s%d, s%d, 7' % (sT0, sG))
    a('s_add_u32 s%d, s%d, 0x%x' % (sT0, sT0, base))
    a('v_min_u32 v%d, %d, v%d' % (ad, n - 1, vLANE))
    a('v_lshl_add_u32 v%d, v%d, 2, s%d' % (ad, ad, sT0))
    a('s_cmp_eq_u32 s%d, 0' % sFAST)
    a.branch('s_cbranch_scc1', D)
    a('s_mov_b32 s%d, 0' % sCNT)
    a.label(L)
    a('global_load_dword v%d, v%d, %s sc1' % (t, ad, sp(sB)))
    a('s_waitcnt vmcnt(0)')
    a('v_cmp_ne_u32 vcc, s%d, v%d' % (sEP, t))
    a.branch('s_cbranch_vccz', D)
    spin_tail(L)
    a.label(D)


def rscatter4(r, extra_ror4=False):
    a('v_permlane32_swap_b32 v%d, v%d' % (r, r + 2))
    a('v_permlane32_swap_b32 v%d, v%d' % (r + 1, r + 3))
    a('v_add_f32 v%d, v%d, v%d' % (r, r, r + 2))
    a('v_add_f32 v%d, v%d, v%d' % (r + 1, r + 1, r + 3))
    a('v_permlane16_swap_b32 v%d, v%d' % (r, r + 1))
    a('v_add_f32 v%d, v%d, v%d' % (r, r, r + 1))
    a('v_add_f32_dpp v%d, v%d, v%d row_ror:8 row_mask:0xf bank_mask:0xf' % (r, r, r))
    if extra_ror4:
        a('v_add_f32_dpp v%d, v%d, v%d row_ror:4 row_mask:0xf bank_mask:0xf' % (r, r, r))


def allred8(op, regs):
    for ctl in ('quad_perm:[1,0,3,2]', 'quad_perm:[2,3,0,1]', 'row_half_mirror'):
        for r in regs:
            a('%s_dpp v%d, v%d, v%d %s row_mask:0xf bank_mask:0xf' % (op, r, r, r, ctl))


def img_masks(vMA, tmp):
    a('v_and_b32 v%d, 8, v%d' % (tmp, vLANE))
    a('v_cmp_eq_u32 vcc, 0, v%d' % tmp)
    a('v_mov_b32 v%d, 0xffff' % tmp)
    a('v_cndmask_b32 v%d, 0, v%d, vcc' % (vMA, tmp))
    a('v_cndmask_b32 v%d, v%d, 0, vcc' % (vMA + 1, tmp))


def img_addr(dst, rr, tmp, base):
    a('v_and_b32 v%d, 7, v%d' % (tmp, rr))
    a('v_mul_u32_u24 v%d, %d, v%d' % (dst, RS, tmp))
    a('v_and_b32 v%d, 0xfffffff8, v%d' % (tmp, rr))
    a('v_add_u32 v%d, v%d, v%d' % (dst, dst, tmp))
    a('v_and_b32 v%d, 8, v%d' % (tmp, vLANE))
    a('v_mul_u32_u24 v%d, %d, v%d' % (tmp, HSZ // 8, tmp))
    a('v_add_u32 v%d, v%d, v%d' % (dst, dst, tmp))
    if base:
        a('v_add_u32 v%d, %d, v%d' % (dst, base, dst))


def img_write(pk, vMA, pair, addr):
    a('v_and_b32 v%d, v%d, v%d' % (pair, pk, vMA))
    a('v_and_b32 v%d, v%d, v%d' % (pair + 1, pk, vMA + 1))
    a('ds_write_b64 v%d, %s' % (addr, vr(pair, 2)))


def addtag(regs, vT):
    for r in regs:
        a('v_and_or_b32 v%d, v%d, s%d, v%d' % (r, r, sMASK, vT))


vIRD, vCS, vCS1, vB1, vPUB = 122, 123, 124, 125, 126
WROLE, WWQ = 32, 80


def zero4(acc):
    for k in range(4):
        a('v_mov_b32 v%d, 0' % (acc + k))


def gemv(nP, wbase, imgoff, tmp, acc, rdaddr):
    for i in range(nP):
        a('ds_read_b128 %s, v%d offset:%d' % (vr(tmp + 4 * i, 4), rdaddr, imgoff + 16 * i))
    for i in range(nP):
        a('s_waitcnt lgkmcnt(%d)' % (nP - 1 - i))
        a('v_smfmac_f32_16x16x64_bf16 %s, %s, %s, v%d' % (vr(acc, 4), vr(tmp + 4 * i, 4), vr(wbase + 8 * i, 8), vIDX))


def colsum(nP, wbase, A, acc):
    zero4(acc)
    for k in range(4):
        a('v_and_b32 v%d, 0x3f80, v%d' % (A + k, vMLO + k % 2))
    for i in range(nP):
        a('v_smfmac_f32_16x16x64_bf16 %s, %s, %s, v%d' % (vr(acc, 4), vr(A, 4), vr(wbase + 8 * i, 8), vIDX))


def wloads(nP, wbase, ad, ptr, rowbytes):
    for i in range(2 * nP):
        a('global_load_dwordx4 %s, v%d, %s' % (vr(wbase + 4 * i, 4), ad, sp(ptr)) + NT)
        if i < 2 * nP - 1:
            a('v_add_u32 v%d, %d, v%d' % (ad, rowbytes * (4 if i % 2 == 0 else 12), ad))


def classadd(acc, out):
    a('v_permlane32_swap_b32 v%d, v%d' % (acc, acc + 2))
    a('v_permlane32_swap_b32 v%d, v%d' % (acc + 1, acc + 3))
    a('v_add_f32_dpp v%d, v%d, v%d row_ror:8 row_mask:0xf bank_mask:0xf' % (out, acc + 2, acc))
    a('v_add_f32_dpp v%d, v%d, v%d row_ror:8 row_mask:0xf bank_mask:0xf' % (out + 1, acc + 3, acc + 1))


def pub2(addr, data, fast, vT, base=None):
    addtag([data, data + 1], vT)
    a('s_mov_b64 exec, %s' % sp(sEXB))
    t = 'global_store_dwordx2 v%d, %s, %s' % (addr, vr(data, 2), sp(sB if base is None else base))
    if fast:
        fstore(t)
    else:
        a(t + ' sc1')
    a('s_mov_b64 exec, -1')


def stats_pre(addr_fn):
    ad, pa, t, vT = 5, 4, 8, 9
    a('v_and_b32 v%d, 7, v%d' % (t, vLANE))
    a('v_lshrrev_b32 v%d, 3, v%d' % (ad, vLANE))
    a('v_mul_u32_u24 v%d, %d, v%d' % (ad, RS, ad))
    a('v_lshl_add_u32 v%d, v%d, 3, v%d' % (ad, t, ad))
    addr_fn()
    a('v_lshrrev_b32 v%d, 5, v%d' % (t, vLANE))
    a('v_lshl_add_u32 v%d, v%d, 3, s%d' % (pa, t, sT0))
    a('v_mov_b32 v%d, s%d' % (vT, sTAG))


def stats_wave(imgbase, nrd):
    ad, pa, s1, s2, t, vT, x = 5, 4, 6, 7, 8, 9, 10
    for i in range(nrd):
        a('ds_read_b32 v%d, v%d offset:%d' % (x + i, ad, imgbase + 64 * i))
    a('s_waitcnt lgkmcnt(0)')
    for i in range(nrd):
        a('v_lshlrev_b32 v%d, 16, v%d' % (x + i, x + i))
    a('v_mul_f32 v%d, v%d, v%d' % (s2, x, x))
    a('v_add_f32 v%d, v%d, v%d' % (s1, x, x + 1))
    a('v_fmac_f32 v%d, v%d, v%d' % (s2, x + 1, x + 1))
    for i in range(2, nrd):
        a('v_add_f32 v%d, v%d, v%d' % (s1, s1, x + i))
        a('v_fmac_f32 v%d, v%d, v%d' % (s2, x + i, x + i))
    a('v_permlane32_swap_b32 v%d, v%d' % (s1, s2))
    a('v_add_f32 v%d, v%d, v%d' % (s1, s1, s2))
    a('v_mov_b32 v%d, s%d' % (s2, sEP))
    allred8('v_add_f32', [s1])
    a('v_add_f32_dpp v%d, v%d, v%d row_ror:8 row_mask:0xf bank_mask:0xf' % (s1, s1, s1))
    a('v_mov_b32 v%d, v%d' % (t, s1))
    a('v_permlane16_swap_b32 v%d, v%d' % (s1, t))
    a('v_add_f32 v%d, v%d, v%d' % (s1, s1, t))
    addtag([s1], vT)
    a('s_mov_b32 exec_lo, 1')
    a('s_mov_b32 exec_hi, 1')
    fstore('global_store_dwordx2 v%d, %s, %s' % (pa, vr(s1, 2), sp(sB)))
    a('s_mov_b64 exec, -1')


def ln_from_stats(s1, s2):
    a('v_mul_f32 v%d, 0x%08x, v%d' % (s1, f2u(1.0 / 640), s1))
    a('v_mul_f32 v%d, 0x%08x, v%d' % (s2, f2u(1.0 / 640), s2))
    a('v_fma_f32 v%d, -v%d, v%d, v%d' % (s2, s1, s1, s2))
    a('v_max_f32 v%d, 0, v%d' % (s2, s2))
    a('v_add_f32 v%d, 0x%08x, v%d' % (s2, f2u(1e-5), s2))
    a('v_rsq_f32 v%d, v%d' % (s2, s2))


def resid_round(y, xprev, pk):
    a('v_cvt_pk_bf16_f32 v%d, v%d, v%d' % (y, y, y))
    a('v_and_b32 v%d, s%d, v%d' % (y, sHI, y))
    a('v_add_f32 v%d, v%d, v%d' % (y, y, xprev))
    a('v_cvt_pk_bf16_f32 v%d, v%d, v%d' % (pk, y, y))


def sent_store(off_sreg, base, ad, dv):
    a('s_lshl_b32 s%d, s%d, 7' % (sT2, sG))
    a('s_lshl_b32 s%d, s%d, 2' % (sT3, off_sreg))
    a('s_add_u32 s%d, s%d, s%d' % (sT2, sT2, sT3))
    a('s_add_u32 s%d, s%d, 0x%x' % (sT2, sT2, base))
    a('v_mov_b32 v%d, s%d' % (ad, sT2))
    a('v_mov_b32 v%d, s%d' % (dv, sEP))


def sent_fire(ad, dv):
    a('s_mov_b64 exec, 1')
    a('global_store_dword v%d, v%d, %s' % (ad, dv, sp(sB)))
    a('s_mov_b64 exec, -1')


def prefetch_own(off):
    a('s_lshl_b32 s%d, s%d, 3' % (sT0, sH))
    a('s_add_u32 s%d, s%d, s%d' % (sT0, sT0, sJ))
    a('s_mul_i32 s%d, s%d, %d' % (sT0, sT0, RECS))
    a('s_add_u32 s%d, s%d, 0x%x' % (sT0, sT0, off))
    a('v_min_u32 v5, 47, v0')
    a('v_lshl_add_u32 v5, v5, 4, s%d' % sT0)
    a('v_add_u32 v6, 0x%x, v5' % AT)
    a('s_lshl_b32 s%d, s%d, 7' % (sT0, sH))
    a('s_add_u32 s%d, s%d, 0x%x' % (sT0, sT0, ML + off))
    a('s_lshl_b32 s%d, s%d, 7' % (sT1, sG))
    a('s_add_u32 s%d, s%d, 0x%x' % (sT2, sT1, SN1 + off))
    a('s_add_u32 s%d, s%d, 0x%x' % (sT3, sT1, SN2 + off))
    a('s_mul_i32 s%d, s%d, %d' % (sT1, sG, 3 * 2048))
    a('s_add_u32 s%d, s%d, 0x%x' % (sT1, sT1, HP + off))
    a('v_min_u32 v7, 47, v0')
    a('v_lshl_add_u32 v7, v7, 7, s%d' % sT1)
    a('s_mul_i32 s%d, s%d, 384' % (sT1, sG))
    a('s_add_u32 s%d, s%d, 0x%x' % (sT1, sT1, HS + off))
    a('v_min_u32 v8, 2, v0')
    a('v_lshl_add_u32 v8, v8, 7, s%d' % sT1)
    a('v_writelane_b32 v8, s%d, 3' % sT0)
    a('v_writelane_b32 v8, s%d, 4' % sT2)
    a('v_writelane_b32 v8, s%d, 5' % sT3)
    a('s_add_u32 s%d, s%d, 0x%x' % (sT0, sT0, QS - ML))
    a('v_writelane_b32 v8, s%d, 6' % sT0)
    if off:
        a('global_load_dwordx4 v[64:67], v5, %s sc1' % sp(sB))
    a('global_load_dwordx4 v[68:71], v6, %s sc1' % sp(sB))
    a('global_load_dword v72, v7, %s sc1' % sp(sB))
    a('global_load_dword v73, v8, %s sc1' % sp(sB))


hdr = open('cdna_kernels/%s.s.ref' % NAME).read().split('; Override launch')[0]
a.raw(hdr.rstrip('\n'))
a.raw('; @launch grid=(256,1,1) block=(1024,1,1) lds=%d' % LDS_BYTES)
a.raw('.amdgcn_target "amdgcn-amd-amdhsa--gfx950"')
a.raw('.text')
a.raw('.globl %s_kernel' % NAME)
a.raw('.p2align 8')
a.raw('.type %s_kernel,@function' % NAME)
a.raw('%s_kernel:' % NAME)

a('s_cmp_ge_u32 s2, 256')
a.branch('s_cbranch_scc1', 'L_exit')
a('s_load_dwordx16 s[4:19], s[0:1], 0')
a('s_load_dwordx8 s[20:27], s[0:1], 64')
if PROBE is not None:
    a('s_memrealtime s[96:97]')
if DEBUG:
    a('s_memrealtime s[96:97]')
    a('s_memtime s[100:101]')
a('v_lshrrev_b32 v5, 6, v0')
a('v_and_b32 v0, 63, v0')
a('v_readfirstlane_b32 s%d, v5' % sWV)
a('s_and_b32 s%d, s2, 7' % sG)
a('s_lshr_b32 s%d, s2, 3' % sR_)
a('s_lshr_b32 s%d, s%d, 3' % (sT0, sR_))
a('s_lshl_b32 s%d, s%d, 2' % (sH, sG))
a('s_add_u32 s%d, s%d, s%d' % (sH, sH, sT0))
a('s_and_b32 s%d, s%d, 7' % (sJ, sR_))


def rest_setup():
    Lrd = a.newlabel('roledone')
    a('s_add_u32 s%d, s%d, 0x%x' % (sT0, sWS, EPOCH))
    a('s_addc_u32 s%d, s%d, 0' % (sT1, sWS + 1))
    a('s_load_dword s%d, %s, 0' % (sEP, sp(sT0)))
    a('s_mov_b64 %s, %s' % (sp(sB), sp(sWS)))
    a('s_mov_b32 s%d, 0xffffff00' % sMASK)
    a('s_mov_b32 s%d, 0xffff0000' % sHI)
    a('s_mov_b32 s%d, 0x00ff00ff' % sEXA)
    a('s_mov_b32 s%d, 0xff00ff00' % (sEXA + 1))
    a('s_mov_b32 s%d, 0x00ff00ff' % sEXB)
    a('s_mov_b32 s%d, 0x00ff00ff' % (sEXB + 1))
    a('s_mov_b32 s%d, 0' % sLAY)
    a('s_mov_b32 s%d, 0' % sFAST)
    a('s_mov_b32 s%d, %d' % (sRED, RED))
    a('s_cmp_ge_u32 s%d, 10' % sR_)
    a('s_cselect_b32 s%d, 1, 0' % sRA)
    a('s_mul_i32 s%d, s%d, 10' % (sT2, sRA))
    a('s_sub_u32 s%d, s%d, s%d' % (sRB, sR_, sT2))
    a('s_mov_b32 s%d, 0' % sROLE)
    a('s_cmp_lt_u32 s%d, 20' % sR_)
    a.branch('s_cbranch_scc1', Lrd)
    a('s_cmp_ge_u32 s%d, 26' % sR_)
    a('s_cselect_b32 s%d, 2, 1' % sROLE)
    a('s_cselect_b32 s%d, 26, 20' % sT2)
    a('s_sub_u32 s%d, s%d, s%d' % (sT2, sR_, sT2))
    a('s_and_b32 s%d, s%d, 1' % (sRB, sT2))
    a('s_lshr_b32 s%d, s%d, 1' % (sT2, sT2))
    a('s_mul_i32 s%d, s%d, 3' % (sRA, sG))
    a('s_add_u32 s%d, s%d, s%d' % (sRA, sRA, sT2))
    a.label(Lrd)
    a('v_and_b32 v4, 3, v0')
    a('s_mov_b32 s%d, 0x55555555' % sT2)
    a('v_mul_lo_u32 v%d, v4, s%d' % (vIDX, sT2))
    a('v_and_b32 v4, 4, v0')
    a('v_cmp_eq_u32 vcc, 0, v4')
    a('v_mov_b32 v4, 0xffff')
    a('v_cndmask_b32 v%d, 0, v4, vcc' % vMLO)
    a('v_cndmask_b32 v%d, v4, 0, vcc' % vMHI)


a('s_cmp_ge_u32 s%d, 8' % sWV)
a.branch('s_cbranch_scc1', 'L_kv')


def h1_gather():
    vT, vMA, aD, aA, aC, aI = 5, 6, 8, 9, 10, 11
    D, A_, C_, d, d2, t = 12, 16, 20, 24, 25, 27
    a('s_cmp_ge_u32 s%d, 6' % sU)
    a('s_cselect_b32 s%d, 1, 0' % sT0)
    a('s_mul_i32 s%d, s%d, 6' % (sT1, sT0))
    a('s_sub_u32 s%d, s%d, s%d' % (sT1, sU, sT1))
    a('s_lshl_b32 s%d, s%d, 2' % (sT2, sG))
    a('s_lshl_b32 s%d, s%d, 1' % (sT3, sRA))
    a('s_add_u32 s%d, s%d, s%d' % (sT2, sT2, sT3))
    a('s_add_u32 s%d, s%d, s%d' % (sT2, sT2, sT0))
    a('v_mov_b32 v%d, s%d' % (vT, sTAG))
    img_masks(vMA, t)
    lane_fields(l8=d, lg=d2)
    a('s_mul_i32 s%d, s%d, %d' % (sT3, sT2, 8 * RECS))
    a('s_lshl_b32 s%d, s%d, 7' % (sCNT, sT1))
    a('s_add_u32 s%d, s%d, s%d' % (sT3, sT3, sCNT))
    a('s_add_u32 s%d, s%d, 0x%x' % (sT3, sT3, AT))
    a('v_mul_u32_u24 v%d, %d, v%d' % (aD, RECS, d2))
    a('v_lshl_add_u32 v%d, v%d, 4, v%d' % (aD, d, aD))
    a('v_add_u32 v%d, s%d, v%d' % (aD, sT3, aD))
    a('s_lshl_b32 s%d, s%d, 7' % (sT3, sT2))
    a('s_add_u32 s%d, s%d, 0x%x' % (sT3, sT3, ML))
    a('v_lshl_add_u32 v%d, v%d, 4, s%d' % (aA, d, sT3))
    a('v_lshl_add_u32 v%d, v%d, 4, s%d' % (aC, d2, sT3))
    a('s_mul_i32 s%d, s%d, 192' % (sT3, sT0))
    a('s_lshl_b32 s%d, s%d, 5' % (sCNT, sT1))
    a('s_add_u32 s%d, s%d, s%d' % (sT3, sT3, sCNT))
    a('v_lshrrev_b32 v%d, 4, v%d' % (d2, vLANE))
    a('v_lshl_add_u32 v%d, v%d, 2, v%d' % (d2, d, d2))
    a('v_add_u32 v%d, s%d, v%d' % (d2, sT3, d2))
    img_addr(aI, d2, t, IMGR)

    L1 = a.newlabel('h1m')
    L1d = a.newlabel('h1md')
    wA, wC = 4, 10
    a('s_mov_b32 s%d, 0' % sCNT)
    a.label(L1)
    a('global_load_dwordx2 v[12:13], v%d, %s sc1' % (aA, sp(sB)))
    a('global_load_dwordx2 v[14:15], v%d, %s sc1' % (aC, sp(sB)))
    a('s_waitcnt vmcnt(0)')
    a('v_bitop3_b32 v%d, v13, v15, s%d bitop3:0x7e' % (d, sEP))
    a('v_cmp_ne_u32 vcc, 0, v%d' % d)
    a.branch('s_cbranch_vccz', L1d)
    spin_tail(L1)
    a.label(L1d)
    a('v_mov_b32 v%d, v12' % t)
    allred8('v_max_f32', [t])
    a('v_sub_f32 v12, v12, v%d' % t)
    a('v_sub_f32 v14, v14, v%d' % t)
    a('v_exp_f32 v%d, v12' % wA)
    a('v_exp_f32 v%d, v14' % wC)
    SD = (12, 18)
    W = 28

    def loads(k):
        a('global_load_dwordx2 %s, v%d, %s offset:8 sc1' % (vr(SD[k] + 4, 2), aA, sp(sB)))
        a('global_load_dwordx4 %s, v%d, %s sc1' % (vr(SD[k], 4), aD, sp(sB)))

    def check(k):
        tagcheck(list(range(SD[k], SD[k] + 4)), vT, d, d2, full=[SD[k] + 5, SD[k] + 5])

    def first(k):
        for i in range(4):
            a('v_mul_f32 v%d, v%d, v%d' % (W + i, SD[k] + i, wC))
        a('v_mul_f32 v%d, v%d, v%d' % (t, SD[k] + 4, wA))
    poll2(loads, check, 2, first)
    stamp(4)
    r = W
    dp = lambda c: 'v_add_f32_dpp v%d, v%d, v%d %s row_mask:0xf bank_mask:0xf' % (t, t, t, c)
    a('v_permlane32_swap_b32 v%d, v%d' % (r, r + 2))
    a('v_permlane32_swap_b32 v%d, v%d' % (r + 1, r + 3))
    a(dp('quad_perm:[1,0,3,2]'))
    a('v_add_f32 v%d, v%d, v%d' % (r, r, r + 2))
    a('v_add_f32 v%d, v%d, v%d' % (r + 1, r + 1, r + 3))
    a(dp('quad_perm:[2,3,0,1]'))
    a('v_permlane16_swap_b32 v%d, v%d' % (r, r + 1))
    a('v_add_f32 v%d, v%d, v%d' % (r, r, r + 1))
    a(dp('row_half_mirror'))
    a('v_rcp_f32 v%d, v%d' % (t, t))
    a('v_add_f32_dpp v%d, v%d, v%d row_ror:8 row_mask:0xf bank_mask:0xf' % (r, r, r))
    a('v_mul_f32 v%d, v%d, v%d' % (r, r, t))
    a('v_cvt_pk_bf16_f32 v%d, v%d, v%d' % (r, r, r))
    img_write(r, vMA, r + 2, aI)
    a('s_waitcnt lgkmcnt(0)')


def h2_gather():
    vT, vMA, aD, aD2, aI, aX, xp = 5, 6, 8, 9, 10, 11, 22
    D, E, d, d2, t = 12, 16, 24, 25, 27
    a('v_mov_b32 v%d, s%d' % (vT, sTAG))
    img_masks(vMA, t)
    lane_fields(l8=d, lg=d2)
    a('s_mul_i32 s%d, s%d, 1280' % (sT0, sRB))
    a('s_lshl_b32 s%d, s%d, 7' % (sT1, sU))
    a('s_add_u32 s%d, s%d, s%d' % (sT0, sT0, sT1))
    a('s_add_u32 s%d, s%d, 0x%x' % (sT2, sT0, YY))
    a('v_mul_u32_u24 v%d, %d, v%d' % (aD, ROWS, d2))
    a('v_lshl_add_u32 v%d, v%d, 4, v%d' % (aD, d, aD))
    a('v_add_u32 v%d, s%d, v%d' % (aD, sT2, aD))
    a('v_add_u32 v%d, %d, v%d' % (aD2, 8 * ROWS, aD))
    a('v_lshrrev_b32 v%d, 4, v%d' % (d2, vLANE))
    a('v_lshl_add_u32 v%d, v%d, 2, v%d' % (d2, d, d2))
    a('s_lshl_b32 s%d, s%d, 5' % (sT1, sU))
    a('v_add_u32 v%d, s%d, v%d' % (d2, sT1, d2))
    img_addr(aI, d2, t, IMGR)
    a('s_mul_i32 s%d, s%d, 320' % (sT1, sRB))
    a('v_add_u32 v%d, s%d, v%d' % (d2, sT1, d2))
    Lk1 = a.newlabel('h2k1')
    Lj = a.newlabel('h2j')
    a('s_cmp_lg_u32 s%d, 0' % sLAY)
    a.branch('s_cbranch_scc1', Lk1)
    a('v_lshlrev_b32 v%d, 1, v%d' % (aX, d2))
    a('global_load_ushort v%d, v%d, %s' % (xp, aX, sp(sX)))
    a('s_waitcnt vmcnt(0)')
    a('v_lshlrev_b32 v%d, 16, v%d' % (xp, xp))
    a.branch('s_branch', Lj)
    a.label(Lk1)
    a('v_lshlrev_b32 v%d, 2, v%d' % (aX, d2))
    a('v_add_u32 v%d, 0x%x, v%d' % (aX, X2, aX))
    poll(lambda: a('global_load_dword v%d, v%d, %s sc1' % (xp, aX, sp(sWS))), [xp], vT, d, t)
    a('v_and_b32 v%d, s%d, v%d' % (xp, sHI, xp))
    a.label(Lj)
    a('v_lshlrev_b32 v%d, 2, v%d' % (aX, d2))
    a('v_add_u32 v%d, 0x%x, v%d' % (aX, ZZ + 24 * ROWS, aX))
    if SENT & 1:
        sentinel(SN1, 20, d, d2)
        stamp(6)

    def loads():
        a('global_load_dwordx4 %s, v%d, %s sc1' % (vr(D, 4), aD, sp(sB)))
        a('global_load_dwordx4 %s, v%d, %s sc1' % (vr(E, 4), aD2, sp(sB)))
    poll(loads, list(range(D, D + 8)), vT, d, d2)
    stamp(4)
    for k in range(4):
        a('v_add_f32 v%d, v%d, v%d' % (D + k, D + k, E + k))
    rscatter4(D)
    resid_round(D, xp, D)
    img_write(D, vMA, E, aI)
    Ls = a.newlabel('h2s')
    a('s_cmp_lg_u32 s%d, 0' % sRA)
    a.branch('s_cbranch_scc1', Ls)
    a('v_and_or_b32 v%d, v%d, s%d, v%d' % (D, D, sHI, vT))
    a('s_mov_b64 exec, %s' % sp(sEXB))
    a('global_store_dword v%d, v%d, %s sc1' % (aX, D, sp(sB)))
    a('s_mov_b64 exec, -1')
    a.label(Ls)
    a('s_waitcnt lgkmcnt(0)')


def dump_stamps():
    if not DEBUG:
        return
    a('s_memrealtime s[98:99]')
    a('s_memtime s[60:61]')
    a('s_lshl_b32 s%d, s2, 4' % sT0)
    a('s_add_u32 s%d, s%d, s%d' % (sT0, sT0, sWV))
    a('s_lshl_b32 s%d, s%d, 8' % (sT0, sT0))
    a('s_add_u32 s%d, s%d, 0x%x' % (sT0, sT0, STAMPS))
    a('s_waitcnt lgkmcnt(0)')
    Lk = a.newlabel('dbgk')
    Lp = a.newlabel('dbgp')
    a('v_mov_b32 v5, 0x%x' % EPOCH)
    a('s_mov_b32 s%d, 0' % sCNT)
    a.label(Lp)
    a('s_sleep 100')
    a('global_load_dword v6, v5, %s sc1' % sp(sWS))
    a('s_waitcnt vmcnt(0)')
    a('s_add_u32 s%d, s%d, 1' % (sCNT, sCNT))
    a('s_cmp_gt_u32 s%d, 20000' % sCNT)
    a.branch('s_cbranch_scc1', Lk)
    a('v_cmp_ne_u32 vcc, s%d, v6' % sEP)
    a.branch('s_cbranch_vccnz', Lp)
    a.label(Lk)
    a('v_mov_b32 v5, s%d' % sT0)
    a('s_mov_b64 exec, 1')
    for i in range(18):
        a('v_mov_b32 v6, s%d' % (64 + 2 * i))
        a('v_mov_b32 v7, s%d' % (65 + 2 * i))
        a('global_store_dwordx2 v5, v[6:7], %s offset:%d' % (sp(sWS), 8 * i))
    a('v_mov_b32 v6, s62')
    a('v_mov_b32 v7, s63')
    a('global_store_dwordx2 v5, v[6:7], %s offset:%d' % (sp(sWS), 8 * 19))
    a('s_sub_u32 s60, s60, s100')
    a('v_mov_b32 v6, s60')
    a('v_mov_b32 v7, 0')
    a('global_store_dwordx2 v5, v[6:7], %s offset:%d' % (sp(sWS), 8 * 18))
    if DBGOUT:
        Lq = a.newlabel('dbgq')
        a('s_cmp_lg_u32 s%d, 0' % sWV)
        a.branch('s_cbranch_scc1', Lq)
        a('v_mov_b32 v5, 0')
        a('s_not_b32 s%d, s96' % sT0)
        lst = [sT0, 98, 96] + [64 + 2 * st for st in [8 + 0, 8 + 1, 8 + 2, 8 + 3, 8 + 4, 8 + 6, 8 + 7, 0, 2, 3, 5, 6, 7]]
        for (i, sr) in enumerate(lst):
            a('v_mov_b32 v6, s%d' % sr)
            a('global_atomic_umax v5, v6, s[24:25] offset:%d' % (4 * i))
        a.label(Lq)
    a('s_mov_b64 exec, -1')


def next_layer():
    if DEBUG:
        for i in range(8):
            a('s_mov_b64 s[%d:%d], s[%d:%d]' % (80 + 2 * i, 81 + 2 * i, 64 + 2 * i, 65 + 2 * i))
    a('s_add_u32 s%d, s%d, 0x%x' % (sB, sB, LB))
    a('s_addc_u32 s%d, s%d, 0' % (sB + 1, sB + 1))
    a('s_mov_b32 s%d, 1' % sLAY)
    a('s_mov_b32 s%d, %d' % (sRED, RED + 16384))


def tag_ready():
    a('s_waitcnt lgkmcnt(0)')
    a('s_add_u32 s%d, s%d, 1' % (sEP, sEP))
    a('s_and_b32 s%d, s%d, 0xff' % (sTAG, sEP))


def read_fast(t):
    a('v_mov_b32 v%d, %d' % (t, FLG + 4))
    a('ds_read_b32 v%d, v%d' % (t, t))
    a('s_waitcnt lgkmcnt(0)')
    a('v_readfirstlane_b32 s%d, v%d' % (sFAST, t))


if DEBUG:
    for i in range(16):
        a('s_mov_b64 s[%d:%d], 0' % (64 + 2 * i, 65 + 2 * i))
a('s_setprio 3')
lane_fields(l8=5)
perm_lg(6, 7)
a('s_mul_i32 s%d, s%d, 160' % (sT1, sJ))
a('v_min_u32 v8, 39, v0')
a('v_lshl_add_u32 v8, v8, 2, s%d' % sT1)
a('s_mul_i32 s%d, s%d, %d' % (sT0, sJ, 80 * 12288))
a('s_mul_i32 s%d, s%d, 384' % (sT1, sH))
a('s_add_u32 s%d, s%d, s%d' % (sT0, sT0, sT1))
a('s_sub_u32 s%d, s%d, 5' % (sT1, sWV))
a('s_lshl_b32 s%d, s%d, 7' % (sT1, sT1))
a('s_add_u32 s%d, s%d, s%d' % (sT0, sT0, sT1))
a('v_mul_u32_u24 v7, 12288, v6')
a('v_lshl_add_u32 v7, v5, 4, v7')
a('v_add_u32 v7, s%d, v7' % sT0)
a('s_waitcnt lgkmcnt(0)')
a('global_load_dword v12, v8, %s' % sp(sX))
a('s_cmp_lt_u32 s%d, 5' % sWV)
a.branch('s_cbranch_scc1', 'L_w_issued')
wloads(5, WWQ, 7, sWQ, 12288)
a.label('L_w_issued')
if B0:
    a('s_barrier')
rest_setup()
a('v_and_b32 v9, 15, v0')
a('v_lshlrev_b32 v9, 11, v9')
a('v_mov_b32 v10, -1')
a('ds_write_b32 v9, v10 offset:%d' % (RED + 1024 + 768))
lane_fields(l8=5, lg=6)
a('v_lshrrev_b32 v7, 2, v5')
a('v_mul_u32_u24 v7, %d, v7' % HSZ)
a('v_mul_u32_u24 v8, %d, v6' % RS)
a('v_add_u32 v%d, v7, v8' % vIRD)
a('v_bfe_u32 v7, v0, 4, 1')
a('v_lshlrev_b32 v7, 4, v7')
a('v_lshl_add_u32 v7, v5, 5, v7')
a('v_lshrrev_b32 v8, 5, v0')
a('v_lshl_add_u32 v%d, v8, 3, v7' % vPUB)
a('v_mov_b32 v%d, 0' % vCS)
a('v_mov_b32 v%d, 0' % vCS1)
a('v_mov_b32 v%d, 0' % vB1)
a('v_mul_u32_u24 v8, %d, v6' % RS)
a('v_lshl_add_u32 v8, v5, 3, v8')
a('v_mov_b32 v9, 0')
a('ds_write_b32 v8, v9 offset:%d' % (IMGQ + 80))
a('v_min_u32 v8, 39, v0')
a('v_and_b32 v9, 3, v8')
a('v_mul_u32_u24 v9, %d, v9' % (2 * RS))
a('v_lshrrev_b32 v8, 2, v8')
a('v_lshl_add_u32 v8, v8, 3, v9')
a('v_mov_b32 v15, 0')
a('v_mov_b32 v17, 0')
a('v_mov_b32 v18, 0')
a('v_mov_b32 v20, 0')
a('s_waitcnt vmcnt(10)')
a('s_cmp_ge_u32 s%d, 5' % sWV)
a.branch('s_cbranch_scc1', 'L_w_x0ok')
a('s_waitcnt vmcnt(0)')
a.label('L_w_x0ok')
a('v_and_b32 v14, 0xffff, v12')
a('v_lshrrev_b32 v16, 16, v12')
a('v_and_b32 v19, 0xffff, v12')
a('v_lshrrev_b32 v21, 16, v12')
a('ds_write_b64 v8, v[14:15] offset:%d' % (IMGQ))
a('ds_write_b64 v8, v[16:17] offset:%d' % (IMGQ + RS))
a('ds_write_b64 v8, v[18:19] offset:%d' % (IMGQ + HSZ))
a('ds_write_b64 v8, v[20:21] offset:%d' % (IMGQ + HSZ + RS))
tag_ready()
a('s_cmp_lg_u32 s%d, 4' % sWV)
a.branch('s_cbranch_scc1', 'L_w_pre')
a('s_getreg_b32 s%d, hwreg(HW_REG_XCC_ID)' % sT0)
a('s_lshl_b32 s%d, s%d, 8' % (sT1, sG))
a('s_lshl_b32 s%d, s%d, 3' % (sT2, sR_))
a('s_add_u32 s%d, s%d, s%d' % (sT1, sT1, sT2))
a('s_add_u32 s%d, s%d, 0x%x' % (sT1, sT1, XC))
a('v_mov_b32 v5, s%d' % sT1)
a('v_mov_b32 v6, s%d' % sT0)
a('v_mov_b32 v7, s%d' % sEP)
a('s_mov_b64 exec, 1')
a('global_store_dwordx2 v5, v[6:7], %s sc1' % sp(sWS))
a('s_mov_b64 exec, -1')

XvT, XvMA, XaD, XaD2, XaI, XaX, Xxp = 5, 6, 8, 9, 10, 11, 22
XD, XE, Xd, Xd2, Xt, Xcol = 12, 16, 24, 25, 27, 23


def q_stats_addr():
    a('s_lshl_b32 s%d, s%d, 3' % (sT0, sH))
    a('s_add_u32 s%d, s%d, s%d' % (sT0, sT0, sJ))
    a('s_lshl_b32 s%d, s%d, 4' % (sT0, sT0))
    a('s_add_u32 s%d, s%d, %d' % (sT0, sT0, QS))


a.label('L_w_pre')
a('s_cmp_lt_u32 s%d, 5' % sWV)
a.branch('s_cbranch_scc1', 'L_w_noq')
a('v_mov_b32 v5, s%d' % sTAG)
a('s_lshl_b32 s%d, s%d, 3' % (sT0, sH))
a('s_add_u32 s%d, s%d, s%d' % (sT0, sT0, sJ))
a('s_mul_i32 s%d, s%d, %d' % (sT0, sT0, RECS))
a('s_sub_u32 s%d, s%d, 5' % (sT1, sWV))
a('s_lshl_b32 s%d, s%d, 8' % (sT1, sT1))
a('s_add_u32 s%d, s%d, s%d' % (sT0, sT0, sT1))
a('v_add_u32 v6, s%d, v%d' % (sT0, vPUB))
zero4(8)
a('s_waitcnt vmcnt(0)')
a('s_cmp_eq_u32 s%d, 0' % sLAY)
a.branch('s_cbranch_scc1', 'L_w_q_nb')
a('s_barrier')
a.label('L_w_q_nb')
stamp(0)
gemv(5, WWQ, IMGQ, 32, 8, vIRD)
classadd(8, 12)
pub2(6, 12, True, 5)
a('s_cmp_lg_u32 s%d, 0' % sLAY)
a.branch('s_cbranch_scc1', 'L_w_qdone')
colsum(5, WWQ, 16, 8)
classadd(8, 12)
a('v_add_u32 v6, 0x%x, v6' % CS)
pub2(6, 12, False, 5, base=sWS)
a.branch('s_branch', 'L_w_qsig')
a.label('L_w_noq')
a('s_waitcnt lgkmcnt(0)')
a('s_cmp_eq_u32 s%d, 0' % sLAY)
a.branch('s_cbranch_scc1', 'L_w_nq_nb')
a('s_barrier')
a.label('L_w_nq_nb')
stamp(0)
a('s_cmp_lg_u32 s%d, 3' % sWV)
a.branch('s_cbranch_scc1', 'L_w_qdone')
stats_pre(q_stats_addr)
stats_wave(IMGQ, 2)
a('s_cmp_lg_u32 s%d, 0' % sLAY)
a.branch('s_cbranch_scc1', 'L_w_qdone')
a.label('L_w_qsig')
a('s_max_u32 s%d, s%d, 4' % (sT0, sWV))
a('s_lshl_b32 s%d, s%d, 2' % (sT0, sT0))
a('s_add_u32 s%d, s%d, %d' % (sT0, sT0, FLG))
a('v_mov_b32 v9, s%d' % sT0)
a('v_mov_b32 v10, s%d' % sEP)
a('s_waitcnt vmcnt(0)')
a('ds_write_b32 v9, v10')
a('v_mov_b32 v9, %d' % FLG)
a('s_cmp_lg_u32 s%d, 6' % sWV)
a.branch('s_cbranch_scc1', 'L_w_qdone')
a('s_lshl_b32 s%d, s%d, 8' % (sT1, sG))
a('s_add_u32 s%d, s%d, 0x%x' % (sT1, sT1, XC))
a('v_and_b32 v5, 31, v0')
a('v_lshl_add_u32 v5, v5, 3, s%d' % sT1)
a('s_mov_b32 s%d, 0' % sCNT)
a.label('L_w_xc')
a('global_load_dwordx2 v[6:7], v5, %s sc1' % sp(sWS))
a('s_waitcnt vmcnt(0)')
a('v_cmp_ne_u32 vcc, s%d, v7' % sEP)
a.branch('s_cbranch_vccz', 'L_w_xcd')
spin_tail('L_w_xc', 8)
a.label('L_w_xcd')
a('s_getreg_b32 s%d, hwreg(HW_REG_XCC_ID)' % sT0)
a('v_cmp_ne_u32 vcc, s%d, v6' % sT0)
a('s_cmp_eq_u64 vcc, 0')
a('s_cselect_b32 s%d, %d, 0' % (sT0, 0 if OPT.get('nofast') else 1))
a('v_mov_b32 v10, s%d' % sT0)
a('ds_write_b32 v9, v10 offset:4')
a('s_waitcnt lgkmcnt(0)')
a.label('L_w_qdone')
stamp(1)
HvT, HaD, HaS, HaC, HaQ = 5, 6, 7, 8, 9
HD, HSt, HC, Hd, Hd2, Ht = 12, 16, 20, 24, 25, 27
a('s_cmp_ge_u32 s%d, 6' % sWV)
a.branch('s_cbranch_scc1', 'L_w_h5done')
a('v_mov_b32 v%d, s%d' % (HvT, sTAG))
lane_fields(l8=Hd, lg=Hd2)
a('s_mul_i32 s%d, s%d, %d' % (sT0, sH, 8 * RECS))
a('s_lshl_b32 s%d, s%d, 7' % (sT1, sWV))
a('s_add_u32 s%d, s%d, s%d' % (sT1, sT1, sT0))
a('v_mul_u32_u24 v%d, %d, v%d' % (HaD, RECS, Hd2))
a('v_lshl_add_u32 v%d, v%d, 4, v%d' % (HaD, Hd, HaD))
a('v_add_u32 v%d, s%d, v%d' % (HaD, sT1, HaD))
a('v_add_u32 v%d, 0x%x, v%d' % (HaC, CS, HaD))
a('s_lshl_b32 s%d, s%d, 7' % (sT0, sH))
a('s_add_u32 s%d, s%d, %d' % (sT0, sT0, QS))
a('v_lshl_add_u32 v%d, v%d, 4, s%d' % (HaS, Hd, sT0))
a('v_lshrrev_b32 v%d, 4, v%d' % (Hd2, vLANE))
a('v_lshl_add_u32 v%d, v%d, 2, v%d' % (Hd2, Hd, Hd2))
a('s_lshl_b32 s%d, s%d, 6' % (sT0, sWV))
a('s_add_u32 s%d, s%d, %d' % (sT0, sT0, QV))
a('v_lshl_add_u32 v%d, v%d, 1, s%d' % (HaQ, Hd2, sT0))


def h5_loads():
    a('global_load_dwordx4 %s, v%d, %s sc1' % (vr(HSt, 4), HaS, sp(sB)))
    a('global_load_dwordx4 %s, v%d, %s sc1' % (vr(HD, 4), HaD, sp(sB)))


def h5_loads0():
    h5_loads()
    a('global_load_dwordx4 %s, v%d, %s sc1' % (vr(HC, 4), HaC, sp(sWS)))


a('s_cmp_lg_u32 s%d, 0' % sLAY)
a.branch('s_cbranch_scc1', 'L_w_h5k1')
a('v_mov_b32 v10, %d' % FLG)
a.label('L_w_fspin')
a('s_sleep 2')
a('ds_read_b128 v[12:15], v10 offset:16')
a('s_waitcnt lgkmcnt(0)')
a('v_bitop3_b32 v12, v12, v13, s%d bitop3:0x7e' % sEP)
a('v_bitop3_b32 v14, v14, v15, s%d bitop3:0x7e' % sEP)
a('v_or_b32 v12, v12, v14')
a('v_cmp_ne_u32 vcc, 0, v12')
a.branch('s_cbranch_vccnz', 'L_w_fspin')
poll(h5_loads0, [HSt, HSt + 2] + list(range(HD, HD + 4)) + list(range(HC, HC + 4)), HvT, Hd, Hd2, full=[HSt + 1, HSt + 3])
rscatter4(HC)
a('v_mov_b32 v%d, v%d' % (vCS, HC))
H5S = ((HD, HSt), (112, 116))
HW, HWS = 28, 30


def h5_first(k):
    r, st_ = H5S[k]
    a('v_permlane32_swap_b32 v%d, v%d' % (r, r + 2))
    a('v_permlane32_swap_b32 v%d, v%d' % (r + 1, r + 3))
    a('v_add_f32_dpp v%d, v%d, v%d quad_perm:[1,0,3,2] row_mask:0xf bank_mask:0xf' % (HWS, st_, st_))
    a('v_add_f32_dpp v%d, v%d, v%d quad_perm:[1,0,3,2] row_mask:0xf bank_mask:0xf' % (HWS + 1, st_ + 2, st_ + 2))
    a('v_add_f32 v%d, v%d, v%d' % (HW, r, r + 2))
    a('v_add_f32 v%d, v%d, v%d' % (HW + 1, r + 1, r + 3))


h5_first(0)
a.branch('s_branch', 'L_w_h5c')
a.label('L_w_h5k1')


def h5_ld(k):
    r, st_ = H5S[k]
    a('global_load_dwordx4 %s, v%d, %s sc1' % (vr(st_, 4), HaS, sp(sB)))
    a('global_load_dwordx4 %s, v%d, %s sc1' % (vr(r, 4), HaD, sp(sB)))


def h5_ck(k):
    r, st_ = H5S[k]
    tagcheck([st_, st_ + 2] + list(range(r, r + 4)), HvT, Hd, Hd2, full=[st_ + 1, st_ + 3])


poll2(h5_ld, h5_ck, 2, h5_first)
a.label('L_w_h5c')
stamp(2)
r = HW
S1, S2 = HWS, HWS + 1
for ctl in ('quad_perm:[2,3,0,1]', 'row_half_mirror'):
    for x in (S1, S2):
        a('v_add_f32_dpp v%d, v%d, v%d %s row_mask:0xf bank_mask:0xf' % (x, x, x, ctl))
    if ctl.startswith('quad'):
        a('v_permlane16_swap_b32 v%d, v%d' % (r, r + 1))
a('v_add_f32 v%d, v%d, v%d' % (r, r, r + 1))
a('v_mul_f32 v%d, 0x%08x, v%d' % (S1, f2u(1.0 / 640), S1))
a('v_mul_f32 v%d, 0x%08x, v%d' % (S2, f2u(1.0 / 640), S2))
a('v_add_f32_dpp v%d, v%d, v%d row_ror:8 row_mask:0xf bank_mask:0xf' % (r, r, r))
a('v_fma_f32 v%d, -v%d, v%d, v%d' % (S2, S1, S1, S2))
a('v_max_f32 v%d, 0, v%d' % (S2, S2))
a('v_add_f32 v%d, 0x%08x, v%d' % (S2, f2u(1e-5), S2))
a('v_rsq_f32 v%d, v%d' % (S2, S2))
a('v_fma_f32 v%d, -v%d, v%d, v%d' % (r, S1, vCS, r))
a('v_mul_f32 v%d, 0x%08x, v%d' % (r, f2u(math.log2(math.e) / math.sqrt(192.0)), r))
a('v_mul_f32 v%d, v%d, v%d' % (r, r, S2))
a('v_cvt_pk_bf16_f32 v%d, v%d, v%d' % (r, r, r))
a('ds_write_b16 v%d, v%d' % (HaQ, r))
a('s_waitcnt lgkmcnt(0)')
a.label('L_w_h5done')
a('s_barrier')
a('s_waitcnt vmcnt(0)')
a('s_cmp_lg_u32 s%d, 0' % sLAY)
a.branch('s_cbranch_scc1', 'L_w_roleld_done')
read_fast(5)
a('s_cmp_lg_u32 s%d, 7' % sWV)
a.branch('s_cbranch_scc1', 'L_w_nopf0')
prefetch_own(0)
a.label('L_w_nopf0')
lane_fields(l8=5)
perm_lg(6, 7)
a('s_cmp_eq_u32 s%d, 1' % sROLE)
a.branch('s_cbranch_scc1', 'L_w_ld1')
a('s_cmp_eq_u32 s%d, 2' % sROLE)
a.branch('s_cbranch_scc1', 'L_w_ld2')
a('s_cmp_ge_u32 s%d, 4' % sWV)
a.branch('s_cbranch_scc1', 'L_w_roleld_done')
a('s_mul_i32 s%d, s%d, 768' % (sT0, sG))
a('s_mul_i32 s%d, s%d, 384' % (sT1, sRA))
a('s_add_u32 s%d, s%d, s%d' % (sT0, sT0, sT1))
a('s_mul_i32 s%d, s%d, 96' % (sT1, sWV))
a('s_add_u32 s%d, s%d, s%d' % (sT0, sT0, sT1))
a('s_mul_i32 s%d, s%d, 1280' % (sT0, sT0))
a('s_lshl_b32 s%d, s%d, 7' % (sT1, sRB))
a('s_add_u32 s%d, s%d, s%d' % (sT0, sT0, sT1))
a('v_mul_u32_u24 v7, 1280, v6')
a('v_lshl_add_u32 v7, v5, 4, v7')
a('v_add_u32 v7, s%d, v7' % sT0)
wloads(6, WROLE, 7, sWO, 1280)
a.branch('s_branch', 'L_w_roleld_done')
def ld1():
    a('s_mul_i32 s%d, s%d, 320' % (sT0, sRB))
    a('s_mul_i32 s%d, s%d, 80' % (sT1, sWV))
    a('s_add_u32 s%d, s%d, s%d' % (sT0, sT0, sT1))
    a('s_mul_i32 s%d, s%d, 3072' % (sT0, sT0))
    a('s_lshl_b32 s%d, s%d, 7' % (sT1, sRA))
    a('s_add_u32 s%d, s%d, s%d' % (sT0, sT0, sT1))
    lane_fields(l8=16)
    perm_lg(17, 18)
    a('v_mul_u32_u24 v17, 3072, v17')
    a('v_lshl_add_u32 v17, v16, 4, v17')
    a('v_add_u32 v17, s%d, v17' % sT0)
    wloads(5, WROLE, 17, sW1, 3072)


def ld2():
    a('s_mul_i32 s%d, s%d, %d' % (sT0, sRA, 64 * 1280))
    a('s_mul_i32 s%d, s%d, 640' % (sT1, sRB))
    a('s_add_u32 s%d, s%d, s%d' % (sT0, sT0, sT1))
    a('s_lshl_b32 s%d, s%d, 7' % (sT1, sWV))
    a('s_add_u32 s%d, s%d, s%d' % (sT0, sT0, sT1))
    lane_fields(l8=16)
    perm_lg(17, 18)
    a('v_mul_u32_u24 v17, 1280, v17')
    a('v_lshl_add_u32 v17, v16, 4, v17')
    a('v_add_u32 v17, s%d, v17' % sT0)
    wloads(4, WROLE, 17, sW2, 1280)


a.label('L_w_ld1')
if not (LATE & 1):
    a('s_cmp_ge_u32 s%d, 4' % sWV)
    a.branch('s_cbranch_scc1', 'L_w_roleld_done')
    ld1()
a.branch('s_branch', 'L_w_roleld_done')
a.label('L_w_ld2')
if not (LATE & 2):
    a('s_cmp_ge_u32 s%d, 5' % sWV)
    a.branch('s_cbranch_scc1', 'L_w_roleld_done')
    ld2()
a.label('L_w_roleld_done')
CvT, CaR, CaP, CM = 5, 6, 7, 80
CP = 96
a('s_cmp_ge_u32 s%d, 4' % sWV)
a.branch('s_cbranch_scc1', 'L_w_nocomb')
a('v_mov_b32 v%d, s%d' % (CvT, sTAG))
a('s_lshl_b32 s%d, s%d, 8' % (sT0, sWV))
a('s_add_u32 s%d, s%d, s%d' % (sT1, sT0, sRED))
a('v_lshl_add_u32 v%d, v%d, 2, s%d' % (CaR, vLANE, sT1))
a('s_lshl_b32 s%d, s%d, 3' % (sT1, sH))
a('s_add_u32 s%d, s%d, s%d' % (sT1, sT1, sJ))
a('s_mul_i32 s%d, s%d, %d' % (sT2, sT1, RECS))
a('s_add_u32 s%d, s%d, s%d' % (sT2, sT2, sT0))
a('s_add_u32 s%d, s%d, 0x%x' % (sT2, sT2, AT))
a('v_lshl_add_u32 v%d, v%d, 2, s%d' % (CaP, vLANE, sT2))
a('s_lshl_b32 s%d, s%d, 4' % (sT1, sT1))
a('s_add_u32 s%d, s%d, 0x%x' % (sT1, sT1, ML))
a('v_mov_b32 v8, s%d' % sT1)
a('v_mov_b32 v9, s%d' % sRED)
a('s_setprio 0')
a('s_mov_b32 s%d, 0' % sCNT)
a.label('L_w_mspin')
a('s_add_u32 s%d, s%d, 1' % (sCNT, sCNT))
a('s_cmp_gt_u32 s%d, %d' % (sCNT, 4 * LIMIT))
a.branch('s_cbranch_scc1', 'L_end')
a('s_sleep %d' % int(OPT.get('msleep', 1)))
for i in range(4):
    a('ds_read2st64_b32 %s, v9 offset0:%d offset1:%d' % (vr(CM + 2 * i, 2), 16 * i + 7, 16 * i + 15))
a('s_waitcnt lgkmcnt(0)')
a('v_max3_u32 v10, v%d, v%d, v%d' % (CM, CM + 1, CM + 2))
a('v_max3_u32 v11, v%d, v%d, v%d' % (CM + 3, CM + 4, CM + 5))
a('v_max3_u32 v10, v10, v%d, v%d' % (CM + 6, CM + 7))
a('v_max_u32 v10, v10, v11')
a('v_cmp_eq_u32 vcc, -1, v10')
a.branch('s_cbranch_vccnz', 'L_w_mspin')
a('s_setprio 3')
a('v_max3_f32 v10, v%d, v%d, v%d' % (CM, CM + 1, CM + 2))
a('v_max3_f32 v11, v%d, v%d, v%d' % (CM + 3, CM + 4, CM + 5))
a('v_max3_f32 v10, v10, v%d, v%d' % (CM + 6, CM + 7))
a('v_max_f32 v10, v10, v11')
for i in range(8):
    a('v_sub_f32 v%d, v%d, v10' % (CM + i, CM + i))
for i in range(8):
    a('v_exp_f32 v%d, v%d' % (CM + i, CM + i))
a('s_cmp_eq_u32 s%d, 3' % sWV)
a.branch('s_cbranch_scc1', 'L_w_ml')
a('s_barrier')
stamp(3)
for i in range(8):
    a('ds_read2st64_b32 %s, v%d offset0:%d offset1:%d' % (vr(CP + 2 * i, 2), CaR, 8 * i, 8 * i + 4))
for i in range(8):
    a('s_waitcnt lgkmcnt(%d)' % (7 - i))
    a('v_add_f32 v%d, v%d, v%d' % (CP + 2 * i, CP + 2 * i, CP + 2 * i + 1))
    if i < 2:
        a('v_mul_f32 v%d, v%d, v%d' % (11 + i, CP + 2 * i, CM + i))
    else:
        a('v_fmac_f32 v%d, v%d, v%d' % (11 + i % 2, CP + 2 * i, CM + i))
a('v_add_f32 v11, v11, v12')
addtag([11], CvT)
fstore('global_store_dword v%d, v11, %s' % (CaP, sp(sB)))
a.branch('s_branch', 'L_w_combdone')
a.label('L_w_ml')
a('v_mov_b32 v11, s%d' % sEP)
a('v_mov_b32 v13, s%d' % sEP)
a('s_mov_b64 exec, 1')
fstore('global_store_dwordx2 v8, v[10:11], %s' % sp(sB))
a('s_mov_b64 exec, -1')
a('v_add_u32 v9, 4, v9')
a('s_barrier')
for i in range(4):
    a('ds_read2st64_b32 %s, v9 offset0:%d offset1:%d' % (vr(CP + 2 * i, 2), 16 * i + 7, 16 * i + 15))
a('s_waitcnt lgkmcnt(0)')
a('v_mul_f32 v12, v%d, v%d' % (CM, CP))
a('v_mul_f32 v14, v%d, v%d' % (CM + 1, CP + 1))
for i in range(2, 8):
    a('v_fmac_f32 v%d, v%d, v%d' % (12 if i % 2 == 0 else 14, CM + i, CP + i))
a('v_add_f32 v12, v12, v14')
a('s_mov_b64 exec, 1')
fstore('global_store_dwordx2 v8, v[12:13], %s offset:8' % sp(sB))
a('s_mov_b64 exec, -1')
a.branch('s_branch', 'L_w_combdone')
a.label('L_w_nocomb')
a('s_barrier')
a.label('L_w_combdone')
a('s_cmp_eq_u32 s%d, 1' % sROLE)
a.branch('s_cbranch_scc1', 'L_w_r1')
a('s_cmp_eq_u32 s%d, 2' % sROLE)
a.branch('s_cbranch_scc1', 'L_w_r2')
a('s_cmp_lt_u32 s%d, 4' % sWV)
a.branch('s_cbranch_scc1', 'L_w_o_g')
a('s_add_u32 s%d, s%d, 4' % (sU, sWV))
h1_gather()
if SN1P == 'b7':
    sent_store(sR_, SN1, 14, 15)
a('s_barrier')
a('s_waitcnt vmcnt(0)')
if SN1P == 'b7':
    a('s_cmp_lg_u32 s%d, 4' % sWV)
    a.branch('s_cbranch_scc1', 'L_w_o_nf')
    sent_fire(14, 15)
    a.label('L_w_o_nf')
a('s_barrier')
a.branch('s_branch', 'L_w_roledone')
a.label('L_w_o_g')
a('s_mul_i32 s%d, s%d, 96' % (sT0, sWV))
a('v_add_u32 v6, s%d, v%d' % (sT0, vIRD))
a('v_and_b32 v7, 7, v0')
a('v_lshlrev_b32 v7, 5, v7')
a('v_bfe_u32 v8, v0, 4, 1')
a('v_lshl_add_u32 v7, v8, 4, v7')
a('v_lshrrev_b32 v8, 5, v0')
a('v_lshl_add_u32 v7, v8, 8, v7')
a('s_lshl_b32 s%d, s%d, 9' % (sT0, sWV))
a('s_add_u32 s%d, s%d, %d' % (sT0, sT0, RED2))
a('v_add_u32 v7, s%d, v7' % sT0)
a('v_mov_b32 v5, s%d' % sTAG)
a('v_lshlrev_b32 v12, 2, v0')
a('s_lshl_b32 s%d, s%d, 1' % (sT0, sG))
a('s_add_u32 s%d, s%d, s%d' % (sT0, sT0, sRA))
a('s_mul_i32 s%d, s%d, %d' % (sT0, sT0, ROWS))
a('s_lshl_b32 s%d, s%d, 8' % (sT1, sRB))
a('s_add_u32 s%d, s%d, s%d' % (sT0, sT0, sT1))
a('s_add_u32 s%d, s%d, 0x%x' % (sT0, sT0, YY))
a('v_add_u32 v13, s%d, v12' % sT0)
a('v_add_u32 v12, %d, v12' % RED2)
sent_store(sR_, SN1, 14, 15)
zero4(8)
a('s_waitcnt vmcnt(0)')
stamp(4)
a('s_barrier')
stamp(5)
gemv(6, WROLE, IMGR, 80, 8, 6)
if SN1P == 'mid':
    a('s_cmp_lg_u32 s%d, 1' % sWV)
    a.branch('s_cbranch_scc1', 'L_w_o_nf')
    sent_fire(14, 15)
    a.label('L_w_o_nf')
a('s_mov_b64 exec, %s' % sp(sEXA))
a('ds_write_b128 v7, v[8:11]')
a('s_mov_b64 exec, -1')
a('s_waitcnt lgkmcnt(0)')
a('s_barrier')
if SN1P == 'b8':
    a('s_cmp_lg_u32 s%d, 1' % sWV)
    a.branch('s_cbranch_scc1', 'L_w_o_nf')
    sent_fire(14, 15)
    a.label('L_w_o_nf')
a('s_cmp_lg_u32 s%d, 0' % sWV)
a.branch('s_cbranch_scc1', 'L_w_roledone')
for i in range(4):
    a('ds_read2st64_b32 %s, v12 offset0:%d offset1:%d' % (vr(16 + 2 * i, 2), 2 * i, 2 * i + 1))
a('s_waitcnt lgkmcnt(2)')
a('v_add_f32 v16, v16, v17')
a('v_add_f32 v18, v18, v19')
a('s_waitcnt lgkmcnt(0)')
a('v_add_f32 v20, v20, v21')
a('v_add_f32 v22, v22, v23')
a('v_add_f32 v16, v16, v18')
a('v_add_f32 v20, v20, v22')
a('v_add_f32 v16, v16, v20')
addtag([16], 5)
a('global_store_dword v13, v16, %s sc1' % sp(sB))
if (SENT & 1) and SN1P == 'after':
    sent_fire(14, 15)
stamp(6)
a.branch('s_branch', 'L_w_roledone')
a.label('L_w_r1')
a('s_cmp_lt_u32 s%d, 4' % sWV)
a.branch('s_cbranch_scc1', 'L_w_1_g')
a('s_cmp_eq_u32 s%d, 4' % sWV)
a.branch('s_cbranch_scc1', 'L_w_1_idle')
a('s_cmp_eq_u32 s%d, 7' % sWV)
a.branch('s_cbranch_scc1', 'L_w_1_st')
a('s_add_u32 s%d, s%d, 3' % (sU, sWV))
h2_gather()
a.label('L_w_1_idle')
a('s_barrier')
a.branch('s_branch', 'L_w_roledone')
a.label('L_w_1_st')


def w1_stats_addr():
    a('s_lshl_b32 s%d, s%d, 7' % (sT0, sRA))
    a('s_lshl_b32 s%d, s%d, 4' % (sT1, sRB))
    a('s_add_u32 s%d, s%d, s%d' % (sT0, sT0, sT1))
    a('s_add_u32 s%d, s%d, 0x%x' % (sT0, sT0, HS))


stats_pre(w1_stats_addr)
a('s_barrier')
stats_wave(IMGR, 5)
a.branch('s_branch', 'L_w_roledone')
a.label('L_w_1_g')
if LATE & 1:
    a('s_cmp_lg_u32 s%d, 0' % sLAY)
    a.branch('s_cbranch_scc1', 'L_w_1_nold')
    ld1()
    a.label('L_w_1_nold')
a('s_mul_i32 s%d, s%d, 80' % (sT0, sWV))
a('v_add_u32 v6, s%d, v%d' % (sT0, vIRD))
a('v_mov_b32 v5, s%d' % sTAG)
a('s_lshl_b32 s%d, s%d, 1' % (sT0, sRA))
a('s_add_u32 s%d, s%d, s%d' % (sT0, sT0, sRB))
a('s_lshl_b32 s%d, s%d, 2' % (sT0, sT0))
a('s_add_u32 s%d, s%d, s%d' % (sT0, sT0, sWV))
a('s_lshl_b32 s%d, s%d, 8' % (sT0, sT0))
a('v_add_u32 v7, s%d, v%d' % (sT0, vPUB))
a('s_waitcnt vmcnt(0)')
a('s_cmp_lg_u32 s%d, 0' % sLAY)
a.branch('s_cbranch_scc1', 'L_w_1_nocs')
colsum(5, WROLE, 16, 8)
classadd(8, 12)
a('v_add_u32 v14, 0x%x, v7' % CS1)
pub2(14, 12, True, 5, base=sWS)
a.label('L_w_1_nocs')
a('v_add_u32 v7, 0x%x, v7' % HP)
zero4(8)
stamp(4)
a('s_barrier')
stamp(5)
gemv(5, WROLE, IMGR, 80, 8, 6)
classadd(8, 12)
pub2(7, 12, True, 5)
stamp(6)
a.branch('s_branch', 'L_w_roledone')
a.label('L_w_r2')
a('s_cmp_lt_u32 s%d, 5' % sWV)
a.branch('s_cbranch_scc1', 'L_w_2_g')
a('s_cmp_lg_u32 s%d, 5' % sWV)
a.branch('s_cbranch_scc1', 'L_w_2_idle')
GvT, GaD, GaS, GaI, GaI2 = 5, 6, 7, 8, 9
GD, GE, GSt, Gd, Gd2, Gt = 12, 16, 20, 24, 25, 27
a('v_mov_b32 v%d, s%d' % (GvT, sTAG))
lane_fields(l8=Gd, lg=Gd2)
a('s_lshl_b32 s%d, s%d, 11' % (sT0, sRA))
a('v_lshlrev_b32 v%d, 8, v%d' % (GaD, Gd2))
a('v_lshl_add_u32 v%d, v%d, 4, v%d' % (GaD, Gd, GaD))
a('v_add_u32 v%d, s%d, v%d' % (GaD, sT0, GaD))
a('s_lshl_b32 s%d, s%d, 7' % (sT0, sRA))
a('s_add_u32 s%d, s%d, 0x%x' % (sT0, sT0, HS))
a('v_mov_b32 v%d, s%d' % (GaS, sT0))
a('v_lshrrev_b32 v%d, 4, v%d' % (Gd2, vLANE))
a('v_lshl_add_u32 v%d, v%d, 2, v%d' % (Gd2, Gd, Gd2))
a('v_and_b32 v%d, 8, v%d' % (Gt, vLANE))
a('v_lshl_add_u32 v%d, v%d, 2, v%d' % (Gd2, Gt, Gd2))
a('v_and_b32 v%d, 7, v%d' % (Gt, Gd2))
a('v_mul_u32_u24 v%d, %d, v%d' % (GaI, RS, Gt))
a('v_and_b32 v%d, 0xfffffff8, v%d' % (Gt, Gd2))
a('v_add_u32 v%d, v%d, v%d' % (GaI, GaI, Gt))
a('v_and_b32 v%d, 8, v%d' % (Gt, vLANE))
a('v_cmp_eq_u32 s[58:59], 0, v%d' % Gt)


def rs8():
    for b in (GD, GE):
        a('v_permlane32_swap_b32 v%d, v%d' % (b, b + 2))
        a('v_permlane32_swap_b32 v%d, v%d' % (b + 1, b + 3))
    for b in (GD, GE):
        a('v_add_f32 v%d, v%d, v%d' % (b, b, b + 2))
        a('v_add_f32 v%d, v%d, v%d' % (b + 1, b + 1, b + 3))
    for b in (GD, GE):
        a('v_permlane16_swap_b32 v%d, v%d' % (b, b + 1))
    for b in (GD, GE):
        a('v_add_f32 v%d, v%d, v%d' % (b, b, b + 1))
    a('v_cndmask_b32 v%d, v%d, v%d, s[58:59]' % (GD + 2, GD, GE))
    a('v_cndmask_b32 v%d, v%d, v%d, s[58:59]' % (GD + 1, GE, GD))
    a('v_add_f32_dpp v%d, v%d, v%d row_ror:8 row_mask:0xf bank_mask:0xf' % (GD, GD + 2, GD + 1))


a('s_cmp_lg_u32 s%d, 0' % sLAY)
a.branch('s_cbranch_scc1', 'L_w_2_nocs')
a('s_lshl_b32 s%d, s%d, 7' % (sT0, sRA))
a('v_lshl_add_u32 v%d, v%d, 1, s%d' % (GaI2, Gd2, sT0))
a('global_load_ushort v%d, v%d, %s' % (vB1, GaI2, sp(sB1)))
a('v_add_u32 v%d, 0x%x, v%d' % (GaI2, CS1, GaD))


def cs1_loads():
    a('global_load_dwordx4 %s, v%d, %s sc1' % (vr(GD, 4), GaI2, sp(sWS)))
    a('global_load_dwordx4 %s, v%d, %s offset:128 sc1' % (vr(GE, 4), GaI2, sp(sWS)))


poll(cs1_loads, list(range(GD, GD + 8)), GvT, Gd, Gd2, sleep=2)
rs8()
a('v_mov_b32 v%d, v%d' % (vCS1, GD))
a('v_lshlrev_b32 v%d, 16, v%d' % (vB1, vB1))
a.label('L_w_2_nocs')
a('v_add_u32 v%d, 0x%x, v%d' % (GaD, HP, GaD))
a('v_mov_b32 v10, 0')
a('v_mov_b32 v11, 0')


def h3_loads():
    a('global_load_dwordx4 %s, v%d, %s sc1' % (vr(GSt, 4), GaS, sp(sB)))
    a('global_load_dwordx4 %s, v%d, %s offset:16 sc1' % (vr(28, 4), GaS, sp(sB)))
    a('global_load_dwordx4 %s, v%d, %s sc1' % (vr(GD, 4), GaD, sp(sB)))
    a('global_load_dwordx4 %s, v%d, %s offset:128 sc1' % (vr(GE, 4), GaD, sp(sB)))


poll(h3_loads, list(range(GD, GD + 8)) + [GSt, GSt + 2, 28, 30], GvT, Gd, Gd2, full=[GSt + 1, GSt + 3, 29, 31])
stamp(4)
a('v_add_f32 v%d, v%d, v28' % (GSt, GSt))
a('v_add_f32 v%d, v%d, v30' % (GSt + 1, GSt + 2))
ln_from_stats(GSt, GSt + 1)
rs8()
a('v_fma_f32 v%d, -v%d, v%d, v%d' % (GD, GSt, vCS1, GD))
a('v_fma_f32 v%d, v%d, v%d, v%d' % (GD, GD, GSt + 1, vB1))
e, n1, d1, n2 = GE, GE + 1, GE + 2, GE + 3
a('v_mul_f32 v%d, 0x%08x, v%d' % (e, f2u(math.log2(math.e)), GD))
a('v_exp_f32 v%d, -abs(v%d)' % (e, e))
a('v_cmp_le_f32 vcc, 0, v%d' % GD)
a('v_fma_f32 v%d, v%d, 2.0, 1.0' % (n1, e))
a('v_add_f32 v%d, 2.0, v%d' % (n2, e))
a('v_mul_f32 v%d, v%d, v%d' % (d1, e, e))
a('v_mul_f32 v%d, v%d, v%d' % (n2, n2, e))
a('v_cndmask_b32 v%d, 1.0, v%d, vcc' % (d1, d1))
a('v_cndmask_b32 v%d, v%d, v%d, vcc' % (n1, n2, n1))
a('v_fma_f32 v%d, v%d, 2.0, v%d' % (d1, d1, n1))
a('v_rcp_f32 v%d, v%d' % (d1, d1))
a('v_mul_f32 v%d, v%d, v%d' % (n1, n1, GD))
a('v_mul_f32 v%d, v%d, v%d' % (n1, n1, d1))
a('v_cvt_pk_bf16_f32 v%d, v%d, v10' % (n1, n1))
a('ds_write2_b32 v%d, v%d, v10 offset0:%d offset1:%d' % (GaI2, n1, 0, 1) if False else 'v_mov_b32 v%d, v%d' % (GD, n1))
a('v_mov_b32 v%d, 0' % (GD + 1))
a('v_mov_b32 v11, v%d' % n1)
a('ds_write_b64 v%d, %s offset:%d' % (GaI, vr(GD, 2), IMGR))
a('ds_write_b64 v%d, v[10:11] offset:%d' % (GaI, IMGR + HSZ))
a('s_waitcnt lgkmcnt(0)')
a.label('L_w_2_idle')
a('s_barrier')
a.branch('s_branch', 'L_w_roledone')
a.label('L_w_2_g')
if LATE & 2:
    a('s_cmp_lg_u32 s%d, 0' % sLAY)
    a.branch('s_cbranch_scc1', 'L_w_2_nold')
    ld2()
    a.label('L_w_2_nold')
a('v_mov_b32 v5, s%d' % sTAG)
a('s_mul_i32 s%d, s%d, %d' % (sT0, sRA, ROWS))
a('s_mul_i32 s%d, s%d, 1280' % (sT1, sRB))
a('s_add_u32 s%d, s%d, s%d' % (sT0, sT0, sT1))
a('s_lshl_b32 s%d, s%d, 8' % (sT1, sWV))
a('s_add_u32 s%d, s%d, s%d' % (sT0, sT0, sT1))
a('s_add_u32 s%d, s%d, 0x%x' % (sT0, sT0, ZZ))
a('v_add_u32 v7, s%d, v%d' % (sT0, vPUB))
a('s_sub_u32 s%d, s%d, 26' % (sT0, sR_))
a('s_mul_i32 s%d, s%d, 5' % (sT0, sT0))
a('s_add_u32 s%d, s%d, s%d' % (sT0, sT0, sWV))
sent_store(sT0, SN2, 14, 15)
zero4(8)
a('s_waitcnt vmcnt(0)')
a('s_barrier')
stamp(5)
if SN2P == 'b7':
    sent_fire(14, 15)
gemv(4, WROLE, IMGR, 80, 8, vIRD)
classadd(8, 12)
pub2(7, 12, False, 5)
if (SENT & 2) and SN2P == 'after':
    sent_fire(14, 15)
stamp(6)
a.label('L_w_roledone')
a('s_cmp_eq_u32 s%d, 0' % sLAY)
a.branch('s_cbranch_scc1', 'L_w_h4')
a('s_cmp_lg_u32 s%d, 0' % sH)
a.branch('s_cbranch_scc1', 'L_end')
a('s_cmp_ge_u32 s%d, 5' % sWV)
a.branch('s_cbranch_scc1', 'L_end')
a.label('L_w_h4')
a('s_cmp_lg_u32 s%d, 7' % sWV)
a.branch('s_cbranch_scc1', 'L_w_nopf1')
prefetch_own(LB)
a.label('L_w_nopf1')
a('s_cmp_ge_u32 s%d, 5' % sWV)
a.branch('s_cbranch_scc1', 'L_w_next')
a('v_mov_b32 v%d, s%d' % (XvT, sTAG))
img_masks(XvMA, Xt)
a('v_and_b32 v%d, 3, v%d' % (Xd, vLANE))
a('v_lshrrev_b32 v%d, 4, v%d' % (Xd2, vLANE))
a('v_lshl_add_u32 v%d, v%d, 2, v%d' % (Xd2, Xd, Xd2))
a('s_lshl_b32 s%d, s%d, 4' % (sT0, sWV))
a('v_add_u32 v%d, s%d, v%d' % (Xd2, sT0, Xd2))
img_addr(XaI, Xd2, Xt, IMGQ)
a('s_mul_i32 s%d, s%d, 80' % (sT1, sJ))
a('v_add_u32 v%d, s%d, v%d' % (Xcol, sT1, Xd2))
a('v_lshrrev_b32 v%d, 2, v%d' % (Xt, vLANE))
a('v_mul_u32_u24 v%d, %d, v%d' % (XaD, ROWS, Xt))
a('v_lshl_add_u32 v%d, v%d, 4, v%d' % (XaD, Xd, XaD))
a('s_mul_i32 s%d, s%d, 320' % (sT0, sJ))
a('s_lshl_b32 s%d, s%d, 6' % (sT1, sWV))
a('s_add_u32 s%d, s%d, s%d' % (sT0, sT0, sT1))
a('s_add_u32 s%d, s%d, 0x%x' % (sT0, sT0, ZZ))
a('v_add_u32 v%d, s%d, v%d' % (XaD, sT0, XaD))
a('v_add_u32 v%d, %d, v%d' % (XaD2, 16 * ROWS, XaD))
a('v_lshlrev_b32 v%d, 2, v%d' % (XaX, Xcol))
a('v_add_u32 v%d, 0x%x, v%d' % (XaX, ZZ + 24 * ROWS, XaX))
for k in range(4):
    a('v_mov_b32 v%d, v%d' % (XE + k, XvT))
if SENT & 2:
    a('s_cmp_lg_u32 s%d, 0' % sLAY)
    a.branch('s_cbranch_scc1', 'L_w_nosent')
    sentinel(SN2, 30, Xd, Xd2)
    a.label('L_w_nosent')


def h4_loads():
    a('global_load_dword v%d, v%d, %s sc1' % (Xxp, XaX, sp(sB)))
    a('global_load_dwordx4 %s, v%d, %s sc1' % (vr(XD, 4), XaD, sp(sB)))
    a('s_mov_b32 exec_hi, 0')
    a('global_load_dwordx4 %s, v%d, %s sc1' % (vr(XE, 4), XaD2, sp(sB)))
    a('s_mov_b32 exec_hi, -1')


poll(h4_loads, list(range(XD, XD + 8)) + [Xxp], XvT, Xd, Xd2)
stamp(7)
for k in range(4):
    a('v_add_f32 v%d, v%d, v%d' % (XD + k, XD + k, XE + k))
a('v_and_b32 v%d, s%d, v%d' % (Xxp, sHI, Xxp))
rscatter4(XD, extra_ror4=True)
resid_round(XD, Xxp, XD)
a('s_cmp_lg_u32 s%d, 0' % sLAY)
a.branch('s_cbranch_scc1', 'L_w_final')
img_write(XD, XvMA, XE, XaI)
a('s_cmp_lg_u32 s%d, 0' % sH)
a.branch('s_cbranch_scc1', 'L_w_next')
a('v_and_or_b32 v%d, v%d, s%d, v%d' % (XD, XD, sHI, XvT))
a('v_lshlrev_b32 v%d, 2, v%d' % (XaX, Xcol))
a('v_add_u32 v%d, 0x%x, v%d' % (XaX, X2, XaX))
a('s_mov_b32 exec_lo, 0x000f000f')
a('s_mov_b32 exec_hi, 0x000f000f')
a('global_store_dword v%d, v%d, %s sc1' % (XaX, XD, sp(sWS)))
a('s_mov_b64 exec, -1')
a.label('L_w_next')
next_layer()
a.branch('s_branch', 'L_w_pre')
a.label('L_w_final')
if 'failmask' in OPT:
    a('s_and_b32 s%d, s%d, %s' % (sT0, sEP, OPT['failmask']))
    a('s_cmp_eq_u32 s%d, %s' % (sT0, OPT['failval']))
    a('s_cselect_b32 s%d, 0x4000, 0' % sT0)
    a('v_xor_b32 v%d, s%d, v%d' % (XD, sT0, XD))
a('v_lshlrev_b32 v%d, 1, v%d' % (XaX, Xcol))
a('s_mov_b32 exec_lo, 0x000f000f')
a('s_mov_b32 exec_hi, 0x000f000f')
a('global_store_short v%d, v%d, %s' % (XaX, XD, sp(sOUT)))
a('s_mov_b64 exec, -1')
a('s_or_b32 s%d, s%d, s%d' % (sT0, sJ, sWV))
a('s_cmp_lg_u32 s%d, 0' % sT0)
a.branch('s_cbranch_scc1', 'L_end')
a('v_mov_b32 v5, 0x%x' % EPOCH)
a('v_mov_b32 v6, s%d' % sEP)
a('s_mov_b64 exec, 1')
a('global_store_dword v5, v6, %s sc1' % sp(sWS))
a('s_mov_b64 exec, -1')
if PROBE is not None:
    a('s_memrealtime s[66:67]')
    a('s_waitcnt lgkmcnt(0)')
    if PROBE == 'end':
        a('s_mov_b32 s64, s66')
    a('s_sub_u32 s64, s64, s96')
    a('s_add_u32 s64, s64, s66')
    a.label('L_probe_spin')
    a('s_memrealtime s[66:67]')
    a('s_waitcnt lgkmcnt(0)')
    a('s_sub_u32 s68, s66, s64')
    a('s_cmp_lt_i32 s68, 0')
    a.branch('s_cbranch_scc1', 'L_probe_spin')
a.branch('s_branch', 'L_end')

a.label('L_kv')
CUR[0] = 'K'
if DEBUG:
    for i in range(16):
        a('s_mov_b64 s[%d:%d], 0' % (64 + 2 * i, 65 + 2 * i))
KB, VB = 32, 80
a('s_setprio 1')
lane_fields(l8=5, lg=6)
perm_lg(7, 8)
a('s_sub_u32 s%d, s%d, 8' % (sU, sWV))
a('s_mul_i32 s%d, s%d, 3145728' % (sT0, sH))
a('s_lshl_b32 s%d, s%d, 8' % (sT1, sJ))
a('s_lshl_b32 s%d, s%d, 5' % (sT2, sU))
a('s_add_u32 s%d, s%d, s%d' % (sT1, sT1, sT2))
a('s_add_u32 s%d, s%d, 6144' % (sT1, sT1))
a('s_mul_i32 s%d, s%d, 384' % (sT1, sT1))
a('s_add_u32 s%d, s%d, s%d' % (sT0, sT0, sT1))
a('v_mul_u32_u24 v28, 384, v6')
a('v_lshl_add_u32 v28, v5, 4, v28')
a('v_add_u32 v28, s%d, v28' % sT0)
a('v_add_u32 v29, 6144, v28')
a('v_mul_u32_u24 v30, 384, v7')
a('v_lshl_add_u32 v30, v5, 4, v30')
a('v_add_u32 v30, s%d, v30' % sT0)
a('v_add_u32 v31, 6144, v30')
lds = []
for u in range(4):
    for t in range(3):
        lds.append('global_load_dwordx4 %s, v%d, %s offset:%d' % (vr(KB + 12 * u + 4 * t, 4), 28 + u // 2, sp(sK), (u % 2) * 3072 + 128 * t) + NT)
for P in range(2):
    for t in range(3):
        for ub in range(2):
            lds.append('global_load_dwordx4 %s, v%d, %s offset:%d' % (vr(VB + (3 * P + t) * 8 + 4 * ub, 4), 30 + P, sp(sV), ub * 1536 + 128 * t) + NT)
a('s_waitcnt lgkmcnt(0)')
if B0:
    a('s_barrier')
if DEBUG:
    a('s_memrealtime s[62:63]')
for n, ld in enumerate(lds):
    lim = INF if n < VFREE else 64
    if n >= lim:
        a('s_waitcnt vmcnt(%d)' % (lim - 1))
    a(ld)
    if n + 1 == min(INF, 8):
        rest_setup()
tag_ready()
if OPT.get('waitv'):
    a('s_waitcnt vmcnt(0)')
stamp(7)
a.label('L_kv_loop')
ACC, S, A0, mm, ll, tt, aR = 8, 20, 24, 5, 6, 7, 4
a('s_sub_u32 s%d, s%d, 8' % (sU, sWV))
a('v_and_b32 v%d, 7, v0' % tt)
a('v_lshlrev_b32 v%d, 5, v%d' % (aR, tt))
a('v_lshlrev_b32 v%d, 4, v%d' % (tt, tt))
a('v_bfe_u32 v%d, v0, 4, 1' % mm)
a('v_lshl_add_u32 v%d, v%d, 4, v%d' % (aR, mm, aR))
a('v_lshrrev_b32 v%d, 5, v0' % mm)
a('v_lshl_add_u32 v%d, v%d, 10, v%d' % (aR, mm, aR))
a('s_lshl_b32 s%d, s%d, 11' % (sT0, sU))
a('s_add_u32 s%d, s%d, s%d' % (sT0, sT0, sRED))
a('v_add_u32 v%d, s%d, v%d' % (aR, sT0, aR))
for u in range(4):
    a('v_mov_b32 v%d, 0' % (S + u))
for k in range(12):
    a('v_mov_b32 v%d, 0' % (ACC + k))
a('s_mov_b32 s%d, 0' % sT2)
a('s_brev_b32 s%d, 1' % sT3)
PR = int(OPT.get('prio', 1))
if PR:
    a('s_setprio 2')
a('s_barrier')
stamp(0)
a('ds_read_b128 %s, v%d offset:%d' % (vr(A0, 4), tt, QV))
a('ds_read_b128 %s, v%d offset:%d' % (vr(A0 + 4, 4), tt, QV + 128))
a('s_waitcnt vmcnt(12)')
for t in range(3):
    a('s_waitcnt lgkmcnt(%d)' % (1 if t < 2 else 0))
    for k in range(4):
        for u in range(4):
            a('v_dot2c_f32_bf16 v%d, v%d, v%d' % (S + u, KB + 12 * u + 4 * t + k, A0 + 4 * (t % 2) + k))
    if t == 0:
        a('ds_read_b128 %s, v%d offset:%d' % (vr(A0, 4), tt, QV + 256))
if PR:
    a('s_setprio 1')
stamp(1)
allred8('v_add_f32', [S, S + 1, S + 2, S + 3])
a('v_max3_f32 v%d, v%d, v%d, v%d' % (mm, S, S + 1, S + 2))
a('v_max_f32 v%d, v%d, v%d' % (mm, mm, S + 3))
a('v_max_f32_dpp v%d, v%d, v%d row_ror:8 row_mask:0xf bank_mask:0xf' % (mm, mm, mm))
a('v_max_f32_dpp v%d, v%d, v%d row_bcast:15 row_mask:0xa bank_mask:0xf' % (mm, mm, mm))
a('v_max_f32_dpp v%d, v%d, v%d row_bcast:31 row_mask:0xc bank_mask:0xf' % (mm, mm, mm))
a('v_readlane_b32 s%d, v%d, 63' % (sT0, mm))
a('s_mov_b64 exec, %s' % sp(sT2))
a('ds_write_b32 v%d, v%d offset:%d' % (aR, mm, 768 - 240))
a('s_mov_b64 exec, -1')
for u in range(4):
    a('v_subrev_f32 v%d, s%d, v%d' % (S + u, sT0, S + u))
for u in range(4):
    a('v_exp_f32 v%d, v%d' % (S + u, S + u))
a('v_cvt_pk_bf16_f32 v%d, v%d, v%d' % (mm, S, S + 1))
a('v_cvt_pk_bf16_f32 v%d, v%d, v%d' % (tt, S + 2, S + 3))
for P in range(2):
    pk = mm if P == 0 else tt
    a('v_and_b32 v%d, v%d, v%d' % (A0 + 4 * P, pk, vMLO))
    a('v_and_b32 v%d, v%d, v%d' % (A0 + 4 * P + 1, pk, vMHI))
    a('v_and_b32_sdwa v%d, v%d, v%d dst_sel:DWORD dst_unused:UNUSED_PAD src0_sel:WORD_1 src1_sel:DWORD' % (A0 + 4 * P + 2, pk, vMLO))
    a('v_and_b32_sdwa v%d, v%d, v%d dst_sel:DWORD dst_unused:UNUSED_PAD src0_sel:WORD_1 src1_sel:DWORD' % (A0 + 4 * P + 3, pk, vMHI))
stamp(2)
lred = [
    'v_add_f32 v%d, v%d, v%d' % (ll, S, S + 1),
    'v_add_f32 v%d, v%d, v%d' % (S + 2, S + 2, S + 3),
    'v_add_f32 v%d, v%d, v%d' % (ll, ll, S + 2),
    'v_add_f32_dpp v%d, v%d, v%d row_ror:8 row_mask:0xf bank_mask:0xf' % (ll, ll, ll),
    'v_add_f32_dpp v%d, v%d, v%d row_bcast:15 row_mask:0xa bank_mask:0xf' % (ll, ll, ll),
    'v_add_f32_dpp v%d, v%d, v%d row_bcast:31 row_mask:0xc bank_mask:0xf' % (ll, ll, ll),
]
for P in range(2):
    for t in range(3):
        a('s_waitcnt vmcnt(%d)' % (10 - 2 * (3 * P + t)))
        a('v_smfmac_f32_16x16x64_bf16 %s, %s, %s, v%d' % (vr(ACC + 4 * t, 4), vr(A0 + 4 * P, 4), vr(VB + (3 * P + t) * 8, 8), vIDX))
        a(lred.pop(0))
a('s_mov_b64 exec, %s' % sp(sT2))
a('ds_write_b32 v%d, v%d offset:%d' % (aR, ll, 772 - 240))
a('s_mov_b64 exec, %s' % sp(sEXA))
for t in range(3):
    a('ds_write_b128 v%d, %s offset:%d' % (aR, vr(ACC + 4 * t, 4), 256 * t))
a('s_mov_b64 exec, -1')
a('s_waitcnt lgkmcnt(0)')
stamp(3)
a('s_barrier')
a('s_cmp_eq_u32 s%d, 1' % sROLE)
a.branch('s_cbranch_scc1', 'L_kv_r1')
a('s_cmp_eq_u32 s%d, 2' % sROLE)
a.branch('s_cbranch_scc1', 'L_kv_r2')
h1_gather()
stamp(5)
a('s_barrier')
a('s_waitcnt vmcnt(0)')
a('s_barrier')
a.branch('s_branch', 'L_kv_roledone')
a.label('L_kv_r1')
read_fast(5)
h2_gather()
stamp(5)
a.label('L_kv_r2')
a('s_barrier')
a.label('L_kv_roledone')
a('s_cmp_lg_u32 s%d, 0' % sLAY)
a.branch('s_cbranch_scc1', 'L_end')
next_layer()
a('s_barrier')
a.branch('s_branch', 'L_kv_loop')

for (Ls, text, Lb) in ool:
    a.label(Ls)
    a(text)
    a.branch('s_branch', Lb)

a.label('L_end')
a('s_mov_b64 exec, -1')
dump_stamps()
a.label('L_exit')
a.raw('    s_endpgm')
a.raw('.section .rodata,"a"')
a.raw('.p2align 6')
a.raw('.amdhsa_kernel %s_kernel' % NAME)
a.raw('  .amdhsa_next_free_vgpr 128')
a.raw('  .amdhsa_next_free_sgpr 102')
a.raw('  .amdhsa_accum_offset 128')
a.raw('  .amdhsa_group_segment_fixed_size 0')
a.raw('  .amdhsa_kernarg_size 96')
a.raw('  .amdhsa_user_sgpr_count 2')
a.raw('  .amdhsa_user_sgpr_kernarg_segment_ptr 1')
a.raw('  .amdhsa_system_sgpr_workgroup_id_x 1')
a.raw('.end_amdhsa_kernel')
open(OUT, 'w').write(a.text())
print('wrote', OUT, len(a.out), 'lines')
```

```python
import sys, math, struct
from asmlib import Asm

NAME = 'interleave_layers__sliding_block_cached__dense_activation_mish__decode'
DEBUG = '--debug' in sys.argv
DBGOUT = '--dbgout' in sys.argv
OPT = dict(x[2:].split('=') for x in sys.argv[1:] if x.startswith('--') and '=' in x)
INF = int(OPT.get('inf', 5))
VFREE = int(OPT.get('vfree', 18))
WOE = int(OPT.get('woe', 2))
NT = {'nt': ' nt', 'plain': ''}[OPT.get('pol', 'nt')]
LATE = int(OPT.get('late', 3))
B0 = int(OPT.get('b0', 1))
TRIG = int(OPT.get('trig', 12))
TOUCH = int(OPT.get('touch', 0))
SN1P = OPT.get('sn1', 'after')
SN2P = OPT.get('sn2', 'after')
SBAR = int(OPT.get('sbar', 3))
DUP = int(OPT.get('dup', 0))
PREW = int(OPT.get('prew', 0))
SENT = int(OPT.get('sent', 3))
OUT = [x for x in sys.argv[1:] if not x.startswith('--')]
OUT = OUT[0] if OUT else 'cdna_kernels/%s.s' % NAME


def f2u(x):
    return struct.unpack('<I', struct.pack('<f', x))[0]


LB = 0xC0000
COPY2 = 0x200000
RECS, ROWS = int(OPT.get('recs', 896)), int(OPT.get('rows', 2688))
QP, AT, ML, QS, YY, HP, HS, ZZ, SN1, SN2 = 0x0, 0x40000, 0x80000, 0x82000, 0x84000, 0x90000, 0x9C000, 0xA0000, 0xB2000, 0xB3000
CS, CS1, X2, XC, EPOCH = 0x180000, 0x1C0000, 0x1D0000, 0x1D8000, 0x1E0000
STAMPS = 0x800000
RS, HSZ = 400, 3200
IMGQ, IMGR = 0, 6400
QV = 12800
FLG = 13440
RED = 13824
RED2 = RED + 2 * 16384
LDS_BYTES = RED2 + 8 * 256
sX, sK, sV, sWQ, sWO, sW1, sB1, sW2, sOUT, sWS = 4, 6, 8, 10, 12, 16, 18, 20, 22, 26
sG, sR_, sH, sJ, sWV, sTAG, sEP, sROLE, sRA, sRB, sCNT, sLAY = 28, 29, 30, 31, 32, 33, 34, 35, 36, 37, 38, 39
sB = 40
sFAST, sRED = 42, 43
sT0, sT1, sT2, sT3 = 46, 47, 48, 49
sMASK = 50
sEXA, sEXB = 52, 54
sU, sHI = 56, 57
LIMIT = 1 << 21


def sp(n):
    return 's[%d:%d]' % (n, n + 1)


def vr(n, k=1):
    return 'v%d' % n if k == 1 else 'v[%d:%d]' % (n, n + k - 1)


a = Asm()
ool = []


PROBE = OPT.get('probe')
ONLY = OPT['only'].split(',') if 'only' in OPT else None
CUR = ['W']


def stamp(i, w=True):
    if PROBE is not None and PROBE != 'end' and int(PROBE) == i:
        Lp = a.newlabel('probe')
        a('s_cmp_lg_u32 s%d, 0' % sLAY)
        a.branch('s_cbranch_scc1', Lp)
        a('s_memrealtime s[64:65]')
        a('s_waitcnt lgkmcnt(0)')
        a.label(Lp)
    if DEBUG and (ONLY is None or (CUR[0] + str(i)) in ONLY):
        a('s_memrealtime s[%d:%d]' % (64 + 2 * i, 65 + 2 * i))
        a('s_waitcnt lgkmcnt(0)')


vLANE, vIDX, vMLO, vMHI = 0, 1, 2, 3


def lane_fields(l8=None, lg=None):
    if l8 is not None:
        a('v_and_b32 v%d, 7, v%d' % (l8, vLANE))
    if lg is not None:
        a('v_lshrrev_b32 v%d, 3, v%d' % (lg, vLANE))


def perm_lg(dst, t):
    a('v_bfe_u32 v%d, v%d, 3, 1' % (dst, vLANE))
    a('v_bfe_u32 v%d, v%d, 4, 1' % (t, vLANE))
    a('v_lshl_add_u32 v%d, v%d, 3, v%d' % (dst, t, dst))
    a('v_bfe_u32 v%d, v%d, 5, 1' % (t, vLANE))
    a('v_lshl_add_u32 v%d, v%d, 1, v%d' % (dst, t, dst))


def fstore(text):
    Ls = a.newlabel('slow')
    Lb = a.newlabel('back')
    a('s_cmp_eq_u32 s%d, 0' % sFAST)
    a.branch('s_cbranch_scc1', Ls)
    a(text)
    a.label(Lb)
    ool.append((Ls, text + ' sc1', Lb))


def tagcheck(words, vT, d, d2, full=()):
    words = list(words)
    if len(words) % 2:
        words.append(words[-1])
    first = True
    pend = []
    for i in range(0, len(words), 2):
        dst = d if first else d2 + (len(pend) % 2)
        a('v_bitop3_b32 v%d, v%d, v%d, v%d bitop3:0x7e' % (dst, words[i], words[i + 1], vT))
        if not first:
            pend.append(dst)
            if len(pend) == 2:
                a('v_or3_b32 v%d, v%d, v%d, v%d' % (d, d, pend[0], pend[1]))
                pend = []
        first = False
    if pend:
        a('v_or_b32 v%d, v%d, v%d' % (d, d, pend[0]))
    full = list(full)
    assert len(full) % 2 == 0
    if not full:
        a('v_cmp_ne_u32_sdwa vcc, v%d, 0 src0_sel:BYTE_0 src1_sel:DWORD' % d)
        return
    for i in range(0, len(full), 2):
        a('v_bitop3_b32 v%d, v%d, v%d, s%d bitop3:0x7e' % (d2 + i // 2, full[i], full[i + 1], sEP))
    if len(full) == 4:
        a('v_or_b32 v%d, v%d, v%d' % (d2, d2, d2 + 1))
    a('v_or_b32_sdwa v%d, v%d, v%d dst_sel:DWORD dst_unused:UNUSED_PAD src0_sel:BYTE_0 src1_sel:DWORD' % (d, d, d2))
    a('v_cmp_ne_u32 vcc, 0, v%d' % d)


retry = []


def retry_branch(L, sleep=0):
    R = a.newlabel('retry')
    a.branch('s_cbranch_vccnz', R)
    retry.append((R, L, sleep))


def spin_tail(L, sleep=0):
    if sleep:
        a('s_sleep %d' % sleep)
    a('s_add_u32 s%d, s%d, 1' % (sCNT, sCNT))
    a('s_cmp_lt_u32 s%d, %d' % (sCNT, LIMIT))
    a.branch('s_cbranch_scc1', L)
    a.branch('s_branch', 'L_end')


def poll(loads, words, vT, d, d2, full=(), sleep=0, bump=()):
    L = a.newlabel('poll')
    D = a.newlabel('polld')
    a('s_mov_b32 s%d, 0' % sCNT)
    a.label(L)
    loads()
    for r_ in bump:
        a('v_or_b32 v%d, 0x%x, v%d' % (r_, COPY2, r_))
    a('s_waitcnt vmcnt(0)')
    tagcheck(words, vT, d, d2, full)
    retry_branch(L, sleep)


PIPE = int(OPT.get('pipe', 0))


def poll2(loads, check, n, first):
    L = a.newlabel('pp')
    D = a.newlabel('ppd')
    D0 = a.newlabel('ppd0')
    a('s_mov_b32 s%d, 0' % sCNT)
    if not PIPE:
        a.label(L)
        loads(0)
        a('s_waitcnt vmcnt(0)')
        check(0)
        retry_branch(L)
        first(0)
        return
    a('s_waitcnt vmcnt(0)')
    loads(0)
    a.label(L)
    loads(1)
    a('s_waitcnt vmcnt(%d)' % n)
    check(0)
    a.branch('s_cbranch_vccz', D0)
    a('s_add_u32 s%d, s%d, 1' % (sCNT, sCNT))
    a('s_cmp_ge_u32 s%d, %d' % (sCNT, LIMIT))
    a.branch('s_cbranch_scc1', 'L_end')
    loads(0)
    a('s_waitcnt vmcnt(%d)' % n)
    check(1)
    a.branch('s_cbranch_vccnz', L)
    first(1)
    a.branch('s_branch', D)
    a.label(D0)
    first(0)
    a.label(D)


def sentinel(base, n, ad, t):
    L = a.newlabel('sent')
    D = a.newlabel('sentd')
    a('s_lshl_b32 s%d, s%d, 7' % (sT0, sG))
    a('s_add_u32 s%d, s%d, 0x%x' % (sT0, sT0, base))
    a('v_min_u32 v%d, %d, v%d' % (ad, n - 1, vLANE))
    a('v_lshl_add_u32 v%d, v%d, 2, s%d' % (ad, ad, sT0))
    a('s_cmp_eq_u32 s%d, 0' % sFAST)
    a.branch('s_cbranch_scc1', D)
    a('s_mov_b32 s%d, 0' % sCNT)
    a.label(L)
    a('global_load_dword v%d, v%d, %s sc1' % (t, ad, sp(sB)))
    a('s_waitcnt vmcnt(0)')
    a('v_cmp_ne_u32 vcc, s%d, v%d' % (sEP, t))
    retry_branch(L)
    a.label(D)


def rscatter4(r, extra_ror4=False):
    a('v_permlane32_swap_b32 v%d, v%d' % (r, r + 2))
    a('v_permlane32_swap_b32 v%d, v%d' % (r + 1, r + 3))
    a('v_add_f32 v%d, v%d, v%d' % (r, r, r + 2))
    a('v_add_f32 v%d, v%d, v%d' % (r + 1, r + 1, r + 3))
    a('v_permlane16_swap_b32 v%d, v%d' % (r, r + 1))
    a('v_add_f32 v%d, v%d, v%d' % (r, r, r + 1))
    a('v_add_f32_dpp v%d, v%d, v%d row_ror:8 row_mask:0xf bank_mask:0xf' % (r, r, r))
    if extra_ror4:
        a('v_add_f32_dpp v%d, v%d, v%d row_ror:4 row_mask:0xf bank_mask:0xf' % (r, r, r))


def allred8(op, regs):
    for ctl in ('quad_perm:[1,0,3,2]', 'quad_perm:[2,3,0,1]', 'row_half_mirror'):
        for r in regs:
            a('%s_dpp v%d, v%d, v%d %s row_mask:0xf bank_mask:0xf' % (op, r, r, r, ctl))


def img_masks(vMA, tmp):
    return
    a('v_and_b32 v%d, 8, v%d' % (tmp, vLANE))
    a('v_cmp_eq_u32 vcc, 0, v%d' % tmp)
    a('v_mov_b32 v%d, 0xffff' % tmp)
    a('v_cndmask_b32 v%d, 0, v%d, vcc' % (vMA, tmp))
    a('v_cndmask_b32 v%d, v%d, 0, vcc' % (vMA + 1, tmp))


def img_addr(dst, rr, tmp, base):
    a('v_and_b32 v%d, 7, v%d' % (tmp, rr))
    a('v_mul_u32_u24 v%d, %d, v%d' % (dst, RS, tmp))
    a('v_and_b32 v%d, 0xfffffff8, v%d' % (tmp, rr))
    a('v_add_u32 v%d, v%d, v%d' % (dst, dst, tmp))
    a('v_and_b32 v%d, 8, v%d' % (tmp, vLANE))
    a('v_lshrrev_b32 v%d, 3, v%d' % (tmp, tmp))
    a('v_mul_u32_u24 v%d, %d, v%d' % (tmp, HSZ + 4, tmp))
    a('v_add_u32 v%d, v%d, v%d' % (dst, dst, tmp))
    if base:
        a('v_add_u32 v%d, %d, v%d' % (dst, base, dst))


def img_write(pk, vMA, pair, addr):
    a('ds_write_b16 v%d, v%d' % (addr, pk))


def addtag(regs, vT):
    for r in regs:
        a('v_and_or_b32 v%d, v%d, s%d, v%d' % (r, r, sMASK, vT))


vIRD, vCS, vCS1, vB1, vPUB = 122, 123, 124, 125, 126
WROLE, WWQ = 32, 80


def zero4(acc):
    for k in range(4):
        a('v_mov_b32 v%d, 0' % (acc + k))


def gemv(nP, wbase, imgoff, tmp, acc, rdaddr):
    for i in range(nP):
        a('ds_read_b128 %s, v%d offset:%d' % (vr(tmp + 4 * i, 4), rdaddr, imgoff + 16 * i))
    for i in range(nP):
        a('s_waitcnt lgkmcnt(%d)' % (nP - 1 - i))
        a('v_smfmac_f32_16x16x64_bf16 %s, %s, %s, v%d' % (vr(acc, 4), vr(tmp + 4 * i, 4), vr(wbase + 8 * i, 8), vIDX))


def colsum(nP, wbase, A, acc):
    zero4(acc)
    for k in range(4):
        a('v_and_b32 v%d, 0x3f80, v%d' % (A + k, vMLO + k % 2))
    for i in range(nP):
        a('v_smfmac_f32_16x16x64_bf16 %s, %s, %s, v%d' % (vr(acc, 4), vr(A, 4), vr(wbase + 8 * i, 8), vIDX))


def wloads(nP, wbase, ad, ptr, rowbytes, lo=0, hi=None):
    for i in range(lo, 2 * nP if hi is None else hi):
        a('global_load_dwordx4 %s, v%d, %s' % (vr(wbase + 4 * i, 4), ad, sp(ptr)) + NT)
        if i < 2 * nP - 1:
            a('v_add_u32 v%d, %d, v%d' % (ad, rowbytes * (4 if i % 2 == 0 else 12), ad))


def classadd(acc, out):
    a('v_permlane32_swap_b32 v%d, v%d' % (acc, acc + 2))
    a('v_permlane32_swap_b32 v%d, v%d' % (acc + 1, acc + 3))
    a('v_add_f32_dpp v%d, v%d, v%d row_ror:8 row_mask:0xf bank_mask:0xf' % (out, acc + 2, acc))
    a('v_add_f32_dpp v%d, v%d, v%d row_ror:8 row_mask:0xf bank_mask:0xf' % (out + 1, acc + 3, acc + 1))


def pub2(addr, data, fast, vT, base=None):
    addtag([data, data + 1], vT)
    a('s_mov_b64 exec, %s' % sp(sEXB))
    t = 'global_store_dwordx2 v%d, %s, %s' % (addr, vr(data, 2), sp(sB if base is None else base))
    if fast:
        fstore(t)
    else:
        a(t + ' sc1')
    a('s_mov_b64 exec, -1')


def stats_pre(addr_fn, nrd):
    ad, pa, t, vT, x = 5, 4, 8, 9, 10
    a('v_and_b32 v%d, 7, v%d' % (t, vLANE))
    a('v_lshrrev_b32 v%d, 3, v%d' % (ad, vLANE))
    a('v_mul_u32_u24 v%d, %d, v%d' % (ad, RS, ad))
    a('v_lshl_add_u32 v%d, v%d, 3, v%d' % (ad, t, ad))
    addr_fn()
    a('v_lshrrev_b32 v%d, 5, v%d' % (t, vLANE))
    a('v_lshl_add_u32 v%d, v%d, 3, s%d' % (pa, t, sT0))
    a('v_mov_b32 v%d, s%d' % (vT, sTAG))
    for i in range(nrd):
        a('v_mov_b32 v%d, 0' % (x + i))
    a('v_mov_b32 v17, s%d' % sEP)


def stats_wave(imgbase, nrd):
    ad, pa, s1, s2, t, vT, x = 5, 4, 16, 7, 8, 9, 10
    for i in range(nrd):
        a('ds_read_u16_d16_hi v%d, v%d offset:%d' % (x + i, ad, imgbase + 64 * i))
    a('s_waitcnt lgkmcnt(%d)' % (nrd - 2))
    a('v_mul_f32 v%d, v%d, v%d' % (s2, x, x))
    a('v_add_f32 v%d, v%d, v%d' % (s1, x, x + 1))
    a('v_fmac_f32 v%d, v%d, v%d' % (s2, x + 1, x + 1))
    for i in range(2, nrd):
        a('s_waitcnt lgkmcnt(%d)' % (nrd - 1 - i))
        a('v_add_f32 v%d, v%d, v%d' % (s1, s1, x + i))
        a('v_fmac_f32 v%d, v%d, v%d' % (s2, x + i, x + i))
    a('v_permlane32_swap_b32 v%d, v%d' % (s1, s2))
    a('v_add_f32 v%d, v%d, v%d' % (s1, s1, s2))
    allred8('v_add_f32', [s1])
    a('v_add_f32_dpp v%d, v%d, v%d row_ror:8 row_mask:0xf bank_mask:0xf' % (s1, s1, s1))
    a('v_add_f32_dpp v%d, v%d, v%d row_bcast:15 row_mask:0xa bank_mask:0xf' % (s1, s1, s1))
    a('s_mov_b32 exec_lo, 0x10000')
    a('s_mov_b32 exec_hi, 0x10000')
    addtag([s1], vT)
    fstore('global_store_dwordx2 v%d, %s, %s' % (pa, vr(s1, 2), sp(sB)))
    a('s_mov_b64 exec, -1')


def ln_from_stats(s1, s2):
    a('v_mul_f32 v%d, 0x%08x, v%d' % (s1, f2u(1.0 / 640), s1))
    a('v_mul_f32 v%d, 0x%08x, v%d' % (s2, f2u(1.0 / 640), s2))
    a('v_fma_f32 v%d, -v%d, v%d, v%d' % (s2, s1, s1, s2))
    a('v_max_f32 v%d, 0, v%d' % (s2, s2))
    a('v_add_f32 v%d, 0x%08x, v%d' % (s2, f2u(1e-5), s2))
    a('v_rsq_f32 v%d, v%d' % (s2, s2))


def resid_round(y, xprev, pk):
    a('v_cvt_pk_bf16_f32 v%d, v%d, v%d' % (y, y, y))
    a('v_and_b32 v%d, s%d, v%d' % (y, sHI, y))
    a('v_add_f32 v%d, v%d, v%d' % (y, y, xprev))
    a('v_cvt_pk_bf16_f32 v%d, v%d, v%d' % (pk, y, y))


def sent_store(off_sreg, base, ad, dv):
    a('s_lshl_b32 s%d, s%d, 7' % (sT2, sG))
    a('s_lshl_b32 s%d, s%d, 2' % (sT3, off_sreg))
    a('s_add_u32 s%d, s%d, s%d' % (sT2, sT2, sT3))
    a('s_add_u32 s%d, s%d, 0x%x' % (sT2, sT2, base))
    a('v_mov_b32 v%d, s%d' % (ad, sT2))
    a('v_mov_b32 v%d, s%d' % (dv, sEP))


def sent_fire(ad, dv):
    a('s_mov_b64 exec, 1')
    a('global_store_dword v%d, v%d, %s' % (ad, dv, sp(sB)))
    a('s_mov_b64 exec, -1')


def prefetch_own(off):
    a('s_lshl_b32 s%d, s%d, 3' % (sT0, sH))
    a('s_add_u32 s%d, s%d, s%d' % (sT0, sT0, sJ))
    a('s_mul_i32 s%d, s%d, %d' % (sT0, sT0, RECS))
    a('s_add_u32 s%d, s%d, 0x%x' % (sT0, sT0, off))
    a('v_min_u32 v5, 47, v0')
    a('v_lshl_add_u32 v5, v5, 4, s%d' % sT0)
    a('v_add_u32 v6, 0x%x, v5' % AT)
    a('s_lshl_b32 s%d, s%d, 7' % (sT0, sH))
    a('s_add_u32 s%d, s%d, 0x%x' % (sT0, sT0, ML + off))
    a('s_lshl_b32 s%d, s%d, 7' % (sT1, sG))
    a('s_add_u32 s%d, s%d, 0x%x' % (sT2, sT1, SN1 + off))
    a('s_add_u32 s%d, s%d, 0x%x' % (sT3, sT1, SN2 + off))
    a('s_mul_i32 s%d, s%d, %d' % (sT1, sG, 3 * 2048))
    a('s_add_u32 s%d, s%d, 0x%x' % (sT1, sT1, HP + off))
    a('v_min_u32 v7, 47, v0')
    a('v_lshl_add_u32 v7, v7, 7, s%d' % sT1)
    a('s_mul_i32 s%d, s%d, 384' % (sT1, sG))
    a('s_add_u32 s%d, s%d, 0x%x' % (sT1, sT1, HS + off))
    a('v_min_u32 v8, 2, v0')
    a('v_lshl_add_u32 v8, v8, 7, s%d' % sT1)
    a('v_writelane_b32 v8, s%d, 3' % sT0)
    a('v_writelane_b32 v8, s%d, 4' % sT2)
    a('v_writelane_b32 v8, s%d, 5' % sT3)
    a('s_add_u32 s%d, s%d, 0x%x' % (sT0, sT0, QS - ML))
    a('v_writelane_b32 v8, s%d, 6' % sT0)
    if off:
        a('global_load_dwordx4 v[64:67], v5, %s sc1' % sp(sB))
    a('global_load_dwordx4 v[68:71], v6, %s sc1' % sp(sB))
    a('global_load_dword v72, v7, %s sc1' % sp(sB))
    a('global_load_dword v73, v8, %s sc1' % sp(sB))


hdr = open('cdna_kernels/%s.s.ref' % NAME).read().split('; Override launch')[0]
a.raw(hdr.rstrip('\n'))
a.raw('; @launch grid=(256,1,1) block=(1024,1,1) lds=%d' % LDS_BYTES)
a.raw('.amdgcn_target "amdgcn-amd-amdhsa--gfx950"')
a.raw('.text')
a.raw('.globl %s_kernel' % NAME)
a.raw('.p2align 8')
a.raw('.type %s_kernel,@function' % NAME)
a.raw('%s_kernel:' % NAME)

a('s_cmp_ge_u32 s2, 256')
a.branch('s_cbranch_scc1', 'L_exit')
a('s_load_dwordx16 s[4:19], s[0:1], 0')
a('s_load_dwordx8 s[20:27], s[0:1], 64')
if PROBE is not None:
    a('s_memrealtime s[96:97]')
if DEBUG:
    a('s_memrealtime s[96:97]')
    a('s_memtime s[100:101]')
a('v_lshrrev_b32 v5, 6, v0')
a('v_and_b32 v0, 63, v0')
a('v_readfirstlane_b32 s%d, v5' % sWV)
a('s_and_b32 s%d, s2, 7' % sG)
a('s_lshr_b32 s%d, s2, 3' % sR_)
a('s_lshr_b32 s%d, s%d, 3' % (sT0, sR_))
a('s_lshl_b32 s%d, s%d, 2' % (sH, sG))
a('s_add_u32 s%d, s%d, s%d' % (sH, sH, sT0))
a('s_and_b32 s%d, s%d, 7' % (sJ, sR_))


def rest_setup():
    Lrd = a.newlabel('roledone')
    a('s_add_u32 s%d, s%d, 0x%x' % (sT0, sWS, EPOCH))
    a('s_addc_u32 s%d, s%d, 0' % (sT1, sWS + 1))
    a('s_load_dword s%d, %s, 0' % (sEP, sp(sT0)))
    a('s_mov_b64 %s, %s' % (sp(sB), sp(sWS)))
    a('s_mov_b32 s%d, 0xffffff00' % sMASK)
    a('s_mov_b32 s%d, 0xffff0000' % sHI)
    a('s_mov_b32 s%d, 0x00ff00ff' % sEXA)
    a('s_mov_b32 s%d, 0xff00ff00' % (sEXA + 1))
    a('s_mov_b32 s%d, 0x00ff00ff' % sEXB)
    a('s_mov_b32 s%d, 0x00ff00ff' % (sEXB + 1))
    a('s_mov_b32 s%d, 0' % sLAY)
    a('s_mov_b32 s%d, 0' % sFAST)
    a('s_mov_b32 s%d, %d' % (sRED, RED))
    a('s_cmp_ge_u32 s%d, 10' % sR_)
    a('s_cselect_b32 s%d, 1, 0' % sRA)
    a('s_mul_i32 s%d, s%d, 10' % (sT2, sRA))
    a('s_sub_u32 s%d, s%d, s%d' % (sRB, sR_, sT2))
    a('s_mov_b32 s%d, 0' % sROLE)
    a('s_cmp_lt_u32 s%d, 20' % sR_)
    a.branch('s_cbranch_scc1', Lrd)
    a('s_cmp_ge_u32 s%d, 26' % sR_)
    a('s_cselect_b32 s%d, 2, 1' % sROLE)
    a('s_cselect_b32 s%d, 26, 20' % sT2)
    a('s_sub_u32 s%d, s%d, s%d' % (sT2, sR_, sT2))
    a('s_and_b32 s%d, s%d, 1' % (sRB, sT2))
    a('s_lshr_b32 s%d, s%d, 1' % (sT2, sT2))
    a('s_mul_i32 s%d, s%d, 3' % (sRA, sG))
    a('s_add_u32 s%d, s%d, s%d' % (sRA, sRA, sT2))
    a.label(Lrd)
    a('v_and_b32 v4, 3, v0')
    a('s_mov_b32 s%d, 0x55555555' % sT2)
    a('v_mul_lo_u32 v%d, v4, s%d' % (vIDX, sT2))
    a('v_and_b32 v4, 4, v0')
    a('v_cmp_eq_u32 vcc, 0, v4')
    a('v_mov_b32 v4, 0xffff')
    a('v_cndmask_b32 v%d, 0, v4, vcc' % vMLO)
    a('v_cndmask_b32 v%d, v4, 0, vcc' % vMHI)


a('s_cmp_ge_u32 s%d, 8' % sWV)
a.branch('s_cbranch_scc1', 'L_kv')


sH1D, sH1M, sH1R = 44, 45, 51


def h1_scalars():
    a('s_cmp_ge_u32 s%d, 6' % sU)
    a('s_cselect_b32 s%d, 1, 0' % sT0)
    a('s_mul_i32 s%d, s%d, 6' % (sT1, sT0))
    a('s_sub_u32 s%d, s%d, s%d' % (sT1, sU, sT1))
    a('s_lshl_b32 s%d, s%d, 2' % (sT2, sG))
    a('s_and_b32 s%d, s%d, 1' % (sT3, sRA))
    a('s_lshl_b32 s%d, s%d, 1' % (sT3, sT3))
    a('s_add_u32 s%d, s%d, s%d' % (sT2, sT2, sT3))
    a('s_add_u32 s%d, s%d, s%d' % (sT2, sT2, sT0))
    a('s_mul_i32 s%d, s%d, %d' % (sH1D, sT2, 8 * RECS))
    a('s_lshl_b32 s%d, s%d, 7' % (sT3, sT1))
    a('s_add_u32 s%d, s%d, s%d' % (sH1D, sH1D, sT3))
    a('s_add_u32 s%d, s%d, 0x%x' % (sH1D, sH1D, AT))
    a('s_lshl_b32 s%d, s%d, 7' % (sH1M, sT2))
    a('s_add_u32 s%d, s%d, 0x%x' % (sH1M, sH1M, ML))
    a('s_mul_i32 s%d, s%d, 192' % (sH1R, sT0))
    a('s_lshl_b32 s%d, s%d, 5' % (sT3, sT1))
    a('s_add_u32 s%d, s%d, s%d' % (sH1R, sH1R, sT3))


def h1_gather():
    vT, vMA, aD, aA, aC, aI = 5, 6, 8, 9, 10, 11
    d, d2, t = 24, 25, 27
    wA, wC = 4, 10
    SD, W = 12, 28
    lane_fields(l8=d, lg=d2)
    a('v_lshl_add_u32 v%d, v%d, 4, s%d' % (aA, d, sH1M))
    a('v_lshl_add_u32 v%d, v%d, 4, s%d' % (aC, d2, sH1M))

    def mloads():
        a('global_load_dwordx2 v[18:19], v%d, %s sc1' % (aA, sp(sB)))
        a('global_load_dwordx2 v[20:21], v%d, %s sc1' % (aC, sp(sB)))

    def loads():
        a('global_load_dwordx2 %s, v%d, %s offset:8 sc1' % (vr(SD + 4, 2), aA, sp(sB)))
        a('global_load_dwordx4 %s, v%d, %s sc1' % (vr(SD, 4), aD, sp(sB)))
    mloads()
    a('v_mul_u32_u24 v%d, %d, v%d' % (aD, RECS, d2))
    a('v_lshl_add_u32 v%d, v%d, 4, v%d' % (aD, d, aD))
    a('v_add_u32 v%d, s%d, v%d' % (aD, sH1D, aD))
    a('v_mov_b32 v%d, s%d' % (vT, sTAG))
    img_masks(vMA, t)
    a('v_lshrrev_b32 v%d, 4, v%d' % (d2, vLANE))
    a('v_lshl_add_u32 v%d, v%d, 2, v%d' % (d2, d, d2))
    a('v_add_u32 v%d, s%d, v%d' % (d2, sH1R, d2))
    img_addr(aI, d2, t, IMGR)
    L1 = a.newlabel('h1m')
    L1w = a.newlabel('h1mw')
    L1d = a.newlabel('h1md')
    a('s_mov_b32 s%d, 0' % sCNT)
    a.branch('s_branch', L1w)
    a.label(L1)
    mloads()
    a.label(L1w)
    a('s_waitcnt vmcnt(0)')
    a('v_bitop3_b32 v%d, v19, v21, s%d bitop3:0x7e' % (d, sEP))
    a('v_cmp_ne_u32 vcc, 0, v%d' % d)
    retry_branch(L1)
    loads()
    a('v_mov_b32 v%d, v18' % t)
    allred8('v_max_f32', [t])
    a('v_sub_f32 v18, v18, v%d' % t)
    a('v_sub_f32 v20, v20, v%d' % t)
    a('v_exp_f32 v%d, v18' % wA)
    a('v_exp_f32 v%d, v20' % wC)
    L2 = a.newlabel('h1d')
    L2w = a.newlabel('h1dw')
    L2d = a.newlabel('h1dd')
    a.branch('s_branch', L2w)
    a.label(L2)
    loads()
    a.label(L2w)
    a('s_waitcnt vmcnt(0)')
    tagcheck(list(range(SD, SD + 4)), vT, d, d2, full=[SD + 5, SD + 5])
    for i in range(4):
        a('v_mul_f32 v%d, v%d, v%d' % (W + i, SD + i, wC))
    a('v_mul_f32 v%d, v%d, v%d' % (t, SD + 4, wA))
    retry_branch(L2)
    stamp(4)
    r = W
    dp = lambda c: 'v_add_f32_dpp v%d, v%d, v%d %s row_mask:0xf bank_mask:0xf' % (t, t, t, c)
    a('v_permlane32_swap_b32 v%d, v%d' % (r, r + 2))
    a('v_permlane32_swap_b32 v%d, v%d' % (r + 1, r + 3))
    a(dp('quad_perm:[1,0,3,2]'))
    a('v_add_f32 v%d, v%d, v%d' % (r, r, r + 2))
    a('v_add_f32 v%d, v%d, v%d' % (r + 1, r + 1, r + 3))
    a(dp('quad_perm:[2,3,0,1]'))
    a('v_permlane16_swap_b32 v%d, v%d' % (r, r + 1))
    a('v_add_f32 v%d, v%d, v%d' % (r, r, r + 1))
    a(dp('row_half_mirror'))
    a('v_rcp_f32 v%d, v%d' % (t, t))
    a('v_add_f32_dpp v%d, v%d, v%d row_ror:8 row_mask:0xf bank_mask:0xf' % (r, r, r))
    a('v_mul_f32 v%d, v%d, v%d' % (r, r, t))
    a('v_cvt_pk_bf16_f32 v%d, v%d, v%d' % (r, r, r))
    img_write(r, vMA, r + 2, aI)
    a('s_waitcnt lgkmcnt(0)')


def h2_gather():
    vT, vMA, aD, aD2, aI, aX, xp = 5, 6, 8, 9, 10, 11, 22
    D, E, d, d2, t = 12, 16, 24, 25, 27
    a('v_mov_b32 v%d, s%d' % (vT, sTAG))
    img_masks(vMA, t)
    lane_fields(l8=d, lg=d2)
    a('s_mul_i32 s%d, s%d, 1280' % (sT0, sRB))
    a('s_lshl_b32 s%d, s%d, 7' % (sT1, sU))
    a('s_add_u32 s%d, s%d, s%d' % (sT0, sT0, sT1))
    a('s_add_u32 s%d, s%d, 0x%x' % (sT2, sT0, YY))
    a('v_mul_u32_u24 v%d, %d, v%d' % (aD, ROWS, d2))
    a('v_lshl_add_u32 v%d, v%d, 4, v%d' % (aD, d, aD))
    a('v_add_u32 v%d, s%d, v%d' % (aD, sT2, aD))
    a('v_add_u32 v%d, %d, v%d' % (aD2, 8 * ROWS, aD))
    a('v_lshrrev_b32 v%d, 4, v%d' % (d2, vLANE))
    a('v_lshl_add_u32 v%d, v%d, 2, v%d' % (d2, d, d2))
    a('s_lshl_b32 s%d, s%d, 5' % (sT1, sU))
    a('v_add_u32 v%d, s%d, v%d' % (d2, sT1, d2))
    img_addr(aI, d2, t, IMGR)
    a('s_mul_i32 s%d, s%d, 320' % (sT1, sRB))
    a('v_add_u32 v%d, s%d, v%d' % (d2, sT1, d2))
    Lk1 = a.newlabel('h2k1')
    Lj = a.newlabel('h2j')
    a('s_cmp_lg_u32 s%d, 0' % sLAY)
    a.branch('s_cbranch_scc1', Lk1)
    a('v_lshlrev_b32 v%d, 1, v%d' % (aX, d2))
    a('global_load_ushort v%d, v%d, %s' % (xp, aX, sp(sX)))
    a('s_waitcnt vmcnt(0)')
    a('v_lshlrev_b32 v%d, 16, v%d' % (xp, xp))
    a.branch('s_branch', Lj)
    a.label(Lk1)
    a('v_lshlrev_b32 v%d, 2, v%d' % (aX, d2))
    a('v_add_u32 v%d, 0x%x, v%d' % (aX, X2, aX))
    poll(lambda: a('global_load_dword v%d, v%d, %s sc1' % (xp, aX, sp(sWS))), [xp], vT, d, t)
    a('v_and_b32 v%d, s%d, v%d' % (xp, sHI, xp))
    a.label(Lj)
    a('v_lshlrev_b32 v%d, 2, v%d' % (aX, d2))
    a('v_add_u32 v%d, 0x%x, v%d' % (aX, ZZ + 24 * ROWS, aX))
    if SBAR & 1:
        a('s_barrier')
        stamp(6)
    elif SENT & 1:
        sentinel(SN1, 20, d, d2)
        stamp(6)

    def loads():
        a('global_load_dwordx4 %s, v%d, %s sc1' % (vr(D, 4), aD, sp(sB)))
        a('global_load_dwordx4 %s, v%d, %s sc1' % (vr(E, 4), aD2, sp(sB)))
    poll(loads, list(range(D, D + 8)), vT, d, d2, bump=(aD, aD2) if DUP & 1 else ())
    stamp(4)
    for k in range(4):
        a('v_add_f32 v%d, v%d, v%d' % (D + k, D + k, E + k))
    rscatter4(D)
    resid_round(D, xp, D)
    img_write(D, vMA, E, aI)
    Ls = a.newlabel('h2s')
    a('s_cmp_lg_u32 s%d, 0' % sRA)
    a.branch('s_cbranch_scc1', Ls)
    a('v_and_or_b32 v%d, v%d, s%d, v%d' % (D, D, sHI, vT))
    a('s_mov_b64 exec, %s' % sp(sEXB))
    a('global_store_dword v%d, v%d, %s sc1' % (aX, D, sp(sB)))
    a('s_mov_b64 exec, -1')
    a.label(Ls)
    a('s_waitcnt lgkmcnt(0)')


def dump_stamps():
    if not DEBUG:
        return
    a('s_memrealtime s[98:99]')
    a('s_memtime s[60:61]')
    a('s_lshl_b32 s%d, s2, 4' % sT0)
    a('s_add_u32 s%d, s%d, s%d' % (sT0, sT0, sWV))
    a('s_lshl_b32 s%d, s%d, 8' % (sT0, sT0))
    a('s_add_u32 s%d, s%d, 0x%x' % (sT0, sT0, STAMPS))
    a('s_waitcnt lgkmcnt(0)')
    Lk = a.newlabel('dbgk')
    Lp = a.newlabel('dbgp')
    a('v_mov_b32 v5, 0x%x' % EPOCH)
    a('s_mov_b32 s%d, 0' % sCNT)
    a.label(Lp)
    a('s_sleep 100')
    a('global_load_dword v6, v5, %s sc1' % sp(sWS))
    a('s_waitcnt vmcnt(0)')
    a('s_add_u32 s%d, s%d, 1' % (sCNT, sCNT))
    a('s_cmp_gt_u32 s%d, 20000' % sCNT)
    a.branch('s_cbranch_scc1', Lk)
    a('v_cmp_ne_u32 vcc, s%d, v6' % sEP)
    a.branch('s_cbranch_vccnz', Lp)
    a.label(Lk)
    a('v_mov_b32 v5, s%d' % sT0)
    a('s_mov_b64 exec, 1')
    for i in range(18):
        a('v_mov_b32 v6, s%d' % (64 + 2 * i))
        a('v_mov_b32 v7, s%d' % (65 + 2 * i))
        a('global_store_dwordx2 v5, v[6:7], %s offset:%d' % (sp(sWS), 8 * i))
    a('v_mov_b32 v6, s62')
    a('v_mov_b32 v7, s63')
    a('global_store_dwordx2 v5, v[6:7], %s offset:%d' % (sp(sWS), 8 * 19))
    a('s_sub_u32 s60, s60, s100')
    a('v_mov_b32 v6, s60')
    a('v_mov_b32 v7, 0')
    a('global_store_dwordx2 v5, v[6:7], %s offset:%d' % (sp(sWS), 8 * 18))
    if DBGOUT:
        Lq = a.newlabel('dbgq')
        a('s_cmp_lg_u32 s%d, 0' % sWV)
        a.branch('s_cbranch_scc1', Lq)
        a('v_mov_b32 v5, 0')
        a('s_not_b32 s%d, s96' % sT0)
        lst = [sT0, 98, 96] + [64 + 2 * st for st in [8 + 0, 8 + 1, 8 + 2, 8 + 3, 8 + 4, 8 + 6, 8 + 7, 0, 2, 3, 5, 6, 7]]
        for (i, sr) in enumerate(lst):
            a('v_mov_b32 v6, s%d' % sr)
            a('global_atomic_umax v5, v6, s[24:25] offset:%d' % (4 * i))
        a.label(Lq)
    a('s_mov_b64 exec, -1')


def next_layer():
    if DEBUG:
        for i in range(8):
            a('s_mov_b64 s[%d:%d], s[%d:%d]' % (80 + 2 * i, 81 + 2 * i, 64 + 2 * i, 65 + 2 * i))
    a('s_add_u32 s%d, s%d, 0x%x' % (sB, sB, LB))
    a('s_addc_u32 s%d, s%d, 0' % (sB + 1, sB + 1))
    a('s_mov_b32 s%d, 1' % sLAY)
    a('s_mov_b32 s%d, %d' % (sRED, RED + 16384))


def tag_ready():
    a('s_waitcnt lgkmcnt(0)')
    a('s_add_u32 s%d, s%d, 1' % (sEP, sEP))
    a('s_and_b32 s%d, s%d, 0xff' % (sTAG, sEP))


def read_fast(t):
    a('v_mov_b32 v%d, %d' % (t, FLG + 4))
    a('ds_read_b32 v%d, v%d' % (t, t))
    a('s_waitcnt lgkmcnt(0)')
    a('v_readfirstlane_b32 s%d, v%d' % (sFAST, t))


if DEBUG:
    for i in range(16):
        a('s_mov_b64 s[%d:%d], 0' % (64 + 2 * i, 65 + 2 * i))
a('s_setprio 3')
lane_fields(l8=5)
perm_lg(6, 7)
a('s_mul_i32 s%d, s%d, 160' % (sT1, sJ))
a('v_min_u32 v8, 39, v0')
a('v_lshl_add_u32 v8, v8, 2, s%d' % sT1)
a('s_mul_i32 s%d, s%d, %d' % (sT0, sJ, 80 * 12288))
a('s_mul_i32 s%d, s%d, 384' % (sT1, sH))
a('s_add_u32 s%d, s%d, s%d' % (sT0, sT0, sT1))
a('s_sub_u32 s%d, s%d, 5' % (sT1, sWV))
a('s_lshl_b32 s%d, s%d, 7' % (sT1, sT1))
a('s_add_u32 s%d, s%d, s%d' % (sT0, sT0, sT1))
a('v_mul_u32_u24 v7, 12288, v6')
a('v_lshl_add_u32 v7, v5, 4, v7')
a('v_add_u32 v7, s%d, v7' % sT0)
a('v_lshlrev_b32 v9, 2, v0')
a('s_waitcnt lgkmcnt(0)')
a('s_cmp_lt_u32 s%d, 5' % sWV)
a.branch('s_cbranch_scc1', 'L_w_issued')
a('global_load_dword v12, v8, %s' % sp(sX))
for i in range(5):
    a('global_load_dword v%d, v9, %s offset:%d' % (22 + i, sp(sX), 256 * i))
wloads(5, WWQ, 7, sWQ, 12288)
a.label('L_w_issued')
if B0:
    a('s_barrier')
rest_setup()
a('s_add_u32 s%d, s%d, 4' % (sU, sWV))
h1_scalars()
a('s_mul_i32 s%d, s%d, 800' % (sT0, sWV))
a('v_min_u32 v9, 49, v0')
a('v_lshl_add_u32 v9, v9, 4, s%d' % sT0)
for k in range(4):
    a('v_mov_b32 v%d, 0' % (16 + k))
a('ds_write_b128 v9, v[16:19] offset:%d' % IMGR)
a('v_and_b32 v9, 15, v0')
a('v_lshlrev_b32 v9, 11, v9')
a('v_mov_b32 v10, -1')
a('ds_write_b32 v9, v10 offset:%d' % (RED + 1024 + 768))
lane_fields(l8=5, lg=6)
a('v_lshrrev_b32 v7, 2, v5')
a('v_mul_u32_u24 v7, %d, v7' % HSZ)
a('v_mul_u32_u24 v8, %d, v6' % RS)
a('v_add_u32 v%d, v7, v8' % vIRD)
a('v_bfe_u32 v7, v0, 4, 1')
a('v_lshlrev_b32 v7, 4, v7')
a('v_lshl_add_u32 v7, v5, 5, v7')
a('v_lshrrev_b32 v8, 5, v0')
a('v_lshl_add_u32 v%d, v8, 3, v7' % vPUB)
a('v_mov_b32 v%d, 0' % vCS)
a('v_mov_b32 v121, 0x%x' % X2)
a('v_mov_b32 v120, 0x%x' % X2)
a('v_mov_b32 v127, 0')
a('v_mov_b32 v%d, 0' % vCS1)
a('v_mov_b32 v%d, 0' % vB1)
a('s_cmp_lt_u32 s%d, 5' % sWV)
a.branch('s_cbranch_scc1', 'L_w_x0ok')
a('v_mul_u32_u24 v8, %d, v6' % RS)
a('v_lshl_add_u32 v8, v5, 3, v8')
a('v_mov_b32 v9, 0')
a('ds_write_b32 v8, v9 offset:%d' % (IMGQ + 80))
a('v_min_u32 v8, 39, v0')
a('v_and_b32 v9, 3, v8')
a('v_mul_u32_u24 v9, %d, v9' % (2 * RS))
a('v_lshrrev_b32 v8, 2, v8')
a('v_lshl_add_u32 v8, v8, 3, v9')
for r_ in (15, 17, 18, 20, 28, 29):
    a('v_mov_b32 v%d, 0' % r_)
a('v_mov_b32 v9, 0x3f803f80')
a('s_waitcnt vmcnt(10)')
for i in range(5):
    a('v_dot2c_f32_bf16 v28, v%d, v9' % (22 + i))
    a('v_dot2c_f32_bf16 v29, v%d, v%d' % (22 + i, 22 + i))
allred8('v_add_f32', [28, 29])
for ctl in ('row_ror:8 row_mask:0xf', 'row_bcast:15 row_mask:0xa', 'row_bcast:31 row_mask:0xc'):
    for r_ in (28, 29):
        a('v_add_f32_dpp v%d, v%d, v%d %s bank_mask:0xf' % (r_, r_, r_, ctl))
ln_from_stats(28, 29)
a('v_readlane_b32 s%d, v28, 63' % sT0)
a('v_readlane_b32 s%d, v29, 63' % sT1)
a('v_lshlrev_b32 v14, 16, v12')
a('v_and_b32 v16, s%d, v12' % sHI)
a('v_subrev_f32 v14, s%d, v14' % sT0)
a('v_subrev_f32 v16, s%d, v16' % sT0)
a('v_mul_f32 v14, s%d, v14' % sT1)
a('v_mul_f32 v16, s%d, v16' % sT1)
a('v_cvt_pk_bf16_f32 v12, v14, v16')
a('v_and_b32 v14, 0xffff, v12')
a('v_lshrrev_b32 v16, 16, v12')
a('v_and_b32 v19, 0xffff, v12')
a('v_lshrrev_b32 v21, 16, v12')
a('ds_write_b64 v8, v[14:15] offset:%d' % (IMGQ))
a('ds_write_b64 v8, v[16:17] offset:%d' % (IMGQ + RS))
a('ds_write_b64 v8, v[18:19] offset:%d' % (IMGQ + HSZ))
a('ds_write_b64 v8, v[20:21] offset:%d' % (IMGQ + HSZ + RS))
a.label('L_w_x0ok')
tag_ready()
if OPT.get('wdelay'):
    a('s_barrier')
if TOUCH >= 2:
    a('s_cmp_lg_u32 s%d, 0' % sWV)
    a.branch('s_cbranch_scc1', 'L_w_notouch')
    a('s_mul_i32 s%d, s%d, 768' % (sT0, sG))
    a('s_mul_i32 s%d, s%d, 1280' % (sT0, sT0))
    a('v_min_u32 v5, 14, v0')
    a('v_lshlrev_b32 v5, 16, v5')
    a('v_add_u32 v5, s%d, v5' % sT0)
    a('v_min_u32 v6, 29, v0')
    a('v_lshlrev_b32 v6, 16, v6')
    a('global_load_dword v64, v5, %s' % sp(sWO) + NT)
    a('global_load_dword v65, v6, %s' % sp(sW1) + NT)
    a('global_load_dword v66, v6, %s' % sp(sW2) + NT)
    a.label('L_w_notouch')
a('s_cmp_lg_u32 s%d, 4' % sWV)
a.branch('s_cbranch_scc1', 'L_w_pre')
a('s_getreg_b32 s%d, hwreg(HW_REG_XCC_ID)' % sT0)
a('s_lshl_b32 s%d, s%d, 8' % (sT1, sG))
a('s_lshl_b32 s%d, s%d, 3' % (sT2, sR_))
a('s_add_u32 s%d, s%d, s%d' % (sT1, sT1, sT2))
a('s_add_u32 s%d, s%d, 0x%x' % (sT1, sT1, XC))
a('v_mov_b32 v5, s%d' % sT1)
a('v_mov_b32 v6, s%d' % sT0)
a('v_mov_b32 v7, s%d' % sEP)
a('s_mov_b64 exec, 1')
a('global_store_dwordx2 v5, v[6:7], %s sc1' % sp(sWS))
a('s_mov_b64 exec, -1')

XvT, XvMA, XaD, XaD2, XaI, XaX, Xxp = 5, 6, 8, 9, 10, 11, 22
XD, XE, Xd, Xd2, Xt, Xcol = 12, 16, 24, 25, 27, 23


def q_stats_addr():
    a('s_lshl_b32 s%d, s%d, 3' % (sT0, sH))
    a('s_add_u32 s%d, s%d, s%d' % (sT0, sT0, sJ))
    a('s_lshl_b32 s%d, s%d, 4' % (sT0, sT0))
    a('s_add_u32 s%d, s%d, %d' % (sT0, sT0, QS))


a.label('L_w_pre')
a('s_cmp_lt_u32 s%d, 5' % sWV)
a.branch('s_cbranch_scc1', 'L_w_noq')
a('v_mov_b32 v5, s%d' % sTAG)
a('s_lshl_b32 s%d, s%d, 3' % (sT0, sH))
a('s_add_u32 s%d, s%d, s%d' % (sT0, sT0, sJ))
a('s_mul_i32 s%d, s%d, %d' % (sT0, sT0, RECS))
a('s_sub_u32 s%d, s%d, 5' % (sT1, sWV))
a('s_lshl_b32 s%d, s%d, 8' % (sT1, sT1))
a('s_add_u32 s%d, s%d, s%d' % (sT0, sT0, sT1))
a('v_add_u32 v6, s%d, v%d' % (sT0, vPUB))
zero4(8)
a('s_waitcnt vmcnt(0)')
a('s_cmp_eq_u32 s%d, 0' % sLAY)
a.branch('s_cbranch_scc1', 'L_w_q_nb')
a('s_barrier')
a.label('L_w_q_nb')
stamp(0)
gemv(5, WWQ, IMGQ, 32, 8, vIRD)
classadd(8, 12)
pub2(6, 12, True, 5)
a('s_cmp_lg_u32 s%d, 0' % sLAY)
a.branch('s_cbranch_scc1', 'L_w_qdone')
a('v_add_u32 v121, 0x%x, v6' % CS)
a('s_lshl_b32 s%d, s%d, 2' % (sT0, sWV))
a('s_add_u32 s%d, s%d, %d' % (sT0, sT0, FLG))
a('v_mov_b32 v9, s%d' % sT0)
a('v_mov_b32 v10, s%d' % sEP)
a('s_waitcnt vmcnt(0)')
a('ds_write_b32 v9, v10')
a.label('L_w_noq')
a('v_mov_b32 v9, %d' % FLG)
a.label('L_w_fspin')
a('s_sleep 2')
a('ds_read_b128 v[12:15], v9 offset:16')
a('s_waitcnt lgkmcnt(0)')
a('v_bitop3_b32 v12, v12, v13, s%d bitop3:0x7e' % sEP)
a('v_bitop3_b32 v14, v14, v15, s%d bitop3:0x7e' % sEP)
a('v_or_b32 v12, v12, v14')
a('v_cmp_ne_u32 vcc, 0, v12')
a.branch('s_cbranch_vccnz', 'L_w_fspin')
a('s_cmp_lg_u32 s%d, 6' % sWV)
a.branch('s_cbranch_scc1', 'L_w_qdone')
a('s_lshl_b32 s%d, s%d, 8' % (sT1, sG))
a('s_add_u32 s%d, s%d, 0x%x' % (sT1, sT1, XC))
a('v_and_b32 v5, 31, v0')
a('v_lshl_add_u32 v5, v5, 3, s%d' % sT1)
a('s_mov_b32 s%d, 0' % sCNT)
a.label('L_w_xc')
a('global_load_dwordx2 v[6:7], v5, %s sc1' % sp(sWS))
a('s_waitcnt vmcnt(0)')
a('v_cmp_ne_u32 vcc, s%d, v7' % sEP)
a.branch('s_cbranch_vccz', 'L_w_xcd')
spin_tail('L_w_xc', 8)
a.label('L_w_xcd')
a('s_getreg_b32 s%d, hwreg(HW_REG_XCC_ID)' % sT0)
a('v_cmp_ne_u32 vcc, s%d, v6' % sT0)
a('s_cmp_eq_u64 vcc, 0')
a('s_cselect_b32 s%d, %d, 0' % (sT0, 0 if OPT.get('nofast') else 1))
a('v_mov_b32 v10, s%d' % sT0)
a('ds_write_b32 v9, v10 offset:4')
a('s_waitcnt lgkmcnt(0)')
a.label('L_w_qdone')
stamp(1)
HvT, HaD, HaS, HaC, HaQ = 5, 6, 7, 8, 9
HD, HSt, HC, Hd, Hd2, Ht = 12, 16, 20, 24, 25, 27
a('s_cmp_ge_u32 s%d, 6' % sWV)
a.branch('s_cbranch_scc1', 'L_w_h5done')
a('v_mov_b32 v%d, s%d' % (HvT, sTAG))
lane_fields(l8=Hd, lg=Hd2)
a('s_mul_i32 s%d, s%d, %d' % (sT0, sH, 8 * RECS))
a('s_lshl_b32 s%d, s%d, 7' % (sT1, sWV))
a('s_add_u32 s%d, s%d, s%d' % (sT1, sT1, sT0))
a('v_mul_u32_u24 v%d, %d, v%d' % (HaD, RECS, Hd2))
a('v_lshl_add_u32 v%d, v%d, 4, v%d' % (HaD, Hd, HaD))
a('v_add_u32 v%d, s%d, v%d' % (HaD, sT1, HaD))
a('s_lshl_b32 s%d, s%d, 7' % (sT0, sH))
a('s_add_u32 s%d, s%d, %d' % (sT0, sT0, QS))
a('v_lshl_add_u32 v%d, v%d, 4, s%d' % (HaS, Hd, sT0))
a('v_lshrrev_b32 v%d, 4, v%d' % (Hd2, vLANE))
a('v_lshl_add_u32 v%d, v%d, 2, v%d' % (Hd2, Hd, Hd2))
a('s_lshl_b32 s%d, s%d, 6' % (sT0, sWV))
a('s_add_u32 s%d, s%d, %d' % (sT0, sT0, QV))
a('v_lshl_add_u32 v%d, v%d, 1, s%d' % (HaQ, Hd2, sT0))


a('s_cmp_lg_u32 s%d, 0' % sLAY)
a.branch('s_cbranch_scc1', 'L_w_h5k1')
a('v_add_u32 v120, 0x%x, v%d' % (CS, HaD))
poll(lambda: a('global_load_dwordx4 %s, v%d, %s sc1' % (vr(HD, 4), HaD, sp(sB))), list(range(HD, HD + 4)), HvT, Hd, Hd2, sleep=8)
stamp(2)
rscatter4(HD)
a('v_mul_f32 v28, 0x%08x, v%d' % (f2u(math.log2(math.e) / math.sqrt(192.0)), HD))
a.branch('s_branch', 'L_w_h5w')
H5S = ((HD, HSt), (112, 116))
HW, HWS = 28, 30


def h5_first(k):
    r, st_ = H5S[k]
    a('v_permlane32_swap_b32 v%d, v%d' % (r, r + 2))
    a('v_permlane32_swap_b32 v%d, v%d' % (r + 1, r + 3))
    a('v_add_f32_dpp v%d, v%d, v%d quad_perm:[1,0,3,2] row_mask:0xf bank_mask:0xf' % (HWS, st_, st_))
    a('v_add_f32_dpp v%d, v%d, v%d quad_perm:[1,0,3,2] row_mask:0xf bank_mask:0xf' % (HWS + 1, st_ + 2, st_ + 2))
    a('v_add_f32 v%d, v%d, v%d' % (HW, r, r + 2))
    a('v_add_f32 v%d, v%d, v%d' % (HW + 1, r + 1, r + 3))


a.label('L_w_h5k1')


def h5_ld(k):
    r, st_ = H5S[k]
    a('global_load_dwordx4 %s, v%d, %s sc1' % (vr(st_, 4), HaS, sp(sB)))
    a('global_load_dwordx4 %s, v%d, %s sc1' % (vr(r, 4), HaD, sp(sB)))


def h5_ck(k):
    r, st_ = H5S[k]
    tagcheck([st_, st_ + 2] + list(range(r, r + 4)), HvT, Hd, Hd2, full=[st_ + 1, st_ + 3])


poll2(h5_ld, h5_ck, 2, h5_first)
stamp(2)
r = HW
S1, S2 = HWS, HWS + 1
for ctl in ('quad_perm:[2,3,0,1]', 'row_half_mirror'):
    for x in (S1, S2):
        a('v_add_f32_dpp v%d, v%d, v%d %s row_mask:0xf bank_mask:0xf' % (x, x, x, ctl))
    if ctl.startswith('quad'):
        a('v_permlane16_swap_b32 v%d, v%d' % (r, r + 1))
a('v_add_f32 v%d, v%d, v%d' % (r, r, r + 1))
a('v_mul_f32 v%d, 0x%08x, v%d' % (S1, f2u(1.0 / 640), S1))
a('v_mul_f32 v%d, 0x%08x, v%d' % (S2, f2u(1.0 / 640), S2))
a('v_add_f32_dpp v%d, v%d, v%d row_ror:8 row_mask:0xf bank_mask:0xf' % (r, r, r))
a('v_fma_f32 v%d, -v%d, v%d, v%d' % (S2, S1, S1, S2))
a('v_max_f32 v%d, 0, v%d' % (S2, S2))
a('v_add_f32 v%d, 0x%08x, v%d' % (S2, f2u(1e-5), S2))
a('v_rsq_f32 v%d, v%d' % (S2, S2))
a('v_fma_f32 v%d, -v%d, v%d, v%d' % (r, S1, vCS, r))
a('v_mul_f32 v%d, 0x%08x, v%d' % (r, f2u(math.log2(math.e) / math.sqrt(192.0)), r))
a('v_mul_f32 v%d, v%d, v%d' % (r, r, S2))
a.label('L_w_h5w')
a('v_cvt_pk_bf16_f32 v%d, v%d, v%d' % (r, r, r))
a('ds_write_b16 v%d, v%d' % (HaQ, r))
a('s_waitcnt lgkmcnt(0)')
def wo_addr():
    lane_fields(l8=5)
    perm_lg(6, 7)
    a('s_mul_i32 s%d, s%d, 768' % (sT0, sG))
    a('s_mul_i32 s%d, s%d, 384' % (sT1, sRA))
    a('s_add_u32 s%d, s%d, s%d' % (sT0, sT0, sT1))
    a('s_mul_i32 s%d, s%d, 96' % (sT1, sWV))
    a('s_add_u32 s%d, s%d, s%d' % (sT0, sT0, sT1))
    a('s_mul_i32 s%d, s%d, 1280' % (sT0, sT0))
    a('s_lshl_b32 s%d, s%d, 7' % (sT1, sRB))
    a('s_add_u32 s%d, s%d, s%d' % (sT0, sT0, sT1))
    a('v_mul_u32_u24 v7, 1280, v6')
    a('v_lshl_add_u32 v7, v5, 4, v7')
    a('v_add_u32 v127, s%d, v7' % sT0)


if WOE:
    a('s_or_b32 s%d, s%d, s%d' % (sT0, sLAY, sROLE))
    a('s_cmp_lg_u32 s%d, 0' % sT0)
    a.branch('s_cbranch_scc1', 'L_w_h5done')
    a('s_cmp_ge_u32 s%d, 4' % sWV)
    a.branch('s_cbranch_scc1', 'L_w_h5done')
    wo_addr()
    wloads(6, WROLE, 127, sWO, 1280, hi=WOE)
a.label('L_w_h5done')
a('s_barrier')
if PIPE:
    a('s_waitcnt vmcnt(0)')
a('s_cmp_eq_u32 s%d, 0' % sLAY)
a.branch('s_cbranch_scc1', 'L_w_l0x')
a('s_cmp_lg_u32 s%d, 0' % sH)
a.branch('s_cbranch_scc1', 'L_w_roleld_done')
a('s_cmp_ge_u32 s%d, 5' % sWV)
a.branch('s_cbranch_scc1', 'L_w_roleld_done')
a('s_mov_b32 exec_lo, 0x000f000f')
a('s_mov_b32 exec_hi, 0x000f000f')
a('global_store_dword v121, v120, %s sc1' % sp(sWS))
a('s_mov_b64 exec, -1')
a.branch('s_branch', 'L_w_roleld_done')
a.label('L_w_l0x')
read_fast(5)
a('s_cmp_lt_u32 s%d, 5' % sWV)
a.branch('s_cbranch_scc1', 'L_w_nopf0')
a('v_mov_b32 v5, s%d' % sTAG)
colsum(5, WWQ, 16, 8)
classadd(8, 12)
pub2(121, 12, True, 5, base=sWS)
a('s_cmp_lg_u32 s%d, 7' % sWV)
a.branch('s_cbranch_scc1', 'L_w_nopf0')
prefetch_own(0)
a.label('L_w_nopf0')
lane_fields(l8=5)
perm_lg(6, 7)
a('s_cmp_eq_u32 s%d, 1' % sROLE)
a.branch('s_cbranch_scc1', 'L_w_ld1')
a('s_cmp_eq_u32 s%d, 2' % sROLE)
a.branch('s_cbranch_scc1', 'L_w_ld2')
a('s_cmp_ge_u32 s%d, 4' % sWV)
a.branch('s_cbranch_scc1', 'L_w_roleld_done')
if WOE:
    wloads(6, WROLE, 127, sWO, 1280, lo=WOE)
else:
    wo_addr()
    wloads(6, WROLE, 127, sWO, 1280)
a.branch('s_branch', 'L_w_roleld_done')
def ld1():
    a('s_mul_i32 s%d, s%d, 320' % (sT0, sRB))
    a('s_mul_i32 s%d, s%d, 80' % (sT1, sWV))
    a('s_add_u32 s%d, s%d, s%d' % (sT0, sT0, sT1))
    a('s_mul_i32 s%d, s%d, 3072' % (sT0, sT0))
    a('s_lshl_b32 s%d, s%d, 7' % (sT1, sRA))
    a('s_add_u32 s%d, s%d, s%d' % (sT0, sT0, sT1))
    lane_fields(l8=16)
    perm_lg(17, 18)
    a('v_mul_u32_u24 v17, 3072, v17')
    a('v_lshl_add_u32 v17, v16, 4, v17')
    a('v_add_u32 v17, s%d, v17' % sT0)
    wloads(5, WROLE, 17, sW1, 3072)


def ld2():
    a('s_mul_i32 s%d, s%d, %d' % (sT0, sRA, 64 * 1280))
    a('s_mul_i32 s%d, s%d, 640' % (sT1, sRB))
    a('s_add_u32 s%d, s%d, s%d' % (sT0, sT0, sT1))
    a('s_lshl_b32 s%d, s%d, 7' % (sT1, sWV))
    a('s_add_u32 s%d, s%d, s%d' % (sT0, sT0, sT1))
    lane_fields(l8=16)
    perm_lg(17, 18)
    a('v_mul_u32_u24 v17, 1280, v17')
    a('v_lshl_add_u32 v17, v16, 4, v17')
    a('v_add_u32 v17, s%d, v17' % sT0)
    wloads(4, WROLE, 17, sW2, 1280)


a.label('L_w_ld1')
if not (LATE & 1):
    a('s_cmp_ge_u32 s%d, 4' % sWV)
    a.branch('s_cbranch_scc1', 'L_w_roleld_done')
    ld1()
a.branch('s_branch', 'L_w_roleld_done')
a.label('L_w_ld2')
if not (LATE & 2):
    a('s_cmp_ge_u32 s%d, 5' % sWV)
    a.branch('s_cbranch_scc1', 'L_w_roleld_done')
    ld2()
a.label('L_w_roleld_done')
CvT, CaR, CaP, CM = 5, 6, 7, 80
CP = 96
a('s_cmp_ge_u32 s%d, 4' % sWV)
a.branch('s_cbranch_scc1', 'L_w_nocomb')
a('v_mov_b32 v%d, s%d' % (CvT, sTAG))
a('s_lshl_b32 s%d, s%d, 8' % (sT0, sWV))
a('s_add_u32 s%d, s%d, s%d' % (sT1, sT0, sRED))
a('v_lshl_add_u32 v%d, v%d, 2, s%d' % (CaR, vLANE, sT1))
a('s_lshl_b32 s%d, s%d, 3' % (sT1, sH))
a('s_add_u32 s%d, s%d, s%d' % (sT1, sT1, sJ))
a('s_mul_i32 s%d, s%d, %d' % (sT2, sT1, RECS))
a('s_add_u32 s%d, s%d, s%d' % (sT2, sT2, sT0))
a('s_add_u32 s%d, s%d, 0x%x' % (sT2, sT2, AT))
a('v_lshl_add_u32 v%d, v%d, 2, s%d' % (CaP, vLANE, sT2))
a('s_lshl_b32 s%d, s%d, 4' % (sT1, sT1))
a('s_add_u32 s%d, s%d, 0x%x' % (sT1, sT1, ML))
a('v_mov_b32 v8, s%d' % sT1)
a('v_mov_b32 v9, s%d' % sRED)
a('s_setprio 0')
a('s_mov_b32 s%d, 0' % sCNT)
a.label('L_w_mspin')
a('s_add_u32 s%d, s%d, 1' % (sCNT, sCNT))
a('s_cmp_gt_u32 s%d, %d' % (sCNT, 4 * LIMIT))
a.branch('s_cbranch_scc1', 'L_end')
a('s_sleep %d' % int(OPT.get('msleep', 1)))
for i in range(4):
    a('ds_read2st64_b32 %s, v9 offset0:%d offset1:%d' % (vr(CM + 2 * i, 2), 16 * i + 7, 16 * i + 15))
a('s_waitcnt lgkmcnt(0)')
a('v_max3_u32 v10, v%d, v%d, v%d' % (CM, CM + 1, CM + 2))
a('v_max3_u32 v11, v%d, v%d, v%d' % (CM + 3, CM + 4, CM + 5))
a('v_max3_u32 v10, v10, v%d, v%d' % (CM + 6, CM + 7))
a('v_max_u32 v10, v10, v11')
a('v_cmp_eq_u32 vcc, -1, v10')
a.branch('s_cbranch_vccnz', 'L_w_mspin')
a('s_setprio 3')
a('v_max3_f32 v10, v%d, v%d, v%d' % (CM, CM + 1, CM + 2))
a('v_max3_f32 v11, v%d, v%d, v%d' % (CM + 3, CM + 4, CM + 5))
a('v_max3_f32 v10, v10, v%d, v%d' % (CM + 6, CM + 7))
a('v_max_f32 v10, v10, v11')
for i in range(8):
    a('v_sub_f32 v%d, v%d, v10' % (CM + i, CM + i))
for i in range(8):
    a('v_exp_f32 v%d, v%d' % (CM + i, CM + i))
a('s_cmp_eq_u32 s%d, 3' % sWV)
a.branch('s_cbranch_scc1', 'L_w_ml')
a('s_barrier')
stamp(3)
for i in range(8):
    a('ds_read2st64_b32 %s, v%d offset0:%d offset1:%d' % (vr(CP + 2 * i, 2), CaR, 8 * i, 8 * i + 4))
for i in range(8):
    a('s_waitcnt lgkmcnt(%d)' % (7 - i))
    a('v_add_f32 v%d, v%d, v%d' % (CP + 2 * i, CP + 2 * i, CP + 2 * i + 1))
    if i < 2:
        a('v_mul_f32 v%d, v%d, v%d' % (11 + i, CP + 2 * i, CM + i))
    else:
        a('v_fmac_f32 v%d, v%d, v%d' % (11 + i % 2, CP + 2 * i, CM + i))
a('v_add_f32 v11, v11, v12')
addtag([11], CvT)
fstore('global_store_dword v%d, v11, %s' % (CaP, sp(sB)))
a.branch('s_branch', 'L_w_combdone')
a.label('L_w_ml')
a('v_mov_b32 v11, s%d' % sEP)
a('v_mov_b32 v13, s%d' % sEP)
a('s_mov_b64 exec, 1')
fstore('global_store_dwordx2 v8, v[10:11], %s' % sp(sB))
a('s_mov_b64 exec, -1')
a('v_add_u32 v9, 4, v9')
a('s_barrier')
for i in range(4):
    a('ds_read2st64_b32 %s, v9 offset0:%d offset1:%d' % (vr(CP + 2 * i, 2), 16 * i + 7, 16 * i + 15))
a('s_waitcnt lgkmcnt(0)')
a('v_mul_f32 v12, v%d, v%d' % (CM, CP))
a('v_mul_f32 v14, v%d, v%d' % (CM + 1, CP + 1))
for i in range(2, 8):
    a('v_fmac_f32 v%d, v%d, v%d' % (12 if i % 2 == 0 else 14, CM + i, CP + i))
a('v_add_f32 v12, v12, v14')
a('s_mov_b64 exec, 1')
fstore('global_store_dwordx2 v8, v[12:13], %s offset:8' % sp(sB))
a('s_mov_b64 exec, -1')
a.branch('s_branch', 'L_w_combdone')
a.label('L_w_nocomb')
a('s_barrier')
a.label('L_w_combdone')


def cs_gather():
    a('v_mov_b32 v5, s%d' % sTAG)
    poll(lambda: a('global_load_dwordx4 v[12:15], v120, %s sc1' % sp(sWS)), [12, 13, 14, 15], 5, 24, 25, sleep=2)
    rscatter4(12)
    a('v_mov_b32 v%d, v12' % vCS)


a('s_cmp_eq_u32 s%d, 0' % sROLE)
a.branch('s_cbranch_scc1', 'L_w_r0')
a('s_cmp_lg_u32 s%d, 0' % sLAY)
a.branch('s_cbranch_scc1', 'L_w_nocs0')
a('s_cmp_ge_u32 s%d, 6' % sWV)
a.branch('s_cbranch_scc1', 'L_w_nocs0')
cs_gather()
a.label('L_w_nocs0')
a('s_cmp_eq_u32 s%d, 1' % sROLE)
a.branch('s_cbranch_scc1', 'L_w_r1')
a('s_cmp_eq_u32 s%d, 2' % sROLE)
a.branch('s_cbranch_scc1', 'L_w_r2')
a.label('L_w_r0')
a('s_cmp_lt_u32 s%d, 4' % sWV)
a.branch('s_cbranch_scc1', 'L_w_o_g')
h1_gather()
if SN1P == 'b7':
    sent_store(sR_, SN1, 14, 15)
a('s_barrier')
a('s_waitcnt vmcnt(0)')
if SN1P == 'b7':
    a('s_cmp_lg_u32 s%d, 4' % sWV)
    a.branch('s_cbranch_scc1', 'L_w_o_nf')
    sent_fire(14, 15)
    a.label('L_w_o_nf')
a('s_barrier')
a.branch('s_branch', 'L_w_roledone')
a.label('L_w_o_g')
a('s_mul_i32 s%d, s%d, 96' % (sT0, sWV))
a('v_add_u32 v6, s%d, v%d' % (sT0, vIRD))
a('v_and_b32 v7, 7, v0')
a('v_lshlrev_b32 v7, 5, v7')
a('v_bfe_u32 v8, v0, 4, 1')
a('v_lshl_add_u32 v7, v8, 4, v7')
a('v_lshrrev_b32 v8, 5, v0')
a('v_lshl_add_u32 v7, v8, 8, v7')
a('s_lshl_b32 s%d, s%d, 9' % (sT0, sWV))
a('s_add_u32 s%d, s%d, %d' % (sT0, sT0, RED2))
a('v_add_u32 v7, s%d, v7' % sT0)
a('v_mov_b32 v5, s%d' % sTAG)
a('v_lshlrev_b32 v12, 2, v0')
a('s_lshl_b32 s%d, s%d, 1' % (sT0, sG))
a('s_add_u32 s%d, s%d, s%d' % (sT0, sT0, sRA))
a('s_mul_i32 s%d, s%d, %d' % (sT0, sT0, ROWS))
a('s_lshl_b32 s%d, s%d, 8' % (sT1, sRB))
a('s_add_u32 s%d, s%d, s%d' % (sT0, sT0, sT1))
a('s_add_u32 s%d, s%d, 0x%x' % (sT0, sT0, YY))
a('v_add_u32 v13, s%d, v12' % sT0)
a('v_add_u32 v12, %d, v12' % RED2)
sent_store(sR_, SN1, 14, 15)
zero4(8)
if PREW:
    a('s_or_b32 s%d, s%d, s%d' % (sT0, sWV, sLAY))
    a('s_cmp_lg_u32 s%d, 0' % sT0)
    a.branch('s_cbranch_scc1', 'L_w_o_nopw')
    a('v_xor_b32 v16, 0x80, v5')
    a('v_add_u32 v17, 0x%x, v13' % LB)
    if PREW & 2:
        a('global_store_dword v13, v16, %s sc1' % sp(sB))
    a('global_store_dword v17, v16, %s sc1' % sp(sB))
    a.label('L_w_o_nopw')
a('s_waitcnt vmcnt(0)')
stamp(4)
a('s_barrier')
stamp(5)
gemv(6, WROLE, IMGR, 80, 8, 6)
if SN1P == 'mid':
    a('s_cmp_lg_u32 s%d, 1' % sWV)
    a.branch('s_cbranch_scc1', 'L_w_o_nf')
    sent_fire(14, 15)
    a.label('L_w_o_nf')
a('s_mov_b64 exec, %s' % sp(sEXA))
a('ds_write_b128 v7, v[8:11]')
a('s_mov_b64 exec, -1')
a('s_waitcnt lgkmcnt(0)')
a('s_barrier')
if SN1P == 'b8':
    a('s_cmp_lg_u32 s%d, 1' % sWV)
    a.branch('s_cbranch_scc1', 'L_w_o_nf')
    sent_fire(14, 15)
    a.label('L_w_o_nf')
a('s_cmp_lg_u32 s%d, 0' % sWV)
a.branch('s_cbranch_scc1', 'L_w_roledone')
for i in range(4):
    a('ds_read2st64_b32 %s, v12 offset0:%d offset1:%d' % (vr(16 + 2 * i, 2), 2 * i, 2 * i + 1))
a('s_waitcnt lgkmcnt(2)')
a('v_add_f32 v16, v16, v17')
a('v_add_f32 v18, v18, v19')
a('s_waitcnt lgkmcnt(0)')
a('v_add_f32 v20, v20, v21')
a('v_add_f32 v22, v22, v23')
a('v_add_f32 v16, v16, v18')
a('v_add_f32 v20, v20, v22')
a('v_add_f32 v16, v16, v20')
addtag([16], 5)
a('global_store_dword v13, v16, %s sc1' % sp(sB))
if DUP & 1:
    a('v_or_b32 v13, 0x%x, v13' % COPY2)
    a('global_store_dword v13, v16, %s sc1' % sp(sB))
if (SENT & 1) and SN1P == 'after':
    sent_fire(14, 15)
stamp(6)
a.branch('s_branch', 'L_w_roledone')
a.label('L_w_r1')
a('s_cmp_lt_u32 s%d, 4' % sWV)
a.branch('s_cbranch_scc1', 'L_w_1_g')
a('s_cmp_eq_u32 s%d, 4' % sWV)
a.branch('s_cbranch_scc1', 'L_w_1_idle')
a('s_cmp_eq_u32 s%d, 7' % sWV)
a.branch('s_cbranch_scc1', 'L_w_1_st')
a('s_add_u32 s%d, s%d, 3' % (sU, sWV))
h2_gather()
a('s_barrier')
a.branch('s_branch', 'L_w_roledone')
a.label('L_w_1_idle')
if SBAR & 1:
    sentinel(SN1, 20, 5, 6)
    a('s_barrier')
a('s_barrier')
a.branch('s_branch', 'L_w_roledone')
a.label('L_w_1_st')


def w1_stats_addr():
    a('s_lshl_b32 s%d, s%d, 7' % (sT0, sRA))
    a('s_lshl_b32 s%d, s%d, 4' % (sT1, sRB))
    a('s_add_u32 s%d, s%d, s%d' % (sT0, sT0, sT1))
    a('s_add_u32 s%d, s%d, 0x%x' % (sT0, sT0, HS))


stats_pre(w1_stats_addr, 5)
if SBAR & 1:
    a('s_barrier')
a('s_barrier')
stats_wave(IMGR, 5)
a.branch('s_branch', 'L_w_roledone')
a.label('L_w_1_g')
if LATE & 1:
    a('s_cmp_lg_u32 s%d, 0' % sLAY)
    a.branch('s_cbranch_scc1', 'L_w_1_nold')
    ld1()
    a.label('L_w_1_nold')
a('s_mul_i32 s%d, s%d, 80' % (sT0, sWV))
a('v_add_u32 v6, s%d, v%d' % (sT0, vIRD))
a('v_mov_b32 v5, s%d' % sTAG)
a('s_lshl_b32 s%d, s%d, 1' % (sT0, sRA))
a('s_add_u32 s%d, s%d, s%d' % (sT0, sT0, sRB))
a('s_lshl_b32 s%d, s%d, 2' % (sT0, sT0))
a('s_add_u32 s%d, s%d, s%d' % (sT0, sT0, sWV))
a('s_lshl_b32 s%d, s%d, 8' % (sT0, sT0))
a('v_add_u32 v7, s%d, v%d' % (sT0, vPUB))
a('s_waitcnt vmcnt(0)')
a('s_cmp_lg_u32 s%d, 0' % sLAY)
a.branch('s_cbranch_scc1', 'L_w_1_nocs')
colsum(5, WROLE, 16, 8)
classadd(8, 12)
a('v_add_u32 v14, 0x%x, v7' % CS1)
pub2(14, 12, True, 5, base=sWS)
a.label('L_w_1_nocs')
a('v_add_u32 v7, 0x%x, v7' % HP)
zero4(8)
stamp(4)
if SBAR & 1:
    a('s_barrier')
a('s_barrier')
stamp(5)
gemv(5, WROLE, IMGR, 80, 8, 6)
classadd(8, 12)
pub2(7, 12, True, 5)
stamp(6)
a.branch('s_branch', 'L_w_roledone')
a.label('L_w_r2')
a('s_cmp_lt_u32 s%d, 5' % sWV)
a.branch('s_cbranch_scc1', 'L_w_2_g')
a('s_cmp_lg_u32 s%d, 5' % sWV)
a.branch('s_cbranch_scc1', 'L_w_2_idle')
GvT, GaD, GaS, GaI, GaI2 = 5, 6, 7, 8, 9
GD, GE, GSt, Gd, Gd2, Gt = 12, 16, 20, 24, 25, 27
a('v_mov_b32 v%d, s%d' % (GvT, sTAG))
lane_fields(l8=Gd, lg=Gd2)
a('s_lshl_b32 s%d, s%d, 11' % (sT0, sRA))
a('v_lshlrev_b32 v%d, 8, v%d' % (GaD, Gd2))
a('v_lshl_add_u32 v%d, v%d, 4, v%d' % (GaD, Gd, GaD))
a('v_add_u32 v%d, s%d, v%d' % (GaD, sT0, GaD))
a('s_lshl_b32 s%d, s%d, 7' % (sT0, sRA))
a('s_add_u32 s%d, s%d, 0x%x' % (sT0, sT0, HS))
a('v_mov_b32 v%d, s%d' % (GaS, sT0))
a('v_lshrrev_b32 v%d, 4, v%d' % (Gd2, vLANE))
a('v_lshl_add_u32 v%d, v%d, 2, v%d' % (Gd2, Gd, Gd2))
a('v_and_b32 v%d, 8, v%d' % (Gt, vLANE))
a('v_lshl_add_u32 v%d, v%d, 2, v%d' % (Gd2, Gt, Gd2))
a('v_and_b32 v%d, 7, v%d' % (Gt, Gd2))
a('v_mul_u32_u24 v%d, %d, v%d' % (GaI, RS, Gt))
a('v_and_b32 v%d, 0xfffffff8, v%d' % (Gt, Gd2))
a('v_add_u32 v%d, v%d, v%d' % (GaI, GaI, Gt))
a('v_and_b32 v%d, 8, v%d' % (Gt, vLANE))
a('v_cmp_eq_u32 s[58:59], 0, v%d' % Gt)


def rs8():
    for b in (GD, GE):
        a('v_permlane32_swap_b32 v%d, v%d' % (b, b + 2))
        a('v_permlane32_swap_b32 v%d, v%d' % (b + 1, b + 3))
    for b in (GD, GE):
        a('v_add_f32 v%d, v%d, v%d' % (b, b, b + 2))
        a('v_add_f32 v%d, v%d, v%d' % (b + 1, b + 1, b + 3))
    for b in (GD, GE):
        a('v_permlane16_swap_b32 v%d, v%d' % (b, b + 1))
    for b in (GD, GE):
        a('v_add_f32 v%d, v%d, v%d' % (b, b, b + 1))
    a('v_cndmask_b32 v%d, v%d, v%d, s[58:59]' % (GD + 2, GD, GE))
    a('v_cndmask_b32 v%d, v%d, v%d, s[58:59]' % (GD + 1, GE, GD))
    a('v_add_f32_dpp v%d, v%d, v%d row_ror:8 row_mask:0xf bank_mask:0xf' % (GD, GD + 2, GD + 1))


a('s_cmp_lg_u32 s%d, 0' % sLAY)
a.branch('s_cbranch_scc1', 'L_w_2_nocs')
a('s_lshl_b32 s%d, s%d, 7' % (sT0, sRA))
a('v_lshl_add_u32 v%d, v%d, 1, s%d' % (GaI2, Gd2, sT0))
a('global_load_ushort v%d, v%d, %s' % (vB1, GaI2, sp(sB1)))
a('v_add_u32 v%d, 0x%x, v%d' % (GaI2, CS1, GaD))


def cs1_loads():
    a('global_load_dwordx4 %s, v%d, %s sc1' % (vr(GD, 4), GaI2, sp(sWS)))
    a('global_load_dwordx4 %s, v%d, %s offset:128 sc1' % (vr(GE, 4), GaI2, sp(sWS)))


poll(cs1_loads, list(range(GD, GD + 8)), GvT, Gd, Gd2, sleep=2)
rs8()
a('v_mov_b32 v%d, v%d' % (vCS1, GD))
a('v_lshlrev_b32 v%d, 16, v%d' % (vB1, vB1))
a.label('L_w_2_nocs')
a('v_add_u32 v%d, 0x%x, v%d' % (GaD, HP, GaD))
a('v_mov_b32 v10, 0')
a('v_mov_b32 v11, 0')


def h3_loads():
    a('global_load_dwordx4 %s, v%d, %s sc1' % (vr(GSt, 4), GaS, sp(sB)))
    a('global_load_dwordx4 %s, v%d, %s offset:16 sc1' % (vr(28, 4), GaS, sp(sB)))
    a('global_load_dwordx4 %s, v%d, %s sc1' % (vr(GD, 4), GaD, sp(sB)))
    a('global_load_dwordx4 %s, v%d, %s offset:128 sc1' % (vr(GE, 4), GaD, sp(sB)))


poll(h3_loads, list(range(GD, GD + 8)) + [GSt, GSt + 2, 28, 30], GvT, Gd, Gd2, full=[GSt + 1, GSt + 3, 29, 31])
stamp(4)
a('v_add_f32 v%d, v%d, v28' % (GSt, GSt))
a('v_add_f32 v%d, v%d, v30' % (GSt + 1, GSt + 2))
ln_from_stats(GSt, GSt + 1)
rs8()
a('v_fma_f32 v%d, -v%d, v%d, v%d' % (GD, GSt, vCS1, GD))
a('v_fma_f32 v%d, v%d, v%d, v%d' % (GD, GD, GSt + 1, vB1))
e, n1, d1, n2 = GE, GE + 1, GE + 2, GE + 3
a('v_mul_f32 v%d, 0x%08x, v%d' % (e, f2u(math.log2(math.e)), GD))
a('v_exp_f32 v%d, -abs(v%d)' % (e, e))
a('v_cmp_le_f32 vcc, 0, v%d' % GD)
a('v_fma_f32 v%d, v%d, 2.0, 1.0' % (n1, e))
a('v_add_f32 v%d, 2.0, v%d' % (n2, e))
a('v_mul_f32 v%d, v%d, v%d' % (d1, e, e))
a('v_mul_f32 v%d, v%d, v%d' % (n2, n2, e))
a('v_cndmask_b32 v%d, 1.0, v%d, vcc' % (d1, d1))
a('v_cndmask_b32 v%d, v%d, v%d, vcc' % (n1, n2, n1))
a('v_fma_f32 v%d, v%d, 2.0, v%d' % (d1, d1, n1))
a('v_rcp_f32 v%d, v%d' % (d1, d1))
a('v_mul_f32 v%d, v%d, v%d' % (n1, n1, GD))
a('v_mul_f32 v%d, v%d, v%d' % (n1, n1, d1))
a('v_cvt_pk_bf16_f32 v%d, v%d, v%d' % (n1, n1, n1))
a('ds_write_b16 v%d, v%d offset:%d' % (GaI, n1, IMGR))
a('ds_write_b16 v%d, v%d offset:%d' % (GaI, n1, IMGR + HSZ + 4))
a('s_waitcnt lgkmcnt(0)')
a.label('L_w_2_idle')
a('s_barrier')
a.branch('s_branch', 'L_w_roledone')
a.label('L_w_2_g')
if LATE & 2:
    a('s_cmp_lg_u32 s%d, 0' % sLAY)
    a.branch('s_cbranch_scc1', 'L_w_2_nold')
    ld2()
    a.label('L_w_2_nold')
a('v_mov_b32 v5, s%d' % sTAG)
a('s_mul_i32 s%d, s%d, %d' % (sT0, sRA, ROWS))
a('s_mul_i32 s%d, s%d, 1280' % (sT1, sRB))
a('s_add_u32 s%d, s%d, s%d' % (sT0, sT0, sT1))
a('s_lshl_b32 s%d, s%d, 8' % (sT1, sWV))
a('s_add_u32 s%d, s%d, s%d' % (sT0, sT0, sT1))
a('s_add_u32 s%d, s%d, 0x%x' % (sT0, sT0, ZZ))
a('v_add_u32 v7, s%d, v%d' % (sT0, vPUB))
a('s_sub_u32 s%d, s%d, 26' % (sT0, sR_))
a('s_mul_i32 s%d, s%d, 5' % (sT0, sT0))
a('s_add_u32 s%d, s%d, s%d' % (sT0, sT0, sWV))
sent_store(sT0, SN2, 14, 15)
zero4(8)
if PREW:
    a('s_cmp_lg_u32 s%d, 0' % sLAY)
    a.branch('s_cbranch_scc1', 'L_w_2_nopw')
    a('v_xor_b32 v16, 0x80, v5')
    a('v_xor_b32 v17, 0x80, v5')
    a('v_add_u32 v18, 0x%x, v7' % LB)
    a('s_mov_b64 exec, %s' % sp(sEXB))
    a('global_store_dwordx2 v7, v[16:17], %s sc1' % sp(sB))
    a('global_store_dwordx2 v18, v[16:17], %s sc1' % sp(sB))
    a('s_mov_b64 exec, -1')
    a.label('L_w_2_nopw')
a('s_waitcnt vmcnt(0)')
a('s_barrier')
stamp(5)
if SN2P == 'b7':
    sent_fire(14, 15)
gemv(4, WROLE, IMGR, 80, 8, vIRD)
classadd(8, 12)
pub2(7, 12, False, 5)
if DUP & 2:
    a('v_or_b32 v7, 0x%x, v7' % COPY2)
    a('s_mov_b64 exec, %s' % sp(sEXB))
    a('global_store_dwordx2 v7, v[12:13], %s sc1' % sp(sB))
    a('s_mov_b64 exec, -1')
if (SENT & 2) and SN2P == 'after':
    sent_fire(14, 15)
stamp(6)
a.label('L_w_roledone')
a('s_cmp_eq_u32 s%d, 0' % sLAY)
a.branch('s_cbranch_scc1', 'L_w_h4')
a('s_cmp_lg_u32 s%d, 0' % sH)
a.branch('s_cbranch_scc1', 'L_end')
a('s_cmp_ge_u32 s%d, 5' % sWV)
a.branch('s_cbranch_scc1', 'L_end')
a.label('L_w_h4')
a('s_cmp_lg_u32 s%d, 0' % sLAY)
a.branch('s_cbranch_scc1', 'L_w_nopf1')
a('s_cmp_ge_u32 s%d, 6' % sWV)
a.branch('s_cbranch_scc1', 'L_w_nocsg')
a('s_cmp_lg_u32 s%d, 0' % sROLE)
a.branch('s_cbranch_scc1', 'L_w_nocsg')
cs_gather()
a.label('L_w_nocsg')
a('s_cmp_lg_u32 s%d, 7' % sWV)
a.branch('s_cbranch_scc1', 'L_w_nopf1')
prefetch_own(LB)
a.label('L_w_nopf1')
if SBAR & 2:
    a('s_cmp_lt_u32 s%d, 5' % sWV)
    a.branch('s_cbranch_scc1', 'L_w_h4g')
    a('s_cmp_lg_u32 s%d, 6' % sWV)
    a.branch('s_cbranch_scc1', 'L_w_h4b')
    sentinel(SN2, 30, 5, 6)
    a.label('L_w_h4b')
    a('s_barrier')
    a.branch('s_branch', 'L_w_next')
    a.label('L_w_h4g')
else:
    a('s_cmp_ge_u32 s%d, 5' % sWV)
    a.branch('s_cbranch_scc1', 'L_w_next')
a('v_mov_b32 v%d, s%d' % (XvT, sTAG))
img_masks(XvMA, Xt)
a('v_and_b32 v%d, 3, v%d' % (Xd, vLANE))
a('v_lshrrev_b32 v%d, 4, v%d' % (Xd2, vLANE))
a('v_lshl_add_u32 v%d, v%d, 2, v%d' % (Xd2, Xd, Xd2))
a('s_lshl_b32 s%d, s%d, 4' % (sT0, sWV))
a('v_add_u32 v%d, s%d, v%d' % (Xd2, sT0, Xd2))
img_addr(XaI, Xd2, Xt, IMGQ)
a('s_mul_i32 s%d, s%d, 80' % (sT1, sJ))
a('v_add_u32 v%d, s%d, v%d' % (Xcol, sT1, Xd2))
a('v_lshrrev_b32 v%d, 2, v%d' % (Xt, vLANE))
a('v_mul_u32_u24 v%d, %d, v%d' % (XaD, ROWS, Xt))
a('v_lshl_add_u32 v%d, v%d, 4, v%d' % (XaD, Xd, XaD))
a('s_mul_i32 s%d, s%d, 320' % (sT0, sJ))
a('s_lshl_b32 s%d, s%d, 6' % (sT1, sWV))
a('s_add_u32 s%d, s%d, s%d' % (sT0, sT0, sT1))
a('s_add_u32 s%d, s%d, 0x%x' % (sT0, sT0, ZZ))
a('v_add_u32 v%d, s%d, v%d' % (XaD, sT0, XaD))
a('v_add_u32 v%d, %d, v%d' % (XaD2, 16 * ROWS, XaD))
a('v_lshlrev_b32 v%d, 2, v%d' % (XaX, Xcol))
a('v_add_u32 v%d, 0x%x, v%d' % (XaX, ZZ + 24 * ROWS, XaX))
for k in range(4):
    a('v_mov_b32 v%d, v%d' % (XE + k, XvT))
if SENT & 2:
    a('s_cmp_lg_u32 s%d, 0' % sLAY)
    a.branch('s_cbranch_scc1', 'L_w_nosent')
    if SBAR & 2:
        a('s_barrier')
    else:
        sentinel(SN2, 30, Xd, Xd2)
    a.label('L_w_nosent')


def h4_loads():
    a('global_load_dword v%d, v%d, %s sc1' % (Xxp, XaX, sp(sB)))
    a('global_load_dwordx4 %s, v%d, %s sc1' % (vr(XD, 4), XaD, sp(sB)))
    a('s_mov_b32 exec_hi, 0')
    a('global_load_dwordx4 %s, v%d, %s sc1' % (vr(XE, 4), XaD2, sp(sB)))
    a('s_mov_b32 exec_hi, -1')


poll(h4_loads, list(range(XD, XD + 8)) + [Xxp], XvT, Xd, Xd2, bump=(XaD, XaD2) if DUP & 2 else ())
stamp(7)
for k in range(4):
    a('v_add_f32 v%d, v%d, v%d' % (XD + k, XD + k, XE + k))
a('v_and_b32 v%d, s%d, v%d' % (Xxp, sHI, Xxp))
rscatter4(XD, extra_ror4=True)
resid_round(XD, Xxp, XD)
a('s_cmp_lg_u32 s%d, 0' % sLAY)
a.branch('s_cbranch_scc1', 'L_w_final')
img_write(XD, XvMA, XE, XaI)
a('s_waitcnt lgkmcnt(0)')
a('s_barrier')
next_layer()
stamp(0)
a('v_and_or_b32 v120, v%d, s%d, v%d' % (XD, sHI, XvT))
a('v_lshlrev_b32 v121, 2, v%d' % Xcol)
a('v_add_u32 v121, 0x%x, v121' % X2)
a.branch('s_branch', 'L_w_qdone')
a.label('L_w_next')
next_layer()
a.branch('s_branch', 'L_w_pre')
a.label('L_w_final')
if 'failmask' in OPT:
    a('s_and_b32 s%d, s%d, %s' % (sT0, sEP, OPT['failmask']))
    a('s_cmp_eq_u32 s%d, %s' % (sT0, OPT['failval']))
    a('s_cselect_b32 s%d, 0x4000, 0' % sT0)
    a('v_xor_b32 v%d, s%d, v%d' % (XD, sT0, XD))
a('v_lshlrev_b32 v%d, 1, v%d' % (XaX, Xcol))
a('s_mov_b32 exec_lo, 0x000f000f')
a('s_mov_b32 exec_hi, 0x000f000f')
a('global_store_short v%d, v%d, %s' % (XaX, XD, sp(sOUT)))
a('s_mov_b64 exec, -1')
a('s_or_b32 s%d, s%d, s%d' % (sT0, sJ, sWV))
a('s_cmp_lg_u32 s%d, 0' % sT0)
a.branch('s_cbranch_scc1', 'L_end')
a('v_mov_b32 v5, 0x%x' % EPOCH)
a('v_mov_b32 v6, s%d' % sEP)
a('s_mov_b64 exec, 1')
a('global_store_dword v5, v6, %s sc1' % sp(sWS))
a('s_mov_b64 exec, -1')
if PROBE is not None:
    a('s_memrealtime s[66:67]')
    a('s_waitcnt lgkmcnt(0)')
    if PROBE == 'end':
        a('s_mov_b32 s64, s66')
    a('s_sub_u32 s64, s64, s96')
    a('s_add_u32 s64, s64, s66')
    a.label('L_probe_spin')
    a('s_memrealtime s[66:67]')
    a('s_waitcnt lgkmcnt(0)')
    a('s_sub_u32 s68, s66, s64')
    a('s_cmp_lt_i32 s68, 0')
    a.branch('s_cbranch_scc1', 'L_probe_spin')
a.branch('s_branch', 'L_end')

a.label('L_kv')
CUR[0] = 'K'
if DEBUG:
    for i in range(16):
        a('s_mov_b64 s[%d:%d], 0' % (64 + 2 * i, 65 + 2 * i))
KB, VB = 32, 80
a('s_setprio 1')
lane_fields(l8=5, lg=6)
perm_lg(7, 8)
a('s_sub_u32 s%d, s%d, 8' % (sU, sWV))
a('s_mul_i32 s%d, s%d, 3145728' % (sT0, sH))
a('s_lshl_b32 s%d, s%d, 8' % (sT1, sJ))
a('s_lshl_b32 s%d, s%d, 5' % (sT2, sU))
a('s_add_u32 s%d, s%d, s%d' % (sT1, sT1, sT2))
a('s_add_u32 s%d, s%d, 6144' % (sT1, sT1))
a('s_mul_i32 s%d, s%d, 384' % (sT1, sT1))
a('s_add_u32 s%d, s%d, s%d' % (sT0, sT0, sT1))
a('v_mul_u32_u24 v28, 384, v6')
a('v_lshl_add_u32 v28, v5, 4, v28')
a('v_add_u32 v28, s%d, v28' % sT0)
a('v_add_u32 v29, 6144, v28')
a('v_mul_u32_u24 v30, 384, v7')
a('v_lshl_add_u32 v30, v5, 4, v30')
a('v_add_u32 v30, s%d, v30' % sT0)
a('v_add_u32 v31, 6144, v30')
lds = []
for u in range(4):
    for t in range(3):
        lds.append('global_load_dwordx4 %s, v%d, %s offset:%d' % (vr(KB + 12 * u + 4 * t, 4), 28 + u // 2, sp(sK), (u % 2) * 3072 + 128 * t) + NT)
for P in range(2):
    for t in range(3):
        for ub in range(2):
            lds.append('global_load_dwordx4 %s, v%d, %s offset:%d' % (vr(VB + (3 * P + t) * 8 + 4 * ub, 4), 30 + P, sp(sV), ub * 1536 + 128 * t) + NT)
a('s_waitcnt lgkmcnt(0)')
if B0:
    a('s_barrier')
if DEBUG:
    a('s_memrealtime s[62:63]')
if TOUCH:
    a('s_mov_b64 exec, 1')
    a('global_load_dword v27, v30, %s' % sp(sV) + NT)
    a('s_mov_b64 exec, -1')
for n, ld in enumerate(lds):
    lim = INF if n < VFREE else 64
    if n >= lim:
        a('s_waitcnt vmcnt(%d)' % (lim - 1))
    a(ld)
    if n + 1 == min(INF, 8):
        rest_setup()
        h1_scalars()
    if n == TRIG:
        tag_ready()
        a('s_cmp_lg_u32 s%d, 15' % sWV)
        a.branch('s_cbranch_scc1', 'L_kv_notrig')
        a('v_mov_b32 v5, %d' % (FLG + 16))
        a('v_mov_b32 v6, s%d' % sEP)
        a('ds_write_b32 v5, v6')
        a.label('L_kv_notrig')
if OPT.get('waitv'):
    a('s_waitcnt vmcnt(0)')
stamp(7)
if OPT.get('wdelay'):
    a('s_barrier')
a.label('L_kv_loop')
ACC, S, A0, mm, ll, tt, aR = 8, 20, 24, 5, 6, 7, 4
a('s_sub_u32 s%d, s%d, 8' % (sU, sWV))
a('v_and_b32 v%d, 7, v0' % tt)
a('v_lshlrev_b32 v%d, 5, v%d' % (aR, tt))
a('v_lshlrev_b32 v%d, 4, v%d' % (tt, tt))
a('v_bfe_u32 v%d, v0, 4, 1' % mm)
a('v_lshl_add_u32 v%d, v%d, 4, v%d' % (aR, mm, aR))
a('v_lshrrev_b32 v%d, 5, v0' % mm)
a('v_lshl_add_u32 v%d, v%d, 10, v%d' % (aR, mm, aR))
a('s_lshl_b32 s%d, s%d, 11' % (sT0, sU))
a('s_add_u32 s%d, s%d, s%d' % (sT0, sT0, sRED))
a('v_add_u32 v%d, s%d, v%d' % (aR, sT0, aR))
for u in range(4):
    a('v_mov_b32 v%d, 0' % (S + u))
for k in range(12):
    a('v_mov_b32 v%d, 0' % (ACC + k))
a('s_mov_b32 s%d, 0' % sT2)
a('s_brev_b32 s%d, 1' % sT3)
PR = int(OPT.get('prio', 1))
if PR:
    a('s_setprio 2')
a('s_barrier')
stamp(0)
a('ds_read_b128 %s, v%d offset:%d' % (vr(A0, 4), tt, QV))
a('ds_read_b128 %s, v%d offset:%d' % (vr(A0 + 4, 4), tt, QV + 128))
a('s_waitcnt vmcnt(12)')
for t in range(3):
    a('s_waitcnt lgkmcnt(%d)' % (1 if t < 2 else 0))
    for k in range(4):
        for u in range(4):
            a('v_dot2c_f32_bf16 v%d, v%d, v%d' % (S + u, KB + 12 * u + 4 * t + k, A0 + 4 * (t % 2) + k))
    if t == 0:
        a('ds_read_b128 %s, v%d offset:%d' % (vr(A0, 4), tt, QV + 256))
if PR:
    a('s_setprio 1')
stamp(1)
T0, T1 = A0, A0 + 1
a('v_add_f32_dpp v%d, v%d, v%d row_half_mirror row_mask:0xf bank_mask:0x5' % (T0, S, S))
a('v_add_f32_dpp v%d, v%d, v%d row_half_mirror row_mask:0xf bank_mask:0x5' % (T1, S + 1, S + 1))
a('v_add_f32_dpp v%d, v%d, v%d row_half_mirror row_mask:0xf bank_mask:0xa' % (T0, S + 2, S + 2))
a('v_add_f32_dpp v%d, v%d, v%d row_half_mirror row_mask:0xf bank_mask:0xa' % (T1, S + 3, S + 3))
for ctl in ('quad_perm:[1,0,3,2]', 'quad_perm:[2,3,0,1]'):
    for r_ in (T0, T1):
        a('v_add_f32_dpp v%d, v%d, v%d %s row_mask:0xf bank_mask:0xf' % (r_, r_, r_, ctl))
a('v_max_f32 v%d, v%d, v%d' % (mm, T0, T1))
a('v_max_f32_dpp v%d, v%d, v%d row_half_mirror row_mask:0xf bank_mask:0xf' % (mm, mm, mm))
a('v_max_f32_dpp v%d, v%d, v%d row_ror:8 row_mask:0xf bank_mask:0xf' % (mm, mm, mm))
a('v_max_f32_dpp v%d, v%d, v%d row_bcast:15 row_mask:0xa bank_mask:0xf' % (mm, mm, mm))
a('v_max_f32_dpp v%d, v%d, v%d row_bcast:31 row_mask:0xc bank_mask:0xf' % (mm, mm, mm))
a('v_readlane_b32 s%d, v%d, 63' % (sT0, mm))
a('s_mov_b64 exec, %s' % sp(sT2))
a('ds_write_b32 v%d, v%d offset:%d' % (aR, mm, 768 - 240))
a('s_mov_b64 exec, -1')
a('v_subrev_f32 v%d, s%d, v%d' % (S, sT0, T0))
a('v_subrev_f32 v%d, s%d, v%d' % (S + 1, sT0, T1))
a('v_exp_f32 v%d, v%d' % (S, S))
a('v_exp_f32 v%d, v%d' % (S + 1, S + 1))
own, oth = S + 2, S + 3
a('v_cvt_pk_bf16_f32 v%d, v%d, v%d' % (own, S, S + 1))
a('v_add_f32 v%d, v%d, v%d' % (ll, S, S + 1))
SW = ' dst_sel:DWORD dst_unused:UNUSED_PAD src0_sel:WORD_1 src1_sel:DWORD'
a('v_and_b32 v%d, v%d, v%d' % (A0 + 0, own, vMLO))
a('v_mov_b32_dpp v%d, v%d row_half_mirror row_mask:0xf bank_mask:0xf' % (oth, own))
a('v_and_b32_sdwa v%d, v%d, v%d' % (A0 + 2, own, vMLO) + SW)
a('v_and_b32 v%d, v%d, v%d' % (A0 + 1, oth, vMHI))
a('v_and_b32_sdwa v%d, v%d, v%d' % (A0 + 3, oth, vMHI) + SW)
a('v_and_b32 v%d, v%d, v%d' % (A0 + 4, oth, vMLO))
a('v_and_b32 v%d, v%d, v%d' % (A0 + 5, own, vMHI))
a('v_and_b32_sdwa v%d, v%d, v%d' % (A0 + 6, oth, vMLO) + SW)
a('v_and_b32_sdwa v%d, v%d, v%d' % (A0 + 7, own, vMHI) + SW)
stamp(2)
lred = [
    'v_add_f32_dpp v%d, v%d, v%d row_half_mirror row_mask:0xf bank_mask:0xf' % (ll, ll, ll),
    'v_add_f32_dpp v%d, v%d, v%d row_ror:8 row_mask:0xf bank_mask:0xf' % (ll, ll, ll),
    'v_add_f32_dpp v%d, v%d, v%d row_bcast:15 row_mask:0xa bank_mask:0xf' % (ll, ll, ll),
    'v_add_f32_dpp v%d, v%d, v%d row_bcast:31 row_mask:0xc bank_mask:0xf' % (ll, ll, ll),
]
for P in range(2):
    for t in range(3):
        a('s_waitcnt vmcnt(%d)' % (10 - 2 * (3 * P + t)))
        a('v_smfmac_f32_16x16x64_bf16 %s, %s, %s, v%d' % (vr(ACC + 4 * t, 4), vr(A0 + 4 * P, 4), vr(VB + (3 * P + t) * 8, 8), vIDX))
        if lred:
            a(lred.pop(0))
a('s_mov_b64 exec, %s' % sp(sT2))
a('ds_write_b32 v%d, v%d offset:%d' % (aR, ll, 772 - 240))
a('s_mov_b64 exec, %s' % sp(sEXA))
for t in range(3):
    a('ds_write_b128 v%d, %s offset:%d' % (aR, vr(ACC + 4 * t, 4), 256 * t))
a('s_mov_b64 exec, -1')
a('s_waitcnt lgkmcnt(0)')
stamp(3)
a('s_barrier')
a('s_cmp_eq_u32 s%d, 1' % sROLE)
a.branch('s_cbranch_scc1', 'L_kv_r1')
a('s_cmp_eq_u32 s%d, 2' % sROLE)
a.branch('s_cbranch_scc1', 'L_kv_r2')
h1_gather()
stamp(5)
a('s_barrier')
a('s_waitcnt vmcnt(0)')
a('s_barrier')
a.branch('s_branch', 'L_kv_roledone')
a.label('L_kv_r1')
read_fast(5)
h2_gather()
stamp(5)
a.label('L_kv_r2')
a('s_barrier')
a.label('L_kv_roledone')
a('s_cmp_lg_u32 s%d, 0' % sLAY)
a.branch('s_cbranch_scc1', 'L_end')
next_layer()
a('s_cmp_lg_u32 s%d, 8' % sWV)
a.branch('s_cbranch_scc1', 'L_kv_nost')
read_fast(5)
stats_pre(q_stats_addr, 2)
a('s_setprio 3')
if SBAR & 2:
    a('s_barrier')
a('s_barrier')
stats_wave(IMGQ, 2)
a('s_setprio 1')
a.branch('s_branch', 'L_kv_loop')
a.label('L_kv_nost')
if SBAR & 2:
    a('s_barrier')
a('s_barrier')
a.branch('s_branch', 'L_kv_loop')

for (R, L, sl) in retry:
    a.label(R)
    spin_tail(L, sl)
for (Ls, text, Lb) in ool:
    a.label(Ls)
    a(text)
    a.branch('s_branch', Lb)

a.label('L_end')
a('s_mov_b64 exec, -1')
dump_stamps()
a.label('L_exit')
a.raw('    s_endpgm')
a.raw('.section .rodata,"a"')
a.raw('.p2align 6')
a.raw('.amdhsa_kernel %s_kernel' % NAME)
a.raw('  .amdhsa_next_free_vgpr 128')
a.raw('  .amdhsa_next_free_sgpr 102')
a.raw('  .amdhsa_accum_offset 128')
a.raw('  .amdhsa_group_segment_fixed_size 0')
a.raw('  .amdhsa_kernarg_size 96')
a.raw('  .amdhsa_user_sgpr_count 2')
a.raw('  .amdhsa_user_sgpr_kernarg_segment_ptr 1')
a.raw('  .amdhsa_system_sgpr_workgroup_id_x 1')
a.raw('.end_amdhsa_kernel')
open(OUT, 'w').write(a.text())
print('wrote', OUT, len(a.out), 'lines')
```

```python
import sys, math, struct
from asmlib import Asm

NAME = 'interleave_layers__sliding_block_cached__dense_activation_mish__decode'
DEBUG = '--debug' in sys.argv
DBGOUT = '--dbgout' in sys.argv
OPT = dict(x[2:].split('=') for x in sys.argv[1:] if x.startswith('--') and '=' in x)
INF = int(OPT.get('inf', 5))
VFREE = int(OPT.get('vfree', 18))
WOE = int(OPT.get('woe', 2))
NT = {'nt': ' nt', 'plain': ''}[OPT.get('pol', 'nt')]
LATE = int(OPT.get('late', 3))
B0 = int(OPT.get('b0', 1))
TRIG = int(OPT.get('trig', 12))
TOUCH = int(OPT.get('touch', 0))
SN1P = OPT.get('sn1', 'after')
SN2P = OPT.get('sn2', 'after')
SBAR = int(OPT.get('sbar', 3))
DUP = int(OPT.get('dup', 0))
PREW = int(OPT.get('prew', 0))
SENT = int(OPT.get('sent', 3))
OUT = [x for x in sys.argv[1:] if not x.startswith('--')]
OUT = OUT[0] if OUT else 'cdna_kernels/%s.s' % NAME


def f2u(x):
    return struct.unpack('<I', struct.pack('<f', x))[0]


LB = 0xC0000
COPY2 = 0x200000
RECS, ROWS = int(OPT.get('recs', 896)), int(OPT.get('rows', 2688))
QP, AT, ML, QS, YY, HP, HS, ZZ, SN1, SN2 = 0x0, 0x40000, 0x80000, 0x82000, 0x84000, 0x90000, 0x9C000, 0xA0000, 0xB2000, 0xB3000
CS, CS1, X2, XC, EPOCH = 0x180000, 0x1C0000, 0x1D0000, 0x1D8000, 0x1E0000
STAMPS = 0x800000
RS, HSZ = 400, 3200
IMGQ, IMGR = 0, 6400
QV = 12800
FLG = 13440
RED = 13824
RED2 = RED + 2 * 16384
LDS_BYTES = RED2 + 8 * 256
sX, sK, sV, sWQ, sWO, sW1, sB1, sW2, sOUT, sWS = 4, 6, 8, 10, 12, 16, 18, 20, 22, 26
sG, sR_, sH, sJ, sWV, sTAG, sEP, sROLE, sRA, sRB, sCNT, sLAY = 28, 29, 30, 31, 32, 33, 34, 35, 36, 37, 38, 39
sB = 40
sFAST, sRED = 42, 43
sT0, sT1, sT2, sT3 = 46, 47, 48, 49
sMASK = 50
sEXA, sEXB = 52, 54
sU, sHI = 56, 57
LIMIT = 1 << 21


def sp(n):
    return 's[%d:%d]' % (n, n + 1)


def vr(n, k=1):
    return 'v%d' % n if k == 1 else 'v[%d:%d]' % (n, n + k - 1)


a = Asm()
ool = []


PROBE = OPT.get('probe')
ONLY = OPT['only'].split(',') if 'only' in OPT else None
CUR = ['W']


def stamp(i, w=True):
    if PROBE is not None and PROBE != 'end' and int(PROBE) == i:
        Lp = a.newlabel('probe')
        a('s_cmp_lg_u32 s%d, 0' % sLAY)
        a.branch('s_cbranch_scc1', Lp)
        a('s_memrealtime s[64:65]')
        a('s_waitcnt lgkmcnt(0)')
        a.label(Lp)
    if DEBUG and (ONLY is None or (CUR[0] + str(i)) in ONLY):
        a('s_memrealtime s[%d:%d]' % (64 + 2 * i, 65 + 2 * i))
        a('s_waitcnt lgkmcnt(0)')


vLANE, vIDX, vMLO, vMHI = 0, 1, 2, 3


def lane_fields(l8=None, lg=None):
    if l8 is not None:
        a('v_and_b32 v%d, 7, v%d' % (l8, vLANE))
    if lg is not None:
        a('v_lshrrev_b32 v%d, 3, v%d' % (lg, vLANE))


def perm_lg(dst, t):
    a('v_bfe_u32 v%d, v%d, 3, 1' % (dst, vLANE))
    a('v_bfe_u32 v%d, v%d, 4, 1' % (t, vLANE))
    a('v_lshl_add_u32 v%d, v%d, 3, v%d' % (dst, t, dst))
    a('v_bfe_u32 v%d, v%d, 5, 1' % (t, vLANE))
    a('v_lshl_add_u32 v%d, v%d, 1, v%d' % (dst, t, dst))


def fstore(text):
    Ls = a.newlabel('slow')
    Lb = a.newlabel('back')
    a('s_cmp_eq_u32 s%d, 0' % sFAST)
    a.branch('s_cbranch_scc1', Ls)
    a(text)
    a.label(Lb)
    ool.append((Ls, text + ' sc1', Lb))


def tagcheck(words, vT, d, d2, full=()):
    words = list(words)
    if len(words) % 2:
        words.append(words[-1])
    first = True
    pend = []
    for i in range(0, len(words), 2):
        dst = d if first else d2 + (len(pend) % 2)
        a('v_bitop3_b32 v%d, v%d, v%d, v%d bitop3:0x7e' % (dst, words[i], words[i + 1], vT))
        if not first:
            pend.append(dst)
            if len(pend) == 2:
                a('v_or3_b32 v%d, v%d, v%d, v%d' % (d, d, pend[0], pend[1]))
                pend = []
        first = False
    if pend:
        a('v_or_b32 v%d, v%d, v%d' % (d, d, pend[0]))
    full = list(full)
    assert len(full) % 2 == 0
    if not full:
        a('v_cmp_ne_u32_sdwa vcc, v%d, 0 src0_sel:BYTE_0 src1_sel:DWORD' % d)
        return
    for i in range(0, len(full), 2):
        a('v_bitop3_b32 v%d, v%d, v%d, s%d bitop3:0x7e' % (d2 + i // 2, full[i], full[i + 1], sEP))
    if len(full) == 4:
        a('v_or_b32 v%d, v%d, v%d' % (d2, d2, d2 + 1))
    a('v_or_b32_sdwa v%d, v%d, v%d dst_sel:DWORD dst_unused:UNUSED_PAD src0_sel:BYTE_0 src1_sel:DWORD' % (d, d, d2))
    a('v_cmp_ne_u32 vcc, 0, v%d' % d)


retry = []


def retry_branch(L, sleep=0):
    R = a.newlabel('retry')
    a.branch('s_cbranch_vccnz', R)
    retry.append((R, L, sleep))


def spin_tail(L, sleep=0):
    if sleep:
        a('s_sleep %d' % sleep)
    a('s_add_u32 s%d, s%d, 1' % (sCNT, sCNT))
    a('s_cmp_lt_u32 s%d, %d' % (sCNT, LIMIT))
    a.branch('s_cbranch_scc1', L)
    a.branch('s_branch', 'L_end')


def poll(loads, words, vT, d, d2, full=(), sleep=0, bump=()):
    L = a.newlabel('poll')
    D = a.newlabel('polld')
    a('s_mov_b32 s%d, 0' % sCNT)
    a.label(L)
    loads()
    for r_ in bump:
        a('v_or_b32 v%d, 0x%x, v%d' % (r_, COPY2, r_))
    a('s_waitcnt vmcnt(0)')
    tagcheck(words, vT, d, d2, full)
    retry_branch(L, sleep)


PIPE = int(OPT.get('pipe', 0))


def poll2(loads, check, n, first):
    L = a.newlabel('pp')
    D = a.newlabel('ppd')
    D0 = a.newlabel('ppd0')
    a('s_mov_b32 s%d, 0' % sCNT)
    if not PIPE:
        a.label(L)
        loads(0)
        a('s_waitcnt vmcnt(0)')
        check(0)
        retry_branch(L)
        first(0)
        return
    a('s_waitcnt vmcnt(0)')
    loads(0)
    a.label(L)
    loads(1)
    a('s_waitcnt vmcnt(%d)' % n)
    check(0)
    a.branch('s_cbranch_vccz', D0)
    a('s_add_u32 s%d, s%d, 1' % (sCNT, sCNT))
    a('s_cmp_ge_u32 s%d, %d' % (sCNT, LIMIT))
    a.branch('s_cbranch_scc1', 'L_end')
    loads(0)
    a('s_waitcnt vmcnt(%d)' % n)
    check(1)
    a.branch('s_cbranch_vccnz', L)
    first(1)
    a.branch('s_branch', D)
    a.label(D0)
    first(0)
    a.label(D)


def sentinel(base, n, ad, t):
    L = a.newlabel('sent')
    D = a.newlabel('sentd')
    a('s_lshl_b32 s%d, s%d, 7' % (sT0, sG))
    a('s_add_u32 s%d, s%d, 0x%x' % (sT0, sT0, base))
    a('v_min_u32 v%d, %d, v%d' % (ad, n - 1, vLANE))
    a('v_lshl_add_u32 v%d, v%d, 2, s%d' % (ad, ad, sT0))
    a('s_cmp_eq_u32 s%d, 0' % sFAST)
    a.branch('s_cbranch_scc1', D)
    a('s_mov_b32 s%d, 0' % sCNT)
    a.label(L)
    a('global_load_dword v%d, v%d, %s sc1' % (t, ad, sp(sB)))
    a('s_waitcnt vmcnt(0)')
    a('v_cmp_ne_u32 vcc, s%d, v%d' % (sEP, t))
    retry_branch(L)
    a.label(D)


def rscatter4(r, extra_ror4=False):
    a('v_permlane32_swap_b32 v%d, v%d' % (r, r + 2))
    a('v_permlane32_swap_b32 v%d, v%d' % (r + 1, r + 3))
    a('v_add_f32 v%d, v%d, v%d' % (r, r, r + 2))
    a('v_add_f32 v%d, v%d, v%d' % (r + 1, r + 1, r + 3))
    a('v_permlane16_swap_b32 v%d, v%d' % (r, r + 1))
    a('v_add_f32 v%d, v%d, v%d' % (r, r, r + 1))
    a('v_add_f32_dpp v%d, v%d, v%d row_ror:8 row_mask:0xf bank_mask:0xf' % (r, r, r))
    if extra_ror4:
        a('v_add_f32_dpp v%d, v%d, v%d row_ror:4 row_mask:0xf bank_mask:0xf' % (r, r, r))


def allred8(op, regs):
    for ctl in ('quad_perm:[1,0,3,2]', 'quad_perm:[2,3,0,1]', 'row_half_mirror'):
        for r in regs:
            a('%s_dpp v%d, v%d, v%d %s row_mask:0xf bank_mask:0xf' % (op, r, r, r, ctl))


def img_masks(vMA, tmp):
    return
    a('v_and_b32 v%d, 8, v%d' % (tmp, vLANE))
    a('v_cmp_eq_u32 vcc, 0, v%d' % tmp)
    a('v_mov_b32 v%d, 0xffff' % tmp)
    a('v_cndmask_b32 v%d, 0, v%d, vcc' % (vMA, tmp))
    a('v_cndmask_b32 v%d, v%d, 0, vcc' % (vMA + 1, tmp))


def img_addr(dst, rr, tmp, base):
    a('v_and_b32 v%d, 7, v%d' % (tmp, rr))
    a('v_mul_u32_u24 v%d, %d, v%d' % (dst, RS, tmp))
    a('v_and_b32 v%d, 0xfffffff8, v%d' % (tmp, rr))
    a('v_add_u32 v%d, v%d, v%d' % (dst, dst, tmp))
    a('v_and_b32 v%d, 8, v%d' % (tmp, vLANE))
    a('v_lshrrev_b32 v%d, 3, v%d' % (tmp, tmp))
    a('v_mul_u32_u24 v%d, %d, v%d' % (tmp, HSZ + 4, tmp))
    a('v_add_u32 v%d, v%d, v%d' % (dst, dst, tmp))
    if base:
        a('v_add_u32 v%d, %d, v%d' % (dst, base, dst))


def img_write(pk, vMA, pair, addr):
    a('ds_write_b16 v%d, v%d' % (addr, pk))


def addtag(regs, vT):
    for r in regs:
        a('v_and_or_b32 v%d, v%d, s%d, v%d' % (r, r, sMASK, vT))


vIRD, vCS, vCS1, vB1, vPUB = 122, 123, 124, 125, 126
WROLE, WWQ = 32, 80


def zero4(acc):
    for k in range(4):
        a('v_mov_b32 v%d, 0' % (acc + k))


def gemv(nP, wbase, imgoff, tmp, acc, rdaddr):
    for i in range(nP):
        a('ds_read_b128 %s, v%d offset:%d' % (vr(tmp + 4 * i, 4), rdaddr, imgoff + 16 * i))
    for i in range(nP):
        a('s_waitcnt lgkmcnt(%d)' % (nP - 1 - i))
        a('v_smfmac_f32_16x16x64_bf16 %s, %s, %s, v%d' % (vr(acc, 4), vr(tmp + 4 * i, 4), vr(wbase + 8 * i, 8), vIDX))


def colsum(nP, wbase, A, acc):
    zero4(acc)
    for k in range(4):
        a('v_and_b32 v%d, 0x3f80, v%d' % (A + k, vMLO + k % 2))
    for i in range(nP):
        a('v_smfmac_f32_16x16x64_bf16 %s, %s, %s, v%d' % (vr(acc, 4), vr(A, 4), vr(wbase + 8 * i, 8), vIDX))


def wloads(nP, wbase, ad, ptr, rowbytes, lo=0, hi=None):
    for i in range(lo, 2 * nP if hi is None else hi):
        a('global_load_dwordx4 %s, v%d, %s' % (vr(wbase + 4 * i, 4), ad, sp(ptr)) + NT)
        if i < 2 * nP - 1:
            a('v_add_u32 v%d, %d, v%d' % (ad, rowbytes * (4 if i % 2 == 0 else 12), ad))


def classadd(acc, out):
    a('v_permlane32_swap_b32 v%d, v%d' % (acc, acc + 2))
    a('v_permlane32_swap_b32 v%d, v%d' % (acc + 1, acc + 3))
    a('v_add_f32_dpp v%d, v%d, v%d row_ror:8 row_mask:0xf bank_mask:0xf' % (out, acc + 2, acc))
    a('v_add_f32_dpp v%d, v%d, v%d row_ror:8 row_mask:0xf bank_mask:0xf' % (out + 1, acc + 3, acc + 1))


def pub2(addr, data, fast, vT, base=None):
    addtag([data, data + 1], vT)
    a('s_mov_b64 exec, %s' % sp(sEXB))
    t = 'global_store_dwordx2 v%d, %s, %s' % (addr, vr(data, 2), sp(sB if base is None else base))
    if fast:
        fstore(t)
    else:
        a(t + ' sc1')
    a('s_mov_b64 exec, -1')


def stats_pre(addr_fn, nrd):
    ad, pa, t, vT, x = 5, 4, 8, 9, 10
    a('v_and_b32 v%d, 7, v%d' % (t, vLANE))
    a('v_lshrrev_b32 v%d, 3, v%d' % (ad, vLANE))
    a('v_mul_u32_u24 v%d, %d, v%d' % (ad, RS, ad))
    a('v_lshl_add_u32 v%d, v%d, 3, v%d' % (ad, t, ad))
    addr_fn()
    a('v_lshrrev_b32 v%d, 5, v%d' % (t, vLANE))
    a('v_lshl_add_u32 v%d, v%d, 3, s%d' % (pa, t, sT0))
    a('v_mov_b32 v%d, s%d' % (vT, sTAG))
    for i in range(nrd):
        a('v_mov_b32 v%d, 0' % (x + i))
    a('v_mov_b32 v17, s%d' % sEP)


def stats_wave(imgbase, nrd):
    ad, pa, s1, s2, t, vT, x = 5, 4, 16, 7, 8, 9, 10
    for i in range(nrd):
        a('ds_read_u16_d16_hi v%d, v%d offset:%d' % (x + i, ad, imgbase + 64 * i))
    a('s_waitcnt lgkmcnt(%d)' % (nrd - 2))
    a('v_mul_f32 v%d, v%d, v%d' % (s2, x, x))
    a('v_add_f32 v%d, v%d, v%d' % (s1, x, x + 1))
    a('v_fmac_f32 v%d, v%d, v%d' % (s2, x + 1, x + 1))
    for i in range(2, nrd):
        a('s_waitcnt lgkmcnt(%d)' % (nrd - 1 - i))
        a('v_add_f32 v%d, v%d, v%d' % (s1, s1, x + i))
        a('v_fmac_f32 v%d, v%d, v%d' % (s2, x + i, x + i))
    a('v_permlane32_swap_b32 v%d, v%d' % (s1, s2))
    a('v_add_f32 v%d, v%d, v%d' % (s1, s1, s2))
    allred8('v_add_f32', [s1])
    a('v_add_f32_dpp v%d, v%d, v%d row_ror:8 row_mask:0xf bank_mask:0xf' % (s1, s1, s1))
    a('v_add_f32_dpp v%d, v%d, v%d row_bcast:15 row_mask:0xa bank_mask:0xf' % (s1, s1, s1))
    a('s_mov_b32 exec_lo, 0x10000')
    a('s_mov_b32 exec_hi, 0x10000')
    addtag([s1], vT)
    fstore('global_store_dwordx2 v%d, %s, %s' % (pa, vr(s1, 2), sp(sB)))
    a('s_mov_b64 exec, -1')


def ln_from_stats(s1, s2):
    a('v_mul_f32 v%d, 0x%08x, v%d' % (s1, f2u(1.0 / 640), s1))
    a('v_mul_f32 v%d, 0x%08x, v%d' % (s2, f2u(1.0 / 640), s2))
    a('v_fma_f32 v%d, -v%d, v%d, v%d' % (s2, s1, s1, s2))
    a('v_max_f32 v%d, 0, v%d' % (s2, s2))
    a('v_add_f32 v%d, 0x%08x, v%d' % (s2, f2u(1e-5), s2))
    a('v_rsq_f32 v%d, v%d' % (s2, s2))


def resid_round(y, xprev, pk):
    a('v_cvt_pk_bf16_f32 v%d, v%d, v%d' % (y, y, y))
    a('v_and_b32 v%d, s%d, v%d' % (y, sHI, y))
    a('v_add_f32 v%d, v%d, v%d' % (y, y, xprev))
    a('v_cvt_pk_bf16_f32 v%d, v%d, v%d' % (pk, y, y))


def sent_store(off_sreg, base, ad, dv):
    a('s_lshl_b32 s%d, s%d, 7' % (sT2, sG))
    a('s_lshl_b32 s%d, s%d, 2' % (sT3, off_sreg))
    a('s_add_u32 s%d, s%d, s%d' % (sT2, sT2, sT3))
    a('s_add_u32 s%d, s%d, 0x%x' % (sT2, sT2, base))
    a('v_mov_b32 v%d, s%d' % (ad, sT2))
    a('v_mov_b32 v%d, s%d' % (dv, sEP))


def sent_fire(ad, dv):
    a('s_mov_b64 exec, 1')
    a('global_store_dword v%d, v%d, %s' % (ad, dv, sp(sB)))
    a('s_mov_b64 exec, -1')


def prefetch_own(off):
    a('s_lshl_b32 s%d, s%d, 3' % (sT0, sH))
    a('s_add_u32 s%d, s%d, s%d' % (sT0, sT0, sJ))
    a('s_mul_i32 s%d, s%d, %d' % (sT0, sT0, RECS))
    a('s_add_u32 s%d, s%d, 0x%x' % (sT0, sT0, off))
    a('v_min_u32 v5, 47, v0')
    a('v_lshl_add_u32 v5, v5, 4, s%d' % sT0)
    a('v_add_u32 v6, 0x%x, v5' % AT)
    a('s_lshl_b32 s%d, s%d, 7' % (sT0, sH))
    a('s_add_u32 s%d, s%d, 0x%x' % (sT0, sT0, ML + off))
    a('s_lshl_b32 s%d, s%d, 7' % (sT1, sG))
    a('s_add_u32 s%d, s%d, 0x%x' % (sT2, sT1, SN1 + off))
    a('s_add_u32 s%d, s%d, 0x%x' % (sT3, sT1, SN2 + off))
    a('s_mul_i32 s%d, s%d, %d' % (sT1, sG, 3 * 2048))
    a('s_add_u32 s%d, s%d, 0x%x' % (sT1, sT1, HP + off))
    a('v_min_u32 v7, 47, v0')
    a('v_lshl_add_u32 v7, v7, 7, s%d' % sT1)
    a('s_mul_i32 s%d, s%d, 384' % (sT1, sG))
    a('s_add_u32 s%d, s%d, 0x%x' % (sT1, sT1, HS + off))
    a('v_min_u32 v8, 2, v0')
    a('v_lshl_add_u32 v8, v8, 7, s%d' % sT1)
    a('v_writelane_b32 v8, s%d, 3' % sT0)
    a('v_writelane_b32 v8, s%d, 4' % sT2)
    a('v_writelane_b32 v8, s%d, 5' % sT3)
    a('s_add_u32 s%d, s%d, 0x%x' % (sT0, sT0, QS - ML))
    a('v_writelane_b32 v8, s%d, 6' % sT0)
    if off:
        a('global_load_dwordx4 v[64:67], v5, %s sc1' % sp(sB))
    a('global_load_dwordx4 v[68:71], v6, %s sc1' % sp(sB))
    a('global_load_dword v72, v7, %s sc1' % sp(sB))
    a('global_load_dword v73, v8, %s sc1' % sp(sB))


hdr = open('cdna_kernels/%s.s.ref' % NAME).read().split('; Override launch')[0]
a.raw(hdr.rstrip('\n'))
a.raw('; @launch grid=(256,1,1) block=(1024,1,1) lds=%d' % LDS_BYTES)
a.raw('.amdgcn_target "amdgcn-amd-amdhsa--gfx950"')
a.raw('.text')
a.raw('.globl %s_kernel' % NAME)
a.raw('.p2align 8')
a.raw('.type %s_kernel,@function' % NAME)
a.raw('%s_kernel:' % NAME)

a('s_cmp_ge_u32 s2, 256')
a.branch('s_cbranch_scc1', 'L_exit')
a('s_load_dwordx16 s[4:19], s[0:1], 0')
a('s_load_dwordx8 s[20:27], s[0:1], 64')
if PROBE is not None:
    a('s_memrealtime s[96:97]')
if DEBUG:
    a('s_memrealtime s[96:97]')
    a('s_memtime s[100:101]')
a('v_lshrrev_b32 v5, 6, v0')
a('v_and_b32 v0, 63, v0')
a('v_readfirstlane_b32 s%d, v5' % sWV)
a('s_and_b32 s%d, s2, 7' % sG)
a('s_lshr_b32 s%d, s2, 3' % sR_)
a('s_lshr_b32 s%d, s%d, 3' % (sT0, sR_))
a('s_lshl_b32 s%d, s%d, 2' % (sH, sG))
a('s_add_u32 s%d, s%d, s%d' % (sH, sH, sT0))
a('s_and_b32 s%d, s%d, 7' % (sJ, sR_))


def rest_setup():
    Lrd = a.newlabel('roledone')
    a('s_add_u32 s%d, s%d, 0x%x' % (sT0, sWS, EPOCH))
    a('s_addc_u32 s%d, s%d, 0' % (sT1, sWS + 1))
    a('s_load_dword s%d, %s, 0' % (sEP, sp(sT0)))
    a('s_mov_b64 %s, %s' % (sp(sB), sp(sWS)))
    a('s_mov_b32 s%d, 0xffffff00' % sMASK)
    a('s_mov_b32 s%d, 0xffff0000' % sHI)
    a('s_mov_b32 s%d, 0x00ff00ff' % sEXA)
    a('s_mov_b32 s%d, 0xff00ff00' % (sEXA + 1))
    a('s_mov_b32 s%d, 0x00ff00ff' % sEXB)
    a('s_mov_b32 s%d, 0x00ff00ff' % (sEXB + 1))
    a('s_mov_b32 s%d, 0' % sLAY)
    a('s_mov_b32 s%d, 0' % sFAST)
    a('s_mov_b32 s%d, %d' % (sRED, RED))
    a('s_cmp_ge_u32 s%d, 10' % sR_)
    a('s_cselect_b32 s%d, 1, 0' % sRA)
    a('s_mul_i32 s%d, s%d, 10' % (sT2, sRA))
    a('s_sub_u32 s%d, s%d, s%d' % (sRB, sR_, sT2))
    a('s_mov_b32 s%d, 0' % sROLE)
    a('s_cmp_lt_u32 s%d, 20' % sR_)
    a.branch('s_cbranch_scc1', Lrd)
    a('s_cmp_ge_u32 s%d, 26' % sR_)
    a('s_cselect_b32 s%d, 2, 1' % sROLE)
    a('s_cselect_b32 s%d, 26, 20' % sT2)
    a('s_sub_u32 s%d, s%d, s%d' % (sT2, sR_, sT2))
    a('s_and_b32 s%d, s%d, 1' % (sRB, sT2))
    a('s_lshr_b32 s%d, s%d, 1' % (sT2, sT2))
    a('s_mul_i32 s%d, s%d, 3' % (sRA, sG))
    a('s_add_u32 s%d, s%d, s%d' % (sRA, sRA, sT2))
    a.label(Lrd)
    a('v_and_b32 v4, 3, v0')
    a('s_mov_b32 s%d, 0x55555555' % sT2)
    a('v_mul_lo_u32 v%d, v4, s%d' % (vIDX, sT2))
    a('v_and_b32 v4, 4, v0')
    a('v_cmp_eq_u32 vcc, 0, v4')
    a('v_mov_b32 v4, 0xffff')
    a('v_cndmask_b32 v%d, 0, v4, vcc' % vMLO)
    a('v_cndmask_b32 v%d, v4, 0, vcc' % vMHI)


a('s_cmp_ge_u32 s%d, 8' % sWV)
a.branch('s_cbranch_scc1', 'L_kv')


sH1D, sH1M, sH1R = 44, 45, 51


def h1_scalars():
    a('s_cmp_ge_u32 s%d, 6' % sU)
    a('s_cselect_b32 s%d, 1, 0' % sT0)
    a('s_mul_i32 s%d, s%d, 6' % (sT1, sT0))
    a('s_sub_u32 s%d, s%d, s%d' % (sT1, sU, sT1))
    a('s_lshl_b32 s%d, s%d, 2' % (sT2, sG))
    a('s_and_b32 s%d, s%d, 1' % (sT3, sRA))
    a('s_lshl_b32 s%d, s%d, 1' % (sT3, sT3))
    a('s_add_u32 s%d, s%d, s%d' % (sT2, sT2, sT3))
    a('s_add_u32 s%d, s%d, s%d' % (sT2, sT2, sT0))
    a('s_mul_i32 s%d, s%d, %d' % (sH1D, sT2, 8 * RECS))
    a('s_lshl_b32 s%d, s%d, 7' % (sT3, sT1))
    a('s_add_u32 s%d, s%d, s%d' % (sH1D, sH1D, sT3))
    a('s_add_u32 s%d, s%d, 0x%x' % (sH1D, sH1D, AT))
    a('s_lshl_b32 s%d, s%d, 7' % (sH1M, sT2))
    a('s_add_u32 s%d, s%d, 0x%x' % (sH1M, sH1M, ML))
    a('s_mul_i32 s%d, s%d, 192' % (sH1R, sT0))
    a('s_lshl_b32 s%d, s%d, 5' % (sT3, sT1))
    a('s_add_u32 s%d, s%d, s%d' % (sH1R, sH1R, sT3))


def h1_gather():
    vT, vMA, aD, aA, aC, aI = 5, 6, 8, 9, 10, 11
    d, d2, t = 24, 25, 27
    wA, wC = 4, 10
    SD, W = 12, 28
    lane_fields(l8=d, lg=d2)
    a('v_lshl_add_u32 v%d, v%d, 4, s%d' % (aA, d, sH1M))
    a('v_lshl_add_u32 v%d, v%d, 4, s%d' % (aC, d2, sH1M))

    def mloads():
        a('global_load_dwordx2 v[18:19], v%d, %s sc1' % (aA, sp(sB)))
        a('global_load_dwordx2 v[20:21], v%d, %s sc1' % (aC, sp(sB)))

    def loads():
        a('global_load_dwordx2 %s, v%d, %s offset:8 sc1' % (vr(SD + 4, 2), aA, sp(sB)))
        a('global_load_dwordx4 %s, v%d, %s sc1' % (vr(SD, 4), aD, sp(sB)))
    mloads()
    a('v_mul_u32_u24 v%d, %d, v%d' % (aD, RECS, d2))
    a('v_lshl_add_u32 v%d, v%d, 4, v%d' % (aD, d, aD))
    a('v_add_u32 v%d, s%d, v%d' % (aD, sH1D, aD))
    a('v_mov_b32 v%d, s%d' % (vT, sTAG))
    img_masks(vMA, t)
    a('v_lshrrev_b32 v%d, 4, v%d' % (d2, vLANE))
    a('v_lshl_add_u32 v%d, v%d, 2, v%d' % (d2, d, d2))
    a('v_add_u32 v%d, s%d, v%d' % (d2, sH1R, d2))
    img_addr(aI, d2, t, IMGR)
    L1 = a.newlabel('h1m')
    L1w = a.newlabel('h1mw')
    L1d = a.newlabel('h1md')
    a('s_mov_b32 s%d, 0' % sCNT)
    a.branch('s_branch', L1w)
    a.label(L1)
    mloads()
    a.label(L1w)
    a('s_waitcnt vmcnt(0)')
    a('v_bitop3_b32 v%d, v19, v21, s%d bitop3:0x7e' % (d, sEP))
    a('v_cmp_ne_u32 vcc, 0, v%d' % d)
    retry_branch(L1)
    loads()
    a('v_mov_b32 v%d, v18' % t)
    allred8('v_max_f32', [t])
    a('v_sub_f32 v18, v18, v%d' % t)
    a('v_sub_f32 v20, v20, v%d' % t)
    a('v_exp_f32 v%d, v18' % wA)
    a('v_exp_f32 v%d, v20' % wC)
    L2 = a.newlabel('h1d')
    L2w = a.newlabel('h1dw')
    L2d = a.newlabel('h1dd')
    a.branch('s_branch', L2w)
    a.label(L2)
    loads()
    a.label(L2w)
    a('s_waitcnt vmcnt(0)')
    tagcheck(list(range(SD, SD + 4)), vT, d, d2, full=[SD + 5, SD + 5])
    for i in range(4):
        a('v_mul_f32 v%d, v%d, v%d' % (W + i, SD + i, wC))
    a('v_mul_f32 v%d, v%d, v%d' % (t, SD + 4, wA))
    retry_branch(L2)
    stamp(4)
    r = W
    dp = lambda c: 'v_add_f32_dpp v%d, v%d, v%d %s row_mask:0xf bank_mask:0xf' % (t, t, t, c)
    a('v_permlane32_swap_b32 v%d, v%d' % (r, r + 2))
    a('v_permlane32_swap_b32 v%d, v%d' % (r + 1, r + 3))
    a(dp('quad_perm:[1,0,3,2]'))
    a('v_add_f32 v%d, v%d, v%d' % (r, r, r + 2))
    a('v_add_f32 v%d, v%d, v%d' % (r + 1, r + 1, r + 3))
    a(dp('quad_perm:[2,3,0,1]'))
    a('v_permlane16_swap_b32 v%d, v%d' % (r, r + 1))
    a('v_add_f32 v%d, v%d, v%d' % (r, r, r + 1))
    a(dp('row_half_mirror'))
    a('v_rcp_f32 v%d, v%d' % (t, t))
    a('v_add_f32_dpp v%d, v%d, v%d row_ror:8 row_mask:0xf bank_mask:0xf' % (r, r, r))
    a('v_mul_f32 v%d, v%d, v%d' % (r, r, t))
    a('v_cvt_pk_bf16_f32 v%d, v%d, v%d' % (r, r, r))
    img_write(r, vMA, r + 2, aI)
    a('s_waitcnt lgkmcnt(0)')


def h2_gather():
    vT, vMA, aD, aD2, aI, aX, xp = 5, 6, 8, 9, 10, 11, 22
    D, E, d, d2, t = 12, 16, 24, 25, 27
    a('v_mov_b32 v%d, s%d' % (vT, sTAG))
    img_masks(vMA, t)
    lane_fields(l8=d, lg=d2)
    a('s_mul_i32 s%d, s%d, 1280' % (sT0, sRB))
    a('s_lshl_b32 s%d, s%d, 7' % (sT1, sU))
    a('s_add_u32 s%d, s%d, s%d' % (sT0, sT0, sT1))
    a('s_add_u32 s%d, s%d, 0x%x' % (sT2, sT0, YY))
    a('v_mul_u32_u24 v%d, %d, v%d' % (aD, ROWS, d2))
    a('v_lshl_add_u32 v%d, v%d, 4, v%d' % (aD, d, aD))
    a('v_add_u32 v%d, s%d, v%d' % (aD, sT2, aD))
    a('v_add_u32 v%d, %d, v%d' % (aD2, 8 * ROWS, aD))
    a('v_lshrrev_b32 v%d, 4, v%d' % (d2, vLANE))
    a('v_lshl_add_u32 v%d, v%d, 2, v%d' % (d2, d, d2))
    a('s_lshl_b32 s%d, s%d, 5' % (sT1, sU))
    a('v_add_u32 v%d, s%d, v%d' % (d2, sT1, d2))
    img_addr(aI, d2, t, IMGR)
    a('s_mul_i32 s%d, s%d, 320' % (sT1, sRB))
    a('v_add_u32 v%d, s%d, v%d' % (d2, sT1, d2))
    Lk1 = a.newlabel('h2k1')
    Lj = a.newlabel('h2j')
    a('s_cmp_lg_u32 s%d, 0' % sLAY)
    a.branch('s_cbranch_scc1', Lk1)
    a('v_lshlrev_b32 v%d, 1, v%d' % (aX, d2))
    a('global_load_ushort v%d, v%d, %s' % (xp, aX, sp(sX)))
    a('s_waitcnt vmcnt(0)')
    a('v_lshlrev_b32 v%d, 16, v%d' % (xp, xp))
    a.branch('s_branch', Lj)
    a.label(Lk1)
    a('v_lshlrev_b32 v%d, 2, v%d' % (aX, d2))
    a('v_add_u32 v%d, 0x%x, v%d' % (aX, X2, aX))
    poll(lambda: a('global_load_dword v%d, v%d, %s sc1' % (xp, aX, sp(sWS))), [xp], vT, d, t)
    a('v_and_b32 v%d, s%d, v%d' % (xp, sHI, xp))
    a.label(Lj)
    a('v_lshlrev_b32 v%d, 2, v%d' % (aX, d2))
    a('v_add_u32 v%d, 0x%x, v%d' % (aX, ZZ + 24 * ROWS, aX))
    if SBAR & 1:
        a('s_barrier')
        stamp(6)
    elif SENT & 1:
        sentinel(SN1, 20, d, d2)
        stamp(6)

    def loads():
        a('global_load_dwordx4 %s, v%d, %s sc1' % (vr(D, 4), aD, sp(sB)))
        a('global_load_dwordx4 %s, v%d, %s sc1' % (vr(E, 4), aD2, sp(sB)))
    poll(loads, list(range(D, D + 8)), vT, d, d2, bump=(aD, aD2) if DUP & 1 else ())
    stamp(4)
    for k in range(4):
        a('v_add_f32 v%d, v%d, v%d' % (D + k, D + k, E + k))
    rscatter4(D)
    resid_round(D, xp, D)
    img_write(D, vMA, E, aI)
    Ls = a.newlabel('h2s')
    a('s_cmp_lg_u32 s%d, 0' % sRA)
    a.branch('s_cbranch_scc1', Ls)
    a('v_and_or_b32 v%d, v%d, s%d, v%d' % (D, D, sHI, vT))
    a('s_mov_b64 exec, %s' % sp(sEXB))
    a('global_store_dword v%d, v%d, %s sc1' % (aX, D, sp(sB)))
    a('s_mov_b64 exec, -1')
    a.label(Ls)
    a('s_waitcnt lgkmcnt(0)')


def dump_stamps():
    if not DEBUG:
        return
    a('s_memrealtime s[98:99]')
    a('s_memtime s[60:61]')
    a('s_lshl_b32 s%d, s2, 4' % sT0)
    a('s_add_u32 s%d, s%d, s%d' % (sT0, sT0, sWV))
    a('s_lshl_b32 s%d, s%d, 8' % (sT0, sT0))
    a('s_add_u32 s%d, s%d, 0x%x' % (sT0, sT0, STAMPS))
    a('s_waitcnt lgkmcnt(0)')
    Lk = a.newlabel('dbgk')
    Lp = a.newlabel('dbgp')
    a('v_mov_b32 v5, 0x%x' % EPOCH)
    a('s_mov_b32 s%d, 0' % sCNT)
    a.label(Lp)
    a('s_sleep 100')
    a('global_load_dword v6, v5, %s sc1' % sp(sWS))
    a('s_waitcnt vmcnt(0)')
    a('s_add_u32 s%d, s%d, 1' % (sCNT, sCNT))
    a('s_cmp_gt_u32 s%d, 20000' % sCNT)
    a.branch('s_cbranch_scc1', Lk)
    a('v_cmp_ne_u32 vcc, s%d, v6' % sEP)
    a.branch('s_cbranch_vccnz', Lp)
    a.label(Lk)
    a('v_mov_b32 v5, s%d' % sT0)
    a('s_mov_b64 exec, 1')
    for i in range(18):
        a('v_mov_b32 v6, s%d' % (64 + 2 * i))
        a('v_mov_b32 v7, s%d' % (65 + 2 * i))
        a('global_store_dwordx2 v5, v[6:7], %s offset:%d' % (sp(sWS), 8 * i))
    a('v_mov_b32 v6, s62')
    a('v_mov_b32 v7, s63')
    a('global_store_dwordx2 v5, v[6:7], %s offset:%d' % (sp(sWS), 8 * 19))
    a('s_sub_u32 s60, s60, s100')
    a('v_mov_b32 v6, s60')
    a('v_mov_b32 v7, 0')
    a('global_store_dwordx2 v5, v[6:7], %s offset:%d' % (sp(sWS), 8 * 18))
    if DBGOUT:
        Lq = a.newlabel('dbgq')
        a('s_cmp_lg_u32 s%d, 0' % sWV)
        a.branch('s_cbranch_scc1', Lq)
        a('v_mov_b32 v5, 0')
        a('s_not_b32 s%d, s96' % sT0)
        lst = [sT0, 98, 96] + [64 + 2 * st for st in [8 + 0, 8 + 1, 8 + 2, 8 + 3, 8 + 4, 8 + 6, 8 + 7, 0, 2, 3, 5, 6, 7]]
        for (i, sr) in enumerate(lst):
            a('v_mov_b32 v6, s%d' % sr)
            a('global_atomic_umax v5, v6, s[24:25] offset:%d' % (4 * i))
        a.label(Lq)
    a('s_mov_b64 exec, -1')


def next_layer():
    if DEBUG:
        for i in range(8):
            a('s_mov_b64 s[%d:%d], s[%d:%d]' % (80 + 2 * i, 81 + 2 * i, 64 + 2 * i, 65 + 2 * i))
    a('s_add_u32 s%d, s%d, 0x%x' % (sB, sB, LB))
    a('s_addc_u32 s%d, s%d, 0' % (sB + 1, sB + 1))
    a('s_mov_b32 s%d, 1' % sLAY)
    a('s_mov_b32 s%d, %d' % (sRED, RED + 16384))


def tag_ready():
    a('s_waitcnt lgkmcnt(0)')
    a('s_add_u32 s%d, s%d, 1' % (sEP, sEP))
    a('s_and_b32 s%d, s%d, 0xff' % (sTAG, sEP))


def read_fast(t):
    a('v_mov_b32 v%d, %d' % (t, FLG + 4))
    a('ds_read_b32 v%d, v%d' % (t, t))
    a('s_waitcnt lgkmcnt(0)')
    a('v_readfirstlane_b32 s%d, v%d' % (sFAST, t))


if DEBUG:
    for i in range(16):
        a('s_mov_b64 s[%d:%d], 0' % (64 + 2 * i, 65 + 2 * i))
a('s_setprio 3')
lane_fields(l8=5)
perm_lg(6, 7)
a('s_mul_i32 s%d, s%d, 160' % (sT1, sJ))
a('v_min_u32 v8, 39, v0')
a('v_lshl_add_u32 v8, v8, 2, s%d' % sT1)
a('s_mul_i32 s%d, s%d, %d' % (sT0, sJ, 80 * 12288))
a('s_mul_i32 s%d, s%d, 384' % (sT1, sH))
a('s_add_u32 s%d, s%d, s%d' % (sT0, sT0, sT1))
a('s_sub_u32 s%d, s%d, 5' % (sT1, sWV))
a('s_lshl_b32 s%d, s%d, 7' % (sT1, sT1))
a('s_add_u32 s%d, s%d, s%d' % (sT0, sT0, sT1))
a('v_mul_u32_u24 v7, 12288, v6')
a('v_lshl_add_u32 v7, v5, 4, v7')
a('v_add_u32 v7, s%d, v7' % sT0)
a('v_lshlrev_b32 v9, 2, v0')
a('s_waitcnt lgkmcnt(0)')
a('s_cmp_lt_u32 s%d, 5' % sWV)
a.branch('s_cbranch_scc1', 'L_w_issued')
a('global_load_dword v12, v8, %s' % sp(sX))
for i in range(5):
    a('global_load_dword v%d, v9, %s offset:%d' % (22 + i, sp(sX), 256 * i))
wloads(5, WWQ, 7, sWQ, 12288)
a.label('L_w_issued')
if B0:
    a('s_barrier')
rest_setup()
a('s_add_u32 s%d, s%d, 4' % (sU, sWV))
h1_scalars()
a('s_mul_i32 s%d, s%d, 800' % (sT0, sWV))
a('v_min_u32 v9, 49, v0')
a('v_lshl_add_u32 v9, v9, 4, s%d' % sT0)
for k in range(4):
    a('v_mov_b32 v%d, 0' % (16 + k))
a('ds_write_b128 v9, v[16:19] offset:%d' % IMGR)
a('v_and_b32 v9, 15, v0')
a('v_lshlrev_b32 v9, 11, v9')
a('v_mov_b32 v10, -1')
a('ds_write_b32 v9, v10 offset:%d' % (RED + 1024 + 768))
lane_fields(l8=5, lg=6)
a('v_lshrrev_b32 v7, 2, v5')
a('v_mul_u32_u24 v7, %d, v7' % HSZ)
a('v_mul_u32_u24 v8, %d, v6' % RS)
a('v_add_u32 v%d, v7, v8' % vIRD)
a('v_bfe_u32 v7, v0, 4, 1')
a('v_lshlrev_b32 v7, 4, v7')
a('v_lshl_add_u32 v7, v5, 5, v7')
a('v_lshrrev_b32 v8, 5, v0')
a('v_lshl_add_u32 v%d, v8, 3, v7' % vPUB)
a('v_mov_b32 v%d, 0' % vCS)
a('v_mov_b32 v121, 0x%x' % X2)
a('v_mov_b32 v120, 0x%x' % X2)
a('v_mov_b32 v127, 0')
a('v_mov_b32 v%d, 0' % vCS1)
a('v_mov_b32 v%d, 0' % vB1)
a('s_cmp_lt_u32 s%d, 5' % sWV)
a.branch('s_cbranch_scc1', 'L_w_x0ok')
a('v_mul_u32_u24 v8, %d, v6' % RS)
a('v_lshl_add_u32 v8, v5, 3, v8')
a('v_mov_b32 v9, 0')
a('ds_write_b32 v8, v9 offset:%d' % (IMGQ + 80))
a('v_min_u32 v8, 39, v0')
a('v_and_b32 v9, 3, v8')
a('v_mul_u32_u24 v9, %d, v9' % (2 * RS))
a('v_lshrrev_b32 v8, 2, v8')
a('v_lshl_add_u32 v8, v8, 3, v9')
for r_ in (15, 17, 18, 20, 28, 29):
    a('v_mov_b32 v%d, 0' % r_)
a('v_mov_b32 v9, 0x3f803f80')
a('s_waitcnt vmcnt(10)')
for i in range(5):
    a('v_dot2c_f32_bf16 v28, v%d, v9' % (22 + i))
    a('v_dot2c_f32_bf16 v29, v%d, v%d' % (22 + i, 22 + i))
allred8('v_add_f32', [28, 29])
for ctl in ('row_ror:8 row_mask:0xf', 'row_bcast:15 row_mask:0xa', 'row_bcast:31 row_mask:0xc'):
    for r_ in (28, 29):
        a('v_add_f32_dpp v%d, v%d, v%d %s bank_mask:0xf' % (r_, r_, r_, ctl))
ln_from_stats(28, 29)
a('v_readlane_b32 s%d, v28, 63' % sT0)
a('v_readlane_b32 s%d, v29, 63' % sT1)
a('v_lshlrev_b32 v14, 16, v12')
a('v_and_b32 v16, s%d, v12' % sHI)
a('v_subrev_f32 v14, s%d, v14' % sT0)
a('v_subrev_f32 v16, s%d, v16' % sT0)
a('v_mul_f32 v14, s%d, v14' % sT1)
a('v_mul_f32 v16, s%d, v16' % sT1)
a('v_cvt_pk_bf16_f32 v12, v14, v16')
a('v_and_b32 v14, 0xffff, v12')
a('v_lshrrev_b32 v16, 16, v12')
a('v_and_b32 v19, 0xffff, v12')
a('v_lshrrev_b32 v21, 16, v12')
a('ds_write_b64 v8, v[14:15] offset:%d' % (IMGQ))
a('ds_write_b64 v8, v[16:17] offset:%d' % (IMGQ + RS))
a('ds_write_b64 v8, v[18:19] offset:%d' % (IMGQ + HSZ))
a('ds_write_b64 v8, v[20:21] offset:%d' % (IMGQ + HSZ + RS))
a.label('L_w_x0ok')
tag_ready()
if OPT.get('wdelay'):
    a('s_barrier')
if TOUCH >= 2:
    a('s_cmp_lg_u32 s%d, 0' % sWV)
    a.branch('s_cbranch_scc1', 'L_w_notouch')
    a('s_mul_i32 s%d, s%d, 768' % (sT0, sG))
    a('s_mul_i32 s%d, s%d, 1280' % (sT0, sT0))
    a('v_min_u32 v5, 14, v0')
    a('v_lshlrev_b32 v5, 16, v5')
    a('v_add_u32 v5, s%d, v5' % sT0)
    a('v_min_u32 v6, 29, v0')
    a('v_lshlrev_b32 v6, 16, v6')
    a('global_load_dword v64, v5, %s' % sp(sWO) + NT)
    a('global_load_dword v65, v6, %s' % sp(sW1) + NT)
    a('global_load_dword v66, v6, %s' % sp(sW2) + NT)
    a.label('L_w_notouch')
a('s_cmp_lg_u32 s%d, 4' % sWV)
a.branch('s_cbranch_scc1', 'L_w_pre')
a('s_getreg_b32 s%d, hwreg(HW_REG_XCC_ID)' % sT0)
a('s_lshl_b32 s%d, s%d, 8' % (sT1, sG))
a('s_lshl_b32 s%d, s%d, 3' % (sT2, sR_))
a('s_add_u32 s%d, s%d, s%d' % (sT1, sT1, sT2))
a('s_add_u32 s%d, s%d, 0x%x' % (sT1, sT1, XC))
a('v_mov_b32 v5, s%d' % sT1)
a('v_mov_b32 v6, s%d' % sT0)
a('v_mov_b32 v7, s%d' % sEP)
a('s_mov_b64 exec, 1')
a('global_store_dwordx2 v5, v[6:7], %s sc1' % sp(sWS))
a('s_mov_b64 exec, -1')

XvT, XvMA, XaD, XaD2, XaI, XaX, Xxp = 5, 6, 8, 9, 10, 11, 22
XD, XE, Xd, Xd2, Xt, Xcol = 12, 16, 24, 25, 27, 23


def q_stats_addr():
    a('s_lshl_b32 s%d, s%d, 3' % (sT0, sH))
    a('s_add_u32 s%d, s%d, s%d' % (sT0, sT0, sJ))
    a('s_lshl_b32 s%d, s%d, 4' % (sT0, sT0))
    a('s_add_u32 s%d, s%d, %d' % (sT0, sT0, QS))


a.label('L_w_pre')
a('s_cmp_lt_u32 s%d, 5' % sWV)
a.branch('s_cbranch_scc1', 'L_w_noq')
a('v_mov_b32 v5, s%d' % sTAG)
a('s_lshl_b32 s%d, s%d, 3' % (sT0, sH))
a('s_add_u32 s%d, s%d, s%d' % (sT0, sT0, sJ))
a('s_mul_i32 s%d, s%d, %d' % (sT0, sT0, RECS))
a('s_sub_u32 s%d, s%d, 5' % (sT1, sWV))
a('s_lshl_b32 s%d, s%d, 8' % (sT1, sT1))
a('s_add_u32 s%d, s%d, s%d' % (sT0, sT0, sT1))
a('v_add_u32 v6, s%d, v%d' % (sT0, vPUB))
zero4(8)
a('s_waitcnt vmcnt(0)')
a('s_cmp_eq_u32 s%d, 0' % sLAY)
a.branch('s_cbranch_scc1', 'L_w_q_nb')
a('s_barrier')
a.label('L_w_q_nb')
stamp(0)
gemv(5, WWQ, IMGQ, 32, 8, vIRD)
classadd(8, 12)
pub2(6, 12, True, 5)
a('s_cmp_lg_u32 s%d, 0' % sLAY)
a.branch('s_cbranch_scc1', 'L_w_qdone')
a('v_add_u32 v121, 0x%x, v6' % CS)
a('s_lshl_b32 s%d, s%d, 2' % (sT0, sWV))
a('s_add_u32 s%d, s%d, %d' % (sT0, sT0, FLG))
a('v_mov_b32 v9, s%d' % sT0)
a('v_mov_b32 v10, s%d' % sEP)
a('s_waitcnt vmcnt(0)')
a('ds_write_b32 v9, v10')
a.label('L_w_noq')
a('v_mov_b32 v9, %d' % FLG)
a.label('L_w_fspin')
a('s_sleep 2')
a('ds_read_b128 v[12:15], v9 offset:16')
a('s_waitcnt lgkmcnt(0)')
a('v_bitop3_b32 v12, v12, v13, s%d bitop3:0x7e' % sEP)
a('v_bitop3_b32 v14, v14, v15, s%d bitop3:0x7e' % sEP)
a('v_or_b32 v12, v12, v14')
a('v_cmp_ne_u32 vcc, 0, v12')
a.branch('s_cbranch_vccnz', 'L_w_fspin')
a('s_cmp_lg_u32 s%d, 6' % sWV)
a.branch('s_cbranch_scc1', 'L_w_qdone')
a('s_lshl_b32 s%d, s%d, 8' % (sT1, sG))
a('s_add_u32 s%d, s%d, 0x%x' % (sT1, sT1, XC))
a('v_and_b32 v5, 31, v0')
a('v_lshl_add_u32 v5, v5, 3, s%d' % sT1)
a('s_mov_b32 s%d, 0' % sCNT)
a.label('L_w_xc')
a('global_load_dwordx2 v[6:7], v5, %s sc1' % sp(sWS))
a('s_waitcnt vmcnt(0)')
a('v_cmp_ne_u32 vcc, s%d, v7' % sEP)
a.branch('s_cbranch_vccz', 'L_w_xcd')
spin_tail('L_w_xc', 8)
a.label('L_w_xcd')
a('s_getreg_b32 s%d, hwreg(HW_REG_XCC_ID)' % sT0)
a('v_cmp_ne_u32 vcc, s%d, v6' % sT0)
a('s_cmp_eq_u64 vcc, 0')
a('s_cselect_b32 s%d, %d, 0' % (sT0, 0 if OPT.get('nofast') else 1))
a('v_mov_b32 v10, s%d' % sT0)
a('ds_write_b32 v9, v10 offset:4')
a('s_waitcnt lgkmcnt(0)')
a.label('L_w_qdone')
stamp(1)
HvT, HaD, HaS, HaC, HaQ = 5, 6, 7, 8, 9
HD, HSt, HC, Hd, Hd2, Ht = 12, 16, 20, 24, 25, 27
a('s_cmp_ge_u32 s%d, 6' % sWV)
a.branch('s_cbranch_scc1', 'L_w_h5done')
a('v_mov_b32 v%d, s%d' % (HvT, sTAG))
lane_fields(l8=Hd, lg=Hd2)
a('s_mul_i32 s%d, s%d, %d' % (sT0, sH, 8 * RECS))
a('s_lshl_b32 s%d, s%d, 7' % (sT1, sWV))
a('s_add_u32 s%d, s%d, s%d' % (sT1, sT1, sT0))
a('v_mul_u32_u24 v%d, %d, v%d' % (HaD, RECS, Hd2))
a('v_lshl_add_u32 v%d, v%d, 4, v%d' % (HaD, Hd, HaD))
a('v_add_u32 v%d, s%d, v%d' % (HaD, sT1, HaD))
a('s_lshl_b32 s%d, s%d, 7' % (sT0, sH))
a('s_add_u32 s%d, s%d, %d' % (sT0, sT0, QS))
a('v_lshl_add_u32 v%d, v%d, 4, s%d' % (HaS, Hd, sT0))
a('v_lshrrev_b32 v%d, 4, v%d' % (Hd2, vLANE))
a('v_lshl_add_u32 v%d, v%d, 2, v%d' % (Hd2, Hd, Hd2))
a('s_lshl_b32 s%d, s%d, 6' % (sT0, sWV))
a('s_add_u32 s%d, s%d, %d' % (sT0, sT0, QV))
a('v_lshl_add_u32 v%d, v%d, 1, s%d' % (HaQ, Hd2, sT0))


a('s_cmp_lg_u32 s%d, 0' % sLAY)
a.branch('s_cbranch_scc1', 'L_w_h5k1')
a('v_add_u32 v120, 0x%x, v%d' % (CS, HaD))
poll(lambda: a('global_load_dwordx4 %s, v%d, %s sc1' % (vr(HD, 4), HaD, sp(sB))), list(range(HD, HD + 4)), HvT, Hd, Hd2, sleep=8)
stamp(2)
rscatter4(HD)
a('v_mul_f32 v28, 0x%08x, v%d' % (f2u(math.log2(math.e) / math.sqrt(192.0)), HD))
a.branch('s_branch', 'L_w_h5w')
H5S = ((HD, HSt), (112, 116))
HW, HWS = 28, 30


def h5_first(k):
    r, st_ = H5S[k]
    a('v_permlane32_swap_b32 v%d, v%d' % (r, r + 2))
    a('v_permlane32_swap_b32 v%d, v%d' % (r + 1, r + 3))
    a('v_add_f32_dpp v%d, v%d, v%d quad_perm:[1,0,3,2] row_mask:0xf bank_mask:0xf' % (HWS, st_, st_))
    a('v_add_f32_dpp v%d, v%d, v%d quad_perm:[1,0,3,2] row_mask:0xf bank_mask:0xf' % (HWS + 1, st_ + 2, st_ + 2))
    a('v_add_f32 v%d, v%d, v%d' % (HW, r, r + 2))
    a('v_add_f32 v%d, v%d, v%d' % (HW + 1, r + 1, r + 3))


a.label('L_w_h5k1')


def h5_ld(k):
    r, st_ = H5S[k]
    a('global_load_dwordx4 %s, v%d, %s sc1' % (vr(st_, 4), HaS, sp(sB)))
    a('global_load_dwordx4 %s, v%d, %s sc1' % (vr(r, 4), HaD, sp(sB)))


def h5_ck(k):
    r, st_ = H5S[k]
    tagcheck([st_, st_ + 2] + list(range(r, r + 4)), HvT, Hd, Hd2, full=[st_ + 1, st_ + 3])


poll2(h5_ld, h5_ck, 2, h5_first)
stamp(2)
r = HW
S1, S2 = HWS, HWS + 1
for ctl in ('quad_perm:[2,3,0,1]', 'row_half_mirror'):
    for x in (S1, S2):
        a('v_add_f32_dpp v%d, v%d, v%d %s row_mask:0xf bank_mask:0xf' % (x, x, x, ctl))
    if ctl.startswith('quad'):
        a('v_permlane16_swap_b32 v%d, v%d' % (r, r + 1))
a('v_add_f32 v%d, v%d, v%d' % (r, r, r + 1))
a('v_mul_f32 v%d, 0x%08x, v%d' % (S1, f2u(1.0 / 640), S1))
a('v_mul_f32 v%d, 0x%08x, v%d' % (S2, f2u(1.0 / 640), S2))
a('v_add_f32_dpp v%d, v%d, v%d row_ror:8 row_mask:0xf bank_mask:0xf' % (r, r, r))
a('v_fma_f32 v%d, -v%d, v%d, v%d' % (S2, S1, S1, S2))
a('v_max_f32 v%d, 0, v%d' % (S2, S2))
a('v_add_f32 v%d, 0x%08x, v%d' % (S2, f2u(1e-5), S2))
a('v_rsq_f32 v%d, v%d' % (S2, S2))
a('v_fma_f32 v%d, -v%d, v%d, v%d' % (r, S1, vCS, r))
a('v_mul_f32 v%d, 0x%08x, v%d' % (r, f2u(math.log2(math.e) / math.sqrt(192.0)), r))
a('v_mul_f32 v%d, v%d, v%d' % (r, r, S2))
a.label('L_w_h5w')
a('v_cvt_pk_bf16_f32 v%d, v%d, v%d' % (r, r, r))
a('ds_write_b16 v%d, v%d' % (HaQ, r))
a('s_waitcnt lgkmcnt(0)')
def wo_addr():
    lane_fields(l8=5)
    perm_lg(6, 7)
    a('s_mul_i32 s%d, s%d, 768' % (sT0, sG))
    a('s_mul_i32 s%d, s%d, 384' % (sT1, sRA))
    a('s_add_u32 s%d, s%d, s%d' % (sT0, sT0, sT1))
    a('s_mul_i32 s%d, s%d, 96' % (sT1, sWV))
    a('s_add_u32 s%d, s%d, s%d' % (sT0, sT0, sT1))
    a('s_mul_i32 s%d, s%d, 1280' % (sT0, sT0))
    a('s_lshl_b32 s%d, s%d, 7' % (sT1, sRB))
    a('s_add_u32 s%d, s%d, s%d' % (sT0, sT0, sT1))
    a('v_mul_u32_u24 v7, 1280, v6')
    a('v_lshl_add_u32 v7, v5, 4, v7')
    a('v_add_u32 v127, s%d, v7' % sT0)


if WOE:
    a('s_or_b32 s%d, s%d, s%d' % (sT0, sLAY, sROLE))
    a('s_cmp_lg_u32 s%d, 0' % sT0)
    a.branch('s_cbranch_scc1', 'L_w_h5done')
    a('s_cmp_ge_u32 s%d, 4' % sWV)
    a.branch('s_cbranch_scc1', 'L_w_h5done')
    wo_addr()
    wloads(6, WROLE, 127, sWO, 1280, hi=WOE)
a.label('L_w_h5done')
a('s_barrier')
if PIPE:
    a('s_waitcnt vmcnt(0)')
a('s_cmp_eq_u32 s%d, 0' % sLAY)
a.branch('s_cbranch_scc1', 'L_w_l0x')
a('s_cmp_lg_u32 s%d, 0' % sH)
a.branch('s_cbranch_scc1', 'L_w_roleld_done')
a('s_cmp_ge_u32 s%d, 5' % sWV)
a.branch('s_cbranch_scc1', 'L_w_roleld_done')
a('s_mov_b32 exec_lo, 0x000f000f')
a('s_mov_b32 exec_hi, 0x000f000f')
a('global_store_dword v121, v120, %s sc1' % sp(sWS))
a('s_mov_b64 exec, -1')
a.branch('s_branch', 'L_w_roleld_done')
a.label('L_w_l0x')
read_fast(5)
a('s_cmp_lt_u32 s%d, 5' % sWV)
a.branch('s_cbranch_scc1', 'L_w_nopf0')
a('v_mov_b32 v5, s%d' % sTAG)
colsum(5, WWQ, 16, 8)
classadd(8, 12)
pub2(121, 12, True, 5, base=sWS)
a('s_cmp_lg_u32 s%d, 7' % sWV)
a.branch('s_cbranch_scc1', 'L_w_nopf0')
prefetch_own(0)
if int(OPT.get('cpf', 0)):
    a('s_getpc_b64 %s' % sp(sT0))
    a.raw('L_pc:')
    a('v_lshlrev_b32 v5, 7, v0')
    a('v_add_u32 v6, 8192, v5')
    a('v_min_u32 v6, L_exit-L_pc, v6')
    a('global_load_dword v74, v5, %s' % sp(sT0))
    a('global_load_dword v75, v6, %s' % sp(sT0))
a.label('L_w_nopf0')
lane_fields(l8=5)
perm_lg(6, 7)
a('s_cmp_eq_u32 s%d, 1' % sROLE)
a.branch('s_cbranch_scc1', 'L_w_ld1')
a('s_cmp_eq_u32 s%d, 2' % sROLE)
a.branch('s_cbranch_scc1', 'L_w_ld2')
a('s_cmp_ge_u32 s%d, 4' % sWV)
a.branch('s_cbranch_scc1', 'L_w_roleld_done')
if WOE:
    wloads(6, WROLE, 127, sWO, 1280, lo=WOE)
else:
    wo_addr()
    wloads(6, WROLE, 127, sWO, 1280)
a.branch('s_branch', 'L_w_roleld_done')
def ld1():
    a('s_mul_i32 s%d, s%d, 320' % (sT0, sRB))
    a('s_mul_i32 s%d, s%d, 80' % (sT1, sWV))
    a('s_add_u32 s%d, s%d, s%d' % (sT0, sT0, sT1))
    a('s_mul_i32 s%d, s%d, 3072' % (sT0, sT0))
    a('s_lshl_b32 s%d, s%d, 7' % (sT1, sRA))
    a('s_add_u32 s%d, s%d, s%d' % (sT0, sT0, sT1))
    lane_fields(l8=16)
    perm_lg(17, 18)
    a('v_mul_u32_u24 v17, 3072, v17')
    a('v_lshl_add_u32 v17, v16, 4, v17')
    a('v_add_u32 v17, s%d, v17' % sT0)
    wloads(5, WROLE, 17, sW1, 3072)


def ld2():
    a('s_mul_i32 s%d, s%d, %d' % (sT0, sRA, 64 * 1280))
    a('s_mul_i32 s%d, s%d, 640' % (sT1, sRB))
    a('s_add_u32 s%d, s%d, s%d' % (sT0, sT0, sT1))
    a('s_lshl_b32 s%d, s%d, 7' % (sT1, sWV))
    a('s_add_u32 s%d, s%d, s%d' % (sT0, sT0, sT1))
    lane_fields(l8=16)
    perm_lg(17, 18)
    a('v_mul_u32_u24 v17, 1280, v17')
    a('v_lshl_add_u32 v17, v16, 4, v17')
    a('v_add_u32 v17, s%d, v17' % sT0)
    wloads(4, WROLE, 17, sW2, 1280)


a.label('L_w_ld1')
if not (LATE & 1):
    a('s_cmp_ge_u32 s%d, 4' % sWV)
    a.branch('s_cbranch_scc1', 'L_w_roleld_done')
    ld1()
a.branch('s_branch', 'L_w_roleld_done')
a.label('L_w_ld2')
if not (LATE & 2):
    a('s_cmp_ge_u32 s%d, 5' % sWV)
    a.branch('s_cbranch_scc1', 'L_w_roleld_done')
    ld2()
a.label('L_w_roleld_done')
CvT, CaR, CaP, CM = 5, 6, 7, 80
CP = 96
a('s_cmp_ge_u32 s%d, 4' % sWV)
a.branch('s_cbranch_scc1', 'L_w_nocomb')
a('v_mov_b32 v%d, s%d' % (CvT, sTAG))
a('s_lshl_b32 s%d, s%d, 8' % (sT0, sWV))
a('s_add_u32 s%d, s%d, s%d' % (sT1, sT0, sRED))
a('v_lshl_add_u32 v%d, v%d, 2, s%d' % (CaR, vLANE, sT1))
a('s_lshl_b32 s%d, s%d, 3' % (sT1, sH))
a('s_add_u32 s%d, s%d, s%d' % (sT1, sT1, sJ))
a('s_mul_i32 s%d, s%d, %d' % (sT2, sT1, RECS))
a('s_add_u32 s%d, s%d, s%d' % (sT2, sT2, sT0))
a('s_add_u32 s%d, s%d, 0x%x' % (sT2, sT2, AT))
a('v_lshl_add_u32 v%d, v%d, 2, s%d' % (CaP, vLANE, sT2))
a('s_lshl_b32 s%d, s%d, 4' % (sT1, sT1))
a('s_add_u32 s%d, s%d, 0x%x' % (sT1, sT1, ML))
a('v_mov_b32 v8, s%d' % sT1)
a('v_mov_b32 v9, s%d' % sRED)
a('s_setprio 0')
a('s_mov_b32 s%d, 0' % sCNT)
a.label('L_w_mspin')
a('s_add_u32 s%d, s%d, 1' % (sCNT, sCNT))
a('s_cmp_gt_u32 s%d, %d' % (sCNT, 4 * LIMIT))
a.branch('s_cbranch_scc1', 'L_end')
a('s_sleep %d' % int(OPT.get('msleep', 1)))
for i in range(4):
    a('ds_read2st64_b32 %s, v9 offset0:%d offset1:%d' % (vr(CM + 2 * i, 2), 16 * i + 7, 16 * i + 15))
a('s_waitcnt lgkmcnt(0)')
a('v_max3_u32 v10, v%d, v%d, v%d' % (CM, CM + 1, CM + 2))
a('v_max3_u32 v11, v%d, v%d, v%d' % (CM + 3, CM + 4, CM + 5))
a('v_max3_u32 v10, v10, v%d, v%d' % (CM + 6, CM + 7))
a('v_max_u32 v10, v10, v11')
a('v_cmp_eq_u32 vcc, -1, v10')
a.branch('s_cbranch_vccnz', 'L_w_mspin')
a('s_setprio 3')
a('v_max3_f32 v10, v%d, v%d, v%d' % (CM, CM + 1, CM + 2))
a('v_max3_f32 v11, v%d, v%d, v%d' % (CM + 3, CM + 4, CM + 5))
a('v_max3_f32 v10, v10, v%d, v%d' % (CM + 6, CM + 7))
a('v_max_f32 v10, v10, v11')
for i in range(8):
    a('v_sub_f32 v%d, v%d, v10' % (CM + i, CM + i))
for i in range(8):
    a('v_exp_f32 v%d, v%d' % (CM + i, CM + i))
a('s_cmp_eq_u32 s%d, 3' % sWV)
a.branch('s_cbranch_scc1', 'L_w_ml')
a('s_barrier')
stamp(3)
for i in range(8):
    a('ds_read2st64_b32 %s, v%d offset0:%d offset1:%d' % (vr(CP + 2 * i, 2), CaR, 8 * i, 8 * i + 4))
for i in range(8):
    a('s_waitcnt lgkmcnt(%d)' % (7 - i))
    a('v_add_f32 v%d, v%d, v%d' % (CP + 2 * i, CP + 2 * i, CP + 2 * i + 1))
    if i < 2:
        a('v_mul_f32 v%d, v%d, v%d' % (11 + i, CP + 2 * i, CM + i))
    else:
        a('v_fmac_f32 v%d, v%d, v%d' % (11 + i % 2, CP + 2 * i, CM + i))
a('v_add_f32 v11, v11, v12')
addtag([11], CvT)
fstore('global_store_dword v%d, v11, %s' % (CaP, sp(sB)))
a.branch('s_branch', 'L_w_combdone')
a.label('L_w_ml')
a('v_mov_b32 v11, s%d' % sEP)
a('v_mov_b32 v13, s%d' % sEP)
a('s_mov_b64 exec, 1')
fstore('global_store_dwordx2 v8, v[10:11], %s' % sp(sB))
a('s_mov_b64 exec, -1')
a('v_add_u32 v9, 4, v9')
a('s_barrier')
for i in range(4):
    a('ds_read2st64_b32 %s, v9 offset0:%d offset1:%d' % (vr(CP + 2 * i, 2), 16 * i + 7, 16 * i + 15))
a('s_waitcnt lgkmcnt(0)')
a('v_mul_f32 v12, v%d, v%d' % (CM, CP))
a('v_mul_f32 v14, v%d, v%d' % (CM + 1, CP + 1))
for i in range(2, 8):
    a('v_fmac_f32 v%d, v%d, v%d' % (12 if i % 2 == 0 else 14, CM + i, CP + i))
a('v_add_f32 v12, v12, v14')
a('s_mov_b64 exec, 1')
fstore('global_store_dwordx2 v8, v[12:13], %s offset:8' % sp(sB))
a('s_mov_b64 exec, -1')
a.branch('s_branch', 'L_w_combdone')
a.label('L_w_nocomb')
a('s_barrier')
a.label('L_w_combdone')


def cs_gather():
    a('v_mov_b32 v5, s%d' % sTAG)
    poll(lambda: a('global_load_dwordx4 v[12:15], v120, %s sc1' % sp(sWS)), [12, 13, 14, 15], 5, 24, 25, sleep=2)
    rscatter4(12)
    a('v_mov_b32 v%d, v12' % vCS)


a('s_cmp_eq_u32 s%d, 0' % sROLE)
a.branch('s_cbranch_scc1', 'L_w_r0')
a('s_cmp_lg_u32 s%d, 0' % sLAY)
a.branch('s_cbranch_scc1', 'L_w_nocs0')
a('s_cmp_ge_u32 s%d, 6' % sWV)
a.branch('s_cbranch_scc1', 'L_w_nocs0')
cs_gather()
a.label('L_w_nocs0')
a('s_cmp_eq_u32 s%d, 1' % sROLE)
a.branch('s_cbranch_scc1', 'L_w_r1')
a('s_cmp_eq_u32 s%d, 2' % sROLE)
a.branch('s_cbranch_scc1', 'L_w_r2')
a.label('L_w_r0')
a('s_cmp_lt_u32 s%d, 4' % sWV)
a.branch('s_cbranch_scc1', 'L_w_o_g')
h1_gather()
if SN1P == 'b7':
    sent_store(sR_, SN1, 14, 15)
a('s_barrier')
a('s_waitcnt vmcnt(0)')
if SN1P == 'b7':
    a('s_cmp_lg_u32 s%d, 4' % sWV)
    a.branch('s_cbranch_scc1', 'L_w_o_nf')
    sent_fire(14, 15)
    a.label('L_w_o_nf')
a('s_barrier')
a.branch('s_branch', 'L_w_roledone')
a.label('L_w_o_g')
a('s_mul_i32 s%d, s%d, 96' % (sT0, sWV))
a('v_add_u32 v6, s%d, v%d' % (sT0, vIRD))
a('v_and_b32 v7, 7, v0')
a('v_lshlrev_b32 v7, 5, v7')
a('v_bfe_u32 v8, v0, 4, 1')
a('v_lshl_add_u32 v7, v8, 4, v7')
a('v_lshrrev_b32 v8, 5, v0')
a('v_lshl_add_u32 v7, v8, 8, v7')
a('s_lshl_b32 s%d, s%d, 9' % (sT0, sWV))
a('s_add_u32 s%d, s%d, %d' % (sT0, sT0, RED2))
a('v_add_u32 v7, s%d, v7' % sT0)
a('v_mov_b32 v5, s%d' % sTAG)
a('v_lshlrev_b32 v12, 2, v0')
a('s_lshl_b32 s%d, s%d, 1' % (sT0, sG))
a('s_add_u32 s%d, s%d, s%d' % (sT0, sT0, sRA))
a('s_mul_i32 s%d, s%d, %d' % (sT0, sT0, ROWS))
a('s_lshl_b32 s%d, s%d, 8' % (sT1, sRB))
a('s_add_u32 s%d, s%d, s%d' % (sT0, sT0, sT1))
a('s_add_u32 s%d, s%d, 0x%x' % (sT0, sT0, YY))
a('v_add_u32 v13, s%d, v12' % sT0)
a('v_add_u32 v12, %d, v12' % RED2)
sent_store(sR_, SN1, 14, 15)
zero4(8)
if PREW:
    a('s_or_b32 s%d, s%d, s%d' % (sT0, sWV, sLAY))
    a('s_cmp_lg_u32 s%d, 0' % sT0)
    a.branch('s_cbranch_scc1', 'L_w_o_nopw')
    a('v_xor_b32 v16, 0x80, v5')
    a('v_add_u32 v17, 0x%x, v13' % LB)
    if PREW & 2:
        a('global_store_dword v13, v16, %s sc1' % sp(sB))
    a('global_store_dword v17, v16, %s sc1' % sp(sB))
    a.label('L_w_o_nopw')
a('s_waitcnt vmcnt(0)')
stamp(4)
a('s_barrier')
stamp(5)
gemv(6, WROLE, IMGR, 80, 8, 6)
if SN1P == 'mid':
    a('s_cmp_lg_u32 s%d, 1' % sWV)
    a.branch('s_cbranch_scc1', 'L_w_o_nf')
    sent_fire(14, 15)
    a.label('L_w_o_nf')
a('s_mov_b64 exec, %s' % sp(sEXA))
a('ds_write_b128 v7, v[8:11]')
a('s_mov_b64 exec, -1')
a('s_waitcnt lgkmcnt(0)')
a('s_barrier')
if SN1P == 'b8':
    a('s_cmp_lg_u32 s%d, 1' % sWV)
    a.branch('s_cbranch_scc1', 'L_w_o_nf')
    sent_fire(14, 15)
    a.label('L_w_o_nf')
a('s_cmp_lg_u32 s%d, 0' % sWV)
a.branch('s_cbranch_scc1', 'L_w_roledone')
for i in range(4):
    a('ds_read2st64_b32 %s, v12 offset0:%d offset1:%d' % (vr(16 + 2 * i, 2), 2 * i, 2 * i + 1))
a('s_waitcnt lgkmcnt(2)')
a('v_add_f32 v16, v16, v17')
a('v_add_f32 v18, v18, v19')
a('s_waitcnt lgkmcnt(0)')
a('v_add_f32 v20, v20, v21')
a('v_add_f32 v22, v22, v23')
a('v_add_f32 v16, v16, v18')
a('v_add_f32 v20, v20, v22')
a('v_add_f32 v16, v16, v20')
addtag([16], 5)
a('global_store_dword v13, v16, %s sc1' % sp(sB))
if DUP & 1:
    a('v_or_b32 v13, 0x%x, v13' % COPY2)
    a('global_store_dword v13, v16, %s sc1' % sp(sB))
if (SENT & 1) and SN1P == 'after':
    sent_fire(14, 15)
stamp(6)
a.branch('s_branch', 'L_w_roledone')
a.label('L_w_r1')
a('s_cmp_lt_u32 s%d, 4' % sWV)
a.branch('s_cbranch_scc1', 'L_w_1_g')
a('s_cmp_eq_u32 s%d, 4' % sWV)
a.branch('s_cbranch_scc1', 'L_w_1_idle')
a('s_cmp_eq_u32 s%d, 7' % sWV)
a.branch('s_cbranch_scc1', 'L_w_1_st')
a('s_add_u32 s%d, s%d, 3' % (sU, sWV))
h2_gather()
a('s_barrier')
a.branch('s_branch', 'L_w_roledone')
a.label('L_w_1_idle')
if SBAR & 1:
    sentinel(SN1, 20, 5, 6)
    a('s_barrier')
a('s_barrier')
a.branch('s_branch', 'L_w_roledone')
a.label('L_w_1_st')


def w1_stats_addr():
    a('s_lshl_b32 s%d, s%d, 7' % (sT0, sRA))
    a('s_lshl_b32 s%d, s%d, 4' % (sT1, sRB))
    a('s_add_u32 s%d, s%d, s%d' % (sT0, sT0, sT1))
    a('s_add_u32 s%d, s%d, 0x%x' % (sT0, sT0, HS))


stats_pre(w1_stats_addr, 5)
if SBAR & 1:
    a('s_barrier')
a('s_barrier')
stats_wave(IMGR, 5)
a.branch('s_branch', 'L_w_roledone')
a.label('L_w_1_g')
if LATE & 1:
    a('s_cmp_lg_u32 s%d, 0' % sLAY)
    a.branch('s_cbranch_scc1', 'L_w_1_nold')
    ld1()
    a.label('L_w_1_nold')
a('s_mul_i32 s%d, s%d, 80' % (sT0, sWV))
a('v_add_u32 v6, s%d, v%d' % (sT0, vIRD))
a('v_mov_b32 v5, s%d' % sTAG)
a('s_lshl_b32 s%d, s%d, 1' % (sT0, sRA))
a('s_add_u32 s%d, s%d, s%d' % (sT0, sT0, sRB))
a('s_lshl_b32 s%d, s%d, 2' % (sT0, sT0))
a('s_add_u32 s%d, s%d, s%d' % (sT0, sT0, sWV))
a('s_lshl_b32 s%d, s%d, 8' % (sT0, sT0))
a('v_add_u32 v7, s%d, v%d' % (sT0, vPUB))
a('s_waitcnt vmcnt(0)')
a('s_cmp_lg_u32 s%d, 0' % sLAY)
a.branch('s_cbranch_scc1', 'L_w_1_nocs')
colsum(5, WROLE, 16, 8)
classadd(8, 12)
a('v_add_u32 v14, 0x%x, v7' % CS1)
pub2(14, 12, True, 5, base=sWS)
a.label('L_w_1_nocs')
a('v_add_u32 v7, 0x%x, v7' % HP)
zero4(8)
stamp(4)
if SBAR & 1:
    a('s_barrier')
a('s_barrier')
stamp(5)
gemv(5, WROLE, IMGR, 80, 8, 6)
classadd(8, 12)
pub2(7, 12, True, 5)
stamp(6)
a.branch('s_branch', 'L_w_roledone')
a.label('L_w_r2')
a('s_cmp_lt_u32 s%d, 5' % sWV)
a.branch('s_cbranch_scc1', 'L_w_2_g')
a('s_cmp_lg_u32 s%d, 5' % sWV)
a.branch('s_cbranch_scc1', 'L_w_2_idle')
GvT, GaD, GaS, GaI, GaI2 = 5, 6, 7, 8, 9
GD, GE, GSt, Gd, Gd2, Gt = 12, 16, 20, 24, 25, 27
a('v_mov_b32 v%d, s%d' % (GvT, sTAG))
lane_fields(l8=Gd, lg=Gd2)
a('s_lshl_b32 s%d, s%d, 11' % (sT0, sRA))
a('v_lshlrev_b32 v%d, 8, v%d' % (GaD, Gd2))
a('v_lshl_add_u32 v%d, v%d, 4, v%d' % (GaD, Gd, GaD))
a('v_add_u32 v%d, s%d, v%d' % (GaD, sT0, GaD))
a('s_lshl_b32 s%d, s%d, 7' % (sT0, sRA))
a('s_add_u32 s%d, s%d, 0x%x' % (sT0, sT0, HS))
a('v_mov_b32 v%d, s%d' % (GaS, sT0))
a('v_lshrrev_b32 v%d, 4, v%d' % (Gd2, vLANE))
a('v_lshl_add_u32 v%d, v%d, 2, v%d' % (Gd2, Gd, Gd2))
a('v_and_b32 v%d, 8, v%d' % (Gt, vLANE))
a('v_lshl_add_u32 v%d, v%d, 2, v%d' % (Gd2, Gt, Gd2))
a('v_and_b32 v%d, 7, v%d' % (Gt, Gd2))
a('v_mul_u32_u24 v%d, %d, v%d' % (GaI, RS, Gt))
a('v_and_b32 v%d, 0xfffffff8, v%d' % (Gt, Gd2))
a('v_add_u32 v%d, v%d, v%d' % (GaI, GaI, Gt))
a('v_and_b32 v%d, 8, v%d' % (Gt, vLANE))
a('v_cmp_eq_u32 s[58:59], 0, v%d' % Gt)


def rs8():
    for b in (GD, GE):
        a('v_permlane32_swap_b32 v%d, v%d' % (b, b + 2))
        a('v_permlane32_swap_b32 v%d, v%d' % (b + 1, b + 3))
    for b in (GD, GE):
        a('v_add_f32 v%d, v%d, v%d' % (b, b, b + 2))
        a('v_add_f32 v%d, v%d, v%d' % (b + 1, b + 1, b + 3))
    for b in (GD, GE):
        a('v_permlane16_swap_b32 v%d, v%d' % (b, b + 1))
    for b in (GD, GE):
        a('v_add_f32 v%d, v%d, v%d' % (b, b, b + 1))
    a('v_cndmask_b32 v%d, v%d, v%d, s[58:59]' % (GD + 2, GD, GE))
    a('v_cndmask_b32 v%d, v%d, v%d, s[58:59]' % (GD + 1, GE, GD))
    a('v_add_f32_dpp v%d, v%d, v%d row_ror:8 row_mask:0xf bank_mask:0xf' % (GD, GD + 2, GD + 1))


a('s_cmp_lg_u32 s%d, 0' % sLAY)
a.branch('s_cbranch_scc1', 'L_w_2_nocs')
a('s_lshl_b32 s%d, s%d, 7' % (sT0, sRA))
a('v_lshl_add_u32 v%d, v%d, 1, s%d' % (GaI2, Gd2, sT0))
a('global_load_ushort v%d, v%d, %s' % (vB1, GaI2, sp(sB1)))
a('v_add_u32 v%d, 0x%x, v%d' % (GaI2, CS1, GaD))


def cs1_loads():
    a('global_load_dwordx4 %s, v%d, %s sc1' % (vr(GD, 4), GaI2, sp(sWS)))
    a('global_load_dwordx4 %s, v%d, %s offset:128 sc1' % (vr(GE, 4), GaI2, sp(sWS)))


poll(cs1_loads, list(range(GD, GD + 8)), GvT, Gd, Gd2, sleep=2)
rs8()
a('v_mov_b32 v%d, v%d' % (vCS1, GD))
a('v_lshlrev_b32 v%d, 16, v%d' % (vB1, vB1))
a.label('L_w_2_nocs')
a('v_add_u32 v%d, 0x%x, v%d' % (GaD, HP, GaD))
a('v_mov_b32 v10, 0')
a('v_mov_b32 v11, 0')


def h3_loads():
    a('global_load_dwordx4 %s, v%d, %s sc1' % (vr(GSt, 4), GaS, sp(sB)))
    a('global_load_dwordx4 %s, v%d, %s offset:16 sc1' % (vr(28, 4), GaS, sp(sB)))
    a('global_load_dwordx4 %s, v%d, %s sc1' % (vr(GD, 4), GaD, sp(sB)))
    a('global_load_dwordx4 %s, v%d, %s offset:128 sc1' % (vr(GE, 4), GaD, sp(sB)))


poll(h3_loads, list(range(GD, GD + 8)) + [GSt, GSt + 2, 28, 30], GvT, Gd, Gd2, full=[GSt + 1, GSt + 3, 29, 31])
stamp(4)
a('v_add_f32 v%d, v%d, v28' % (GSt, GSt))
a('v_add_f32 v%d, v%d, v30' % (GSt + 1, GSt + 2))
ln_from_stats(GSt, GSt + 1)
rs8()
a('v_fma_f32 v%d, -v%d, v%d, v%d' % (GD, GSt, vCS1, GD))
a('v_fma_f32 v%d, v%d, v%d, v%d' % (GD, GD, GSt + 1, vB1))
e, n1, d1, n2 = GE, GE + 1, GE + 2, GE + 3
a('v_mul_f32 v%d, 0x%08x, v%d' % (e, f2u(math.log2(math.e)), GD))
a('v_exp_f32 v%d, -abs(v%d)' % (e, e))
a('v_cmp_le_f32 vcc, 0, v%d' % GD)
a('v_fma_f32 v%d, v%d, 2.0, 1.0' % (n1, e))
a('v_add_f32 v%d, 2.0, v%d' % (n2, e))
a('v_mul_f32 v%d, v%d, v%d' % (d1, e, e))
a('v_mul_f32 v%d, v%d, v%d' % (n2, n2, e))
a('v_cndmask_b32 v%d, 1.0, v%d, vcc' % (d1, d1))
a('v_cndmask_b32 v%d, v%d, v%d, vcc' % (n1, n2, n1))
a('v_fma_f32 v%d, v%d, 2.0, v%d' % (d1, d1, n1))
a('v_rcp_f32 v%d, v%d' % (d1, d1))
a('v_mul_f32 v%d, v%d, v%d' % (n1, n1, GD))
a('v_mul_f32 v%d, v%d, v%d' % (n1, n1, d1))
a('v_cvt_pk_bf16_f32 v%d, v%d, v%d' % (n1, n1, n1))
a('ds_write_b16 v%d, v%d offset:%d' % (GaI, n1, IMGR))
a('ds_write_b16 v%d, v%d offset:%d' % (GaI, n1, IMGR + HSZ + 4))
a('s_waitcnt lgkmcnt(0)')
a.label('L_w_2_idle')
a('s_barrier')
a.branch('s_branch', 'L_w_roledone')
a.label('L_w_2_g')
if LATE & 2:
    a('s_cmp_lg_u32 s%d, 0' % sLAY)
    a.branch('s_cbranch_scc1', 'L_w_2_nold')
    ld2()
    a.label('L_w_2_nold')
a('v_mov_b32 v5, s%d' % sTAG)
a('s_mul_i32 s%d, s%d, %d' % (sT0, sRA, ROWS))
a('s_mul_i32 s%d, s%d, 1280' % (sT1, sRB))
a('s_add_u32 s%d, s%d, s%d' % (sT0, sT0, sT1))
a('s_lshl_b32 s%d, s%d, 8' % (sT1, sWV))
a('s_add_u32 s%d, s%d, s%d' % (sT0, sT0, sT1))
a('s_add_u32 s%d, s%d, 0x%x' % (sT0, sT0, ZZ))
a('v_add_u32 v7, s%d, v%d' % (sT0, vPUB))
a('s_sub_u32 s%d, s%d, 26' % (sT0, sR_))
a('s_mul_i32 s%d, s%d, 5' % (sT0, sT0))
a('s_add_u32 s%d, s%d, s%d' % (sT0, sT0, sWV))
sent_store(sT0, SN2, 14, 15)
zero4(8)
if PREW:
    a('s_cmp_lg_u32 s%d, 0' % sLAY)
    a.branch('s_cbranch_scc1', 'L_w_2_nopw')
    a('v_xor_b32 v16, 0x80, v5')
    a('v_xor_b32 v17, 0x80, v5')
    a('v_add_u32 v18, 0x%x, v7' % LB)
    a('s_mov_b64 exec, %s' % sp(sEXB))
    a('global_store_dwordx2 v7, v[16:17], %s sc1' % sp(sB))
    a('global_store_dwordx2 v18, v[16:17], %s sc1' % sp(sB))
    a('s_mov_b64 exec, -1')
    a.label('L_w_2_nopw')
a('s_waitcnt vmcnt(0)')
a('s_barrier')
stamp(5)
if SN2P == 'b7':
    sent_fire(14, 15)
gemv(4, WROLE, IMGR, 80, 8, vIRD)
classadd(8, 12)
pub2(7, 12, False, 5)
if DUP & 2:
    a('v_or_b32 v7, 0x%x, v7' % COPY2)
    a('s_mov_b64 exec, %s' % sp(sEXB))
    a('global_store_dwordx2 v7, v[12:13], %s sc1' % sp(sB))
    a('s_mov_b64 exec, -1')
if (SENT & 2) and SN2P == 'after':
    sent_fire(14, 15)
stamp(6)
a.label('L_w_roledone')
a('s_cmp_eq_u32 s%d, 0' % sLAY)
a.branch('s_cbranch_scc1', 'L_w_h4')
a('s_cmp_lg_u32 s%d, 0' % sH)
a.branch('s_cbranch_scc1', 'L_end')
a('s_cmp_ge_u32 s%d, 5' % sWV)
a.branch('s_cbranch_scc1', 'L_end')
a.label('L_w_h4')
a('s_cmp_lg_u32 s%d, 0' % sLAY)
a.branch('s_cbranch_scc1', 'L_w_nopf1')
a('s_cmp_ge_u32 s%d, 6' % sWV)
a.branch('s_cbranch_scc1', 'L_w_nocsg')
a('s_cmp_lg_u32 s%d, 0' % sROLE)
a.branch('s_cbranch_scc1', 'L_w_nocsg')
cs_gather()
a.label('L_w_nocsg')
a('s_cmp_lg_u32 s%d, 7' % sWV)
a.branch('s_cbranch_scc1', 'L_w_nopf1')
prefetch_own(LB)
a.label('L_w_nopf1')
if SBAR & 2:
    a('s_cmp_lt_u32 s%d, 5' % sWV)
    a.branch('s_cbranch_scc1', 'L_w_h4g')
    a('s_cmp_lg_u32 s%d, 6' % sWV)
    a.branch('s_cbranch_scc1', 'L_w_h4b')
    sentinel(SN2, 30, 5, 6)
    a.label('L_w_h4b')
    a('s_barrier')
    a.branch('s_branch', 'L_w_next')
    a.label('L_w_h4g')
else:
    a('s_cmp_ge_u32 s%d, 5' % sWV)
    a.branch('s_cbranch_scc1', 'L_w_next')
a('v_mov_b32 v%d, s%d' % (XvT, sTAG))
img_masks(XvMA, Xt)
a('v_and_b32 v%d, 3, v%d' % (Xd, vLANE))
a('v_lshrrev_b32 v%d, 4, v%d' % (Xd2, vLANE))
a('v_lshl_add_u32 v%d, v%d, 2, v%d' % (Xd2, Xd, Xd2))
a('s_lshl_b32 s%d, s%d, 4' % (sT0, sWV))
a('v_add_u32 v%d, s%d, v%d' % (Xd2, sT0, Xd2))
img_addr(XaI, Xd2, Xt, IMGQ)
a('s_mul_i32 s%d, s%d, 80' % (sT1, sJ))
a('v_add_u32 v%d, s%d, v%d' % (Xcol, sT1, Xd2))
a('v_lshrrev_b32 v%d, 2, v%d' % (Xt, vLANE))
a('v_mul_u32_u24 v%d, %d, v%d' % (XaD, ROWS, Xt))
a('v_lshl_add_u32 v%d, v%d, 4, v%d' % (XaD, Xd, XaD))
a('s_mul_i32 s%d, s%d, 320' % (sT0, sJ))
a('s_lshl_b32 s%d, s%d, 6' % (sT1, sWV))
a('s_add_u32 s%d, s%d, s%d' % (sT0, sT0, sT1))
a('s_add_u32 s%d, s%d, 0x%x' % (sT0, sT0, ZZ))
a('v_add_u32 v%d, s%d, v%d' % (XaD, sT0, XaD))
a('v_add_u32 v%d, %d, v%d' % (XaD2, 16 * ROWS, XaD))
a('v_lshlrev_b32 v%d, 2, v%d' % (XaX, Xcol))
a('v_add_u32 v%d, 0x%x, v%d' % (XaX, ZZ + 24 * ROWS, XaX))
for k in range(4):
    a('v_mov_b32 v%d, v%d' % (XE + k, XvT))
if SENT & 2:
    a('s_cmp_lg_u32 s%d, 0' % sLAY)
    a.branch('s_cbranch_scc1', 'L_w_nosent')
    if SBAR & 2:
        a('s_barrier')
    else:
        sentinel(SN2, 30, Xd, Xd2)
    a.label('L_w_nosent')


def h4_loads():
    a('global_load_dword v%d, v%d, %s sc1' % (Xxp, XaX, sp(sB)))
    a('global_load_dwordx4 %s, v%d, %s sc1' % (vr(XD, 4), XaD, sp(sB)))
    a('s_mov_b32 exec_hi, 0')
    a('global_load_dwordx4 %s, v%d, %s sc1' % (vr(XE, 4), XaD2, sp(sB)))
    a('s_mov_b32 exec_hi, -1')


poll(h4_loads, list(range(XD, XD + 8)) + [Xxp], XvT, Xd, Xd2, bump=(XaD, XaD2) if DUP & 2 else ())
stamp(7)
for k in range(4):
    a('v_add_f32 v%d, v%d, v%d' % (XD + k, XD + k, XE + k))
a('v_and_b32 v%d, s%d, v%d' % (Xxp, sHI, Xxp))
rscatter4(XD, extra_ror4=True)
resid_round(XD, Xxp, XD)
a('s_cmp_lg_u32 s%d, 0' % sLAY)
a.branch('s_cbranch_scc1', 'L_w_final')
img_write(XD, XvMA, XE, XaI)
a('s_waitcnt lgkmcnt(0)')
a('s_barrier')
next_layer()
stamp(0)
a('v_and_or_b32 v120, v%d, s%d, v%d' % (XD, sHI, XvT))
a('v_lshlrev_b32 v121, 2, v%d' % Xcol)
a('v_add_u32 v121, 0x%x, v121' % X2)
a.branch('s_branch', 'L_w_qdone')
a.label('L_w_next')
next_layer()
a.branch('s_branch', 'L_w_pre')
a.label('L_w_final')
if 'failmask' in OPT:
    a('s_and_b32 s%d, s%d, %s' % (sT0, sEP, OPT['failmask']))
    a('s_cmp_eq_u32 s%d, %s' % (sT0, OPT['failval']))
    a('s_cselect_b32 s%d, 0x4000, 0' % sT0)
    a('v_xor_b32 v%d, s%d, v%d' % (XD, sT0, XD))
a('v_lshlrev_b32 v%d, 1, v%d' % (XaX, Xcol))
a('s_mov_b32 exec_lo, 0x000f000f')
a('s_mov_b32 exec_hi, 0x000f000f')
a('global_store_short v%d, v%d, %s' % (XaX, XD, sp(sOUT)))
a('s_mov_b64 exec, -1')
a('s_or_b32 s%d, s%d, s%d' % (sT0, sJ, sWV))
a('s_cmp_lg_u32 s%d, 0' % sT0)
a.branch('s_cbranch_scc1', 'L_end')
a('v_mov_b32 v5, 0x%x' % EPOCH)
a('v_mov_b32 v6, s%d' % sEP)
a('s_mov_b64 exec, 1')
a('global_store_dword v5, v6, %s sc1' % sp(sWS))
a('s_mov_b64 exec, -1')
if PROBE is not None:
    a('s_memrealtime s[66:67]')
    a('s_waitcnt lgkmcnt(0)')
    if PROBE == 'end':
        a('s_mov_b32 s64, s66')
    a('s_sub_u32 s64, s64, s96')
    a('s_add_u32 s64, s64, s66')
    a.label('L_probe_spin')
    a('s_memrealtime s[66:67]')
    a('s_waitcnt lgkmcnt(0)')
    a('s_sub_u32 s68, s66, s64')
    a('s_cmp_lt_i32 s68, 0')
    a.branch('s_cbranch_scc1', 'L_probe_spin')
a.branch('s_branch', 'L_end')

a.label('L_kv')
CUR[0] = 'K'
if DEBUG:
    for i in range(16):
        a('s_mov_b64 s[%d:%d], 0' % (64 + 2 * i, 65 + 2 * i))
KB, VB = 32, 80
a('s_setprio 1')
lane_fields(l8=5, lg=6)
perm_lg(7, 8)
a('s_sub_u32 s%d, s%d, 8' % (sU, sWV))
a('s_mul_i32 s%d, s%d, 3145728' % (sT0, sH))
a('s_lshl_b32 s%d, s%d, 8' % (sT1, sJ))
a('s_lshl_b32 s%d, s%d, 5' % (sT2, sU))
a('s_add_u32 s%d, s%d, s%d' % (sT1, sT1, sT2))
a('s_add_u32 s%d, s%d, 6144' % (sT1, sT1))
a('s_mul_i32 s%d, s%d, 384' % (sT1, sT1))
a('s_add_u32 s%d, s%d, s%d' % (sT0, sT0, sT1))
a('v_mul_u32_u24 v28, 384, v6')
a('v_lshl_add_u32 v28, v5, 4, v28')
a('v_add_u32 v28, s%d, v28' % sT0)
a('v_add_u32 v29, 6144, v28')
a('v_mul_u32_u24 v30, 384, v7')
a('v_lshl_add_u32 v30, v5, 4, v30')
a('v_add_u32 v30, s%d, v30' % sT0)
a('v_add_u32 v31, 6144, v30')
lds = []
for u in range(4):
    for t in range(3):
        lds.append('global_load_dwordx4 %s, v%d, %s offset:%d' % (vr(KB + 12 * u + 4 * t, 4), 28 + u // 2, sp(sK), (u % 2) * 3072 + 128 * t) + NT)
for P in range(2):
    for t in range(3):
        for ub in range(2):
            lds.append('global_load_dwordx4 %s, v%d, %s offset:%d' % (vr(VB + (3 * P + t) * 8 + 4 * ub, 4), 30 + P, sp(sV), ub * 1536 + 128 * t) + NT)
a('s_waitcnt lgkmcnt(0)')
if B0:
    a('s_barrier')
if DEBUG:
    a('s_memrealtime s[62:63]')
if TOUCH:
    a('s_mov_b64 exec, 1')
    a('global_load_dword v27, v30, %s' % sp(sV) + NT)
    a('s_mov_b64 exec, -1')
for n, ld in enumerate(lds):
    lim = INF if n < VFREE else 64
    if n >= lim:
        a('s_waitcnt vmcnt(%d)' % (lim - 1))
    a(ld)
    if n + 1 == min(INF, 8):
        rest_setup()
        h1_scalars()
    if n == TRIG:
        tag_ready()
        a('s_cmp_lg_u32 s%d, 15' % sWV)
        a.branch('s_cbranch_scc1', 'L_kv_notrig')
        a('v_mov_b32 v5, %d' % (FLG + 16))
        a('v_mov_b32 v6, s%d' % sEP)
        a('ds_write_b32 v5, v6')
        a.label('L_kv_notrig')
if OPT.get('waitv'):
    a('s_waitcnt vmcnt(0)')
stamp(7)
if OPT.get('wdelay'):
    a('s_barrier')
a.label('L_kv_loop')
ACC, S, A0, mm, ll, tt, aR = 8, 20, 24, 5, 6, 7, 4
a('s_sub_u32 s%d, s%d, 8' % (sU, sWV))
a('v_and_b32 v%d, 7, v0' % tt)
a('v_lshlrev_b32 v%d, 5, v%d' % (aR, tt))
a('v_lshlrev_b32 v%d, 4, v%d' % (tt, tt))
a('v_bfe_u32 v%d, v0, 4, 1' % mm)
a('v_lshl_add_u32 v%d, v%d, 4, v%d' % (aR, mm, aR))
a('v_lshrrev_b32 v%d, 5, v0' % mm)
a('v_lshl_add_u32 v%d, v%d, 10, v%d' % (aR, mm, aR))
a('s_lshl_b32 s%d, s%d, 11' % (sT0, sU))
a('s_add_u32 s%d, s%d, s%d' % (sT0, sT0, sRED))
a('v_add_u32 v%d, s%d, v%d' % (aR, sT0, aR))
for u in range(4):
    a('v_mov_b32 v%d, 0' % (S + u))
for k in range(12):
    a('v_mov_b32 v%d, 0' % (ACC + k))
a('s_mov_b32 s%d, 0' % sT2)
a('s_brev_b32 s%d, 1' % sT3)
PR = int(OPT.get('prio', 1))
if PR:
    a('s_setprio 2')
a('s_barrier')
stamp(0)
a('ds_read_b128 %s, v%d offset:%d' % (vr(A0, 4), tt, QV))
a('ds_read_b128 %s, v%d offset:%d' % (vr(A0 + 4, 4), tt, QV + 128))
a('s_waitcnt vmcnt(12)')
for t in range(3):
    a('s_waitcnt lgkmcnt(%d)' % (1 if t < 2 else 0))
    for k in range(4):
        for u in range(4):
            a('v_dot2c_f32_bf16 v%d, v%d, v%d' % (S + u, KB + 12 * u + 4 * t + k, A0 + 4 * (t % 2) + k))
    if t == 0:
        a('ds_read_b128 %s, v%d offset:%d' % (vr(A0, 4), tt, QV + 256))
if PR:
    a('s_setprio 1')
stamp(1)
T0, T1 = A0, A0 + 1
a('v_add_f32_dpp v%d, v%d, v%d row_half_mirror row_mask:0xf bank_mask:0x5' % (T0, S, S))
a('v_add_f32_dpp v%d, v%d, v%d row_half_mirror row_mask:0xf bank_mask:0x5' % (T1, S + 1, S + 1))
a('v_add_f32_dpp v%d, v%d, v%d row_half_mirror row_mask:0xf bank_mask:0xa' % (T0, S + 2, S + 2))
a('v_add_f32_dpp v%d, v%d, v%d row_half_mirror row_mask:0xf bank_mask:0xa' % (T1, S + 3, S + 3))
for ctl in ('quad_perm:[1,0,3,2]', 'quad_perm:[2,3,0,1]'):
    for r_ in (T0, T1):
        a('v_add_f32_dpp v%d, v%d, v%d %s row_mask:0xf bank_mask:0xf' % (r_, r_, r_, ctl))
a('v_max_f32 v%d, v%d, v%d' % (mm, T0, T1))
a('v_max_f32_dpp v%d, v%d, v%d row_half_mirror row_mask:0xf bank_mask:0xf' % (mm, mm, mm))
a('v_max_f32_dpp v%d, v%d, v%d row_ror:8 row_mask:0xf bank_mask:0xf' % (mm, mm, mm))
a('v_max_f32_dpp v%d, v%d, v%d row_bcast:15 row_mask:0xa bank_mask:0xf' % (mm, mm, mm))
a('v_max_f32_dpp v%d, v%d, v%d row_bcast:31 row_mask:0xc bank_mask:0xf' % (mm, mm, mm))
a('v_readlane_b32 s%d, v%d, 63' % (sT0, mm))
a('s_mov_b64 exec, %s' % sp(sT2))
a('ds_write_b32 v%d, v%d offset:%d' % (aR, mm, 768 - 240))
a('s_mov_b64 exec, -1')
a('v_subrev_f32 v%d, s%d, v%d' % (S, sT0, T0))
a('v_subrev_f32 v%d, s%d, v%d' % (S + 1, sT0, T1))
a('v_exp_f32 v%d, v%d' % (S, S))
a('v_exp_f32 v%d, v%d' % (S + 1, S + 1))
own, oth = S + 2, S + 3
a('v_cvt_pk_bf16_f32 v%d, v%d, v%d' % (own, S, S + 1))
a('v_add_f32 v%d, v%d, v%d' % (ll, S, S + 1))
SW = ' dst_sel:DWORD dst_unused:UNUSED_PAD src0_sel:WORD_1 src1_sel:DWORD'
a('v_and_b32 v%d, v%d, v%d' % (A0 + 0, own, vMLO))
a('v_mov_b32_dpp v%d, v%d row_half_mirror row_mask:0xf bank_mask:0xf' % (oth, own))
a('v_and_b32_sdwa v%d, v%d, v%d' % (A0 + 2, own, vMLO) + SW)
a('v_and_b32 v%d, v%d, v%d' % (A0 + 1, oth, vMHI))
a('v_and_b32_sdwa v%d, v%d, v%d' % (A0 + 3, oth, vMHI) + SW)
a('v_and_b32 v%d, v%d, v%d' % (A0 + 4, oth, vMLO))
a('v_and_b32 v%d, v%d, v%d' % (A0 + 5, own, vMHI))
a('v_and_b32_sdwa v%d, v%d, v%d' % (A0 + 6, oth, vMLO) + SW)
a('v_and_b32_sdwa v%d, v%d, v%d' % (A0 + 7, own, vMHI) + SW)
stamp(2)
lred = [
    'v_add_f32_dpp v%d, v%d, v%d row_half_mirror row_mask:0xf bank_mask:0xf' % (ll, ll, ll),
    'v_add_f32_dpp v%d, v%d, v%d row_ror:8 row_mask:0xf bank_mask:0xf' % (ll, ll, ll),
    'v_add_f32_dpp v%d, v%d, v%d row_bcast:15 row_mask:0xa bank_mask:0xf' % (ll, ll, ll),
    'v_add_f32_dpp v%d, v%d, v%d row_bcast:31 row_mask:0xc bank_mask:0xf' % (ll, ll, ll),
]
for P in range(2):
    for t in range(3):
        a('s_waitcnt vmcnt(%d)' % (10 - 2 * (3 * P + t)))
        a('v_smfmac_f32_16x16x64_bf16 %s, %s, %s, v%d' % (vr(ACC + 4 * t, 4), vr(A0 + 4 * P, 4), vr(VB + (3 * P + t) * 8, 8), vIDX))
        if lred:
            a(lred.pop(0))
a('s_mov_b64 exec, %s' % sp(sT2))
a('ds_write_b32 v%d, v%d offset:%d' % (aR, ll, 772 - 240))
a('s_mov_b64 exec, %s' % sp(sEXA))
for t in range(3):
    a('ds_write_b128 v%d, %s offset:%d' % (aR, vr(ACC + 4 * t, 4), 256 * t))
a('s_mov_b64 exec, -1')
a('s_waitcnt lgkmcnt(0)')
stamp(3)
a('s_barrier')
a('s_cmp_eq_u32 s%d, 1' % sROLE)
a.branch('s_cbranch_scc1', 'L_kv_r1')
a('s_cmp_eq_u32 s%d, 2' % sROLE)
a.branch('s_cbranch_scc1', 'L_kv_r2')
h1_gather()
stamp(5)
a('s_barrier')
a('s_waitcnt vmcnt(0)')
a('s_barrier')
a.branch('s_branch', 'L_kv_roledone')
a.label('L_kv_r1')
read_fast(5)
h2_gather()
stamp(5)
a.label('L_kv_r2')
a('s_barrier')
a.label('L_kv_roledone')
a('s_cmp_lg_u32 s%d, 0' % sLAY)
a.branch('s_cbranch_scc1', 'L_end')
next_layer()
a('s_cmp_lg_u32 s%d, 8' % sWV)
a.branch('s_cbranch_scc1', 'L_kv_nost')
read_fast(5)
stats_pre(q_stats_addr, 2)
a('s_setprio 3')
if SBAR & 2:
    a('s_barrier')
a('s_barrier')
stats_wave(IMGQ, 2)
a('s_setprio 1')
a.branch('s_branch', 'L_kv_loop')
a.label('L_kv_nost')
if SBAR & 2:
    a('s_barrier')
a('s_barrier')
a.branch('s_branch', 'L_kv_loop')

for (R, L, sl) in retry:
    a.label(R)
    spin_tail(L, sl)
for (Ls, text, Lb) in ool:
    a.label(Ls)
    a(text)
    a.branch('s_branch', Lb)

a.label('L_end')
a('s_mov_b64 exec, -1')
dump_stamps()
a.label('L_exit')
a.raw('    s_endpgm')
a.raw('.section .rodata,"a"')
a.raw('.p2align 6')
a.raw('.amdhsa_kernel %s_kernel' % NAME)
a.raw('  .amdhsa_next_free_vgpr 128')
a.raw('  .amdhsa_next_free_sgpr 102')
a.raw('  .amdhsa_accum_offset 128')
a.raw('  .amdhsa_group_segment_fixed_size 0')
a.raw('  .amdhsa_kernarg_size 96')
a.raw('  .amdhsa_user_sgpr_count 2')
a.raw('  .amdhsa_user_sgpr_kernarg_segment_ptr 1')
a.raw('  .amdhsa_system_sgpr_workgroup_id_x 1')
a.raw('.end_amdhsa_kernel')
open(OUT, 'w').write(a.text())
print('wrote', OUT, len(a.out), 'lines')
```
